```python
import torch

def _softmax(x, axis=-1):
    return torch.softmax(x, dim=axis)

def _gelu(x):
    return torch.nn.functional.gelu(x, approximate='tanh')

def _silu(x):
    return torch.nn.functional.silu(x)

def _sigmoid(x):
    return torch.sigmoid(x)

def _layernorm(x, axis=-1, eps=1e-05):
    m = x.mean(dim=axis, keepdim=True)
    v = x.var(dim=axis, keepdim=True, unbiased=False)
    return (x - m) / torch.sqrt(v + eps)

def _scatter_add(tgt, idx, src, axis=0):
    return tgt.clone().index_add_(axis, idx, src)

def _segment_sum(src, seg, n):
    out = torch.zeros((n,) + src.shape[1:], dtype=src.dtype)
    return out.index_add_(0, seg, src)

def _pad(x, pw):
    flat = tuple((v for pair in reversed(pw) for v in pair))
    return torch.nn.functional.pad(x, flat)
kernel_name = 'adaLN_cond__ssm_conv_h3__mixer_gmlp__prompt'

def setup_inputs():

    _w = lambda a: (lambda t: t.to(torch.bfloat16) if t.is_floating_point() else t)(torch.as_tensor(a))

    def _A_setup():
        B, S, D = (1, 2048, 1024)
        ks = 4
        return {'q': _w((lambda *s: torch.randn(*s, dtype=torch.bfloat16) * 0.05)(B, S, D)), 'k': _w((lambda *s: torch.randn(*s, dtype=torch.bfloat16) * 0.8)(B, S, D)), 'v': _w((lambda *s: torch.randn(*s, dtype=torch.bfloat16) * 0.8)(B, S, D)), 'shift_k': _w((lambda *s: torch.randn(*s, dtype=torch.bfloat16) * 0.8)(D, ks) * 0.5), 'ssm_k': _w((lambda *s: torch.randn(*s, dtype=torch.bfloat16) * 0.8)(D, S) * (1.0 / S ** 0.5)), 'ssm_D': _w((lambda *s: torch.randn(*s, dtype=torch.bfloat16) * 0.8)(D))}
    _A_in = _A_setup()

    def _B_setup():
        B, S, D, F = (1, 2048, 1024, 3584)
        Fh = F // 2
        return {'x': _w((lambda *s: torch.randn(*s, dtype=torch.bfloat16) * 0.05)(B, S, D)), 'w_in': _w((lambda *s: torch.randn(*s, dtype=torch.bfloat16) * 0.4)(D, 2 * Fh)), 'w_sp': _w(0.01 * (lambda *s: torch.randn(*s, dtype=torch.bfloat16) * 0.4)(S, S)), 'b_sp': _w(1.0 + 0.01 * (lambda *s: torch.randn(*s, dtype=torch.bfloat16) * 0.05)(S)), 'w_out': _w((lambda *s: torch.randn(*s, dtype=torch.bfloat16) * 0.05)(Fh, D))}
    _B_in = _B_setup()
    return {'A_q': _A_in['q'], 'A_k': _A_in['k'], 'A_v': _A_in['v'], 'A_shift_k': _A_in['shift_k'], 'A_ssm_k': _A_in['ssm_k'], 'A_ssm_D': _A_in['ssm_D'], 'B_x': _B_in['x'], 'B_w_in': _B_in['w_in'], 'B_w_sp': _B_in['w_sp'], 'B_b_sp': _B_in['b_sp'], 'B_w_out': _B_in['w_out'], 'c': _w((lambda *s: torch.randn(*s, dtype=torch.bfloat16) * 0.1)(1, 1024) * 8.0), 'w_mod': _w((lambda *s: torch.randn(*s, dtype=torch.bfloat16) * 0.1)(1024, 6 * 1024) * 1024 ** (-0.5) * 8.0)}

def reference(A_q, A_k, A_v, A_shift_k, A_ssm_k, A_ssm_D, B_x, B_w_in, B_w_sp, B_b_sp, B_w_out, c, w_mod):

    def _A_ref(q, k, v, shift_k, ssm_k, ssm_D):
        B, S, D = q.shape
        ks = shift_k.shape[-1]
        k_pad = _pad(k, ((0, 0), (ks - 1, 0), (0, 0)))
        k_shift = torch.zeros_like(k)
        for t in range(ks):
            k_shift = k_shift + k_pad[:, t:t + S, :] * shift_k[:, ks - 1 - t][None, None, :]
        kv = k_shift * v
        L = 2 * S
        kv_pad = _pad(kv, ((0, 0), (0, S), (0, 0)))
        kf_pad = _pad(ssm_k, ((0, 0), (0, S)))
        kv_f = (lambda x, axes=(-2, -1): torch.fft.rfft2(x.float(), dim=axes))(kv_pad[:, None, :, :], axes=(1, 2))
        kf_f = (lambda x, axes=(-2, -1): torch.fft.rfft2(x.float(), dim=axes))(kf_pad[:, None, :], axes=(1, 2))
        kf_f = (lambda x, *d: x.permute(*d))(kf_f, 1, 2, 0)
        y_f = kv_f * kf_f[None, :, :, :]
        y = (lambda x, s, axes=(-2, -1): torch.fft.irfft2(x, s=s, dim=axes).to(torch.bfloat16))(y_f, (1, L), axes=(1, 2))[:, 0, :S, :]
        y = y + kv * ssm_D[None, None, :]
        return q * y

    def _B_ref(x, w_in, w_sp, b_sp, w_out):
        B, S, D = x.shape
        F = w_in.shape[-1]
        Fh = F // 2
        z = _gelu(torch.einsum('bsd,df->bsf', x, w_in))
        z1 = z[..., :Fh].clone()
        z2 = _layernorm(z[..., Fh:], axis=-1)
        g = torch.einsum('ts,bsf->btf', w_sp, z2) + b_sp[None, :, None]
        return torch.einsum('bsf,fd->bsd', z1 * g, w_out)
    x = A_q
    mod = (_silu(c) @ w_mod).reshape(c.shape[0], 6, 1, -1)
    sa, ca, ga, sb, cb, gb = (mod[:, 0].clone(), mod[:, 1].clone(), mod[:, 2].clone(), mod[:, 3].clone(), mod[:, 4].clone(), mod[:, 5].clone())
    h = _layernorm(x, axis=-1) * (1 + ca) + sa
    x = x + ga * _A_ref(h, A_k, A_v, A_shift_k, A_ssm_k, A_ssm_D)
    h = _layernorm(x, axis=-1) * (1 + cb) + sb
    x = x + gb * _B_ref(h, B_w_in, B_w_sp, B_b_sp, B_w_out)
    return x
```

```python
import re
TRANS = ("v_exp_", "v_log_", "v_rcp_", "v_rsq_", "v_sqrt_", "v_sin_", "v_cos_")
NODST_S = ("s_cmp", "s_waitcnt", "s_branch", "s_barrier", "s_nop", "s_cbranch", "s_setprio", "s_sleep", "s_endpgm", "s_bitcmp", "s_setreg")
def regs(tok):
    tok = tok.strip()
    tok = re.sub(r"^-|^abs\(|^\|", "", tok); tok = re.sub(r"\)$|\|$", "", tok)
    m = re.fullmatch(r"([vas])(\d+)", tok)
    if m: return {(m.group(1), int(m.group(2)))}
    m = re.fullmatch(r"([vas])\[(\d+):(\d+)\]", tok)
    if m: return {(m.group(1), i) for i in range(int(m.group(2)), int(m.group(3))+1)}
    if tok in ("vcc", "vcc_lo", "vcc_hi"): return {("s", "vcc")}
    if tok in ("exec", "exec_lo", "exec_hi"): return {("s", "exec")}
    if tok == "m0": return {("s", "m0")}
    return set()
class I:
    def __init__(self, line):
        self.line = line
        t = line.split(";")[0].strip()
        self.is_label = t.endswith(":"); self.is_dir = t.startswith(".") or t == ""
        self.op = ""; self.d = set(); self.s = set(); self.kind = "none"; self.ws = 0
        if self.is_label: self.label = t[:-1]; return
        if self.is_dir: return
        p = t.split(None, 1); op = self.op = p[0]
        ops = []
        if len(p) > 1:
            parts = [x.strip() for x in re.split(r",(?![^\[]*\])", p[1])]
            last = parts[-1].split(None, 1) if not parts[-1].startswith("hwreg") else [parts[-1]]
            self.mods = last[1] if len(last) > 1 else ""
            parts[-1] = last[0]; ops = parts
        else: self.mods = ""
        self.ops = ops
        R = [regs(o) for o in ops]; U = lambda l: set().union(*l) if l else set()
        self.ws = 1
        if op == "s_nop": self.ws = int(ops[0], 0) + 1
        self.dpp = "_dpp" in op or any(k in self.mods for k in ("quad_perm", "row_", "wave_"))
        if op.startswith(("v_mfma", "v_smfmac")):
            self.kind = "mfma"; self.d = R[0]; self.a = R[1] | R[2]; self.c = R[3]; self.s = self.a | self.c
            self.passes = 8 if "32x32" in op else 4
        elif op.startswith("v_"):
            self.kind = "valu"; self.trans = op.startswith(TRANS)
            if op.startswith("v_nop"): pass
            elif "permlane" in op and "swap" in op: self.d = R[0] | R[1]; self.s = R[0] | R[1]
            elif re.match(r"v_(add|sub|subrev|addc|subb|subbrev)_co_", op) or op.startswith(("v_mad_u64", "v_mad_i64", "v_div_scale")):
                self.d = R[0] | R[1]; self.s = U(R[2:])
            else:
                self.d = R[0]; self.s = U(R[1:])
                if op.startswith(("v_fmac", "v_dot2c", "v_pk_fmac", "v_writelane")) or self.dpp or "d16" in op: self.s |= R[0]
                if op.startswith("v_cmpx"): self.d |= {("s", "exec")}
        elif op.startswith(("buffer_", "global_", "flat_")):
            self.kind = "vmem"; self.lds = bool(re.search(r"\blds\b", self.mods)) or "_lds_" in op
            self.data = set()
            if op.startswith(("buffer_wbl2", "buffer_inv")): pass
            elif "load" in op:
                if self.lds: self.s = U(R) | {("s", "m0")}
                else:
                    self.d = R[0]; self.s = U(R[1:])
                    if "d16" in op: self.s |= R[0]
            else:
                self.s = U(R)
                self.data = R[0] if op.startswith("buffer_") else R[1]
                if "atomic" in op and "sc0" in self.mods:
                    self.d = R[0]
                    if op.startswith("global_"): self.data = R[2]; self.s = U(R[1:])
            self.wide = ("store" in op and ("x3" in op or "x4" in op))
        elif op.startswith("ds_"):
            self.kind = "ds"
            if op.startswith(("ds_read", "ds_bpermute", "ds_permute", "ds_swizzle")) or "_rtn" in op: self.d = R[0]; self.s = U(R[1:])
            else: self.s = U(R)
        elif op.startswith(("s_load", "s_buffer_load", "s_memtime", "s_memrealtime")):
            self.kind = "smem"; self.d = R[0]; self.s = U(R[1:])
        elif op.startswith("s_"):
            self.kind = "salu"
            if op.startswith(NODST_S): self.s = U(R)
            else:
                self.d = R[0]; self.s = U(R[1:])
                if "saveexec" in op: self.d |= {("s", "exec")}
        else: raise ValueError("unknown instr: " + line)
def vg(S): return {r for r in S if r[0] in "va"}
def sg(S): return {r for r in S if r[0] == "s"}
def need(p, c):
    n = 0
    if p.kind == "valu":
        vd = vg(p.d); sd = sg(p.d)
        if c.kind == "mfma" and vd & c.s: n = max(n, 2)
        if c.kind == "mfma" and ("s", "exec") in sd: n = max(n, 4)
        if c.kind == "valu":
            if vd & c.s:
                if c.op.startswith(("v_readlane", "v_readfirstlane")): n = max(n, 1)
                if "permlane" in c.op or c.dpp: n = max(n, 2)
                if p.trans and not c.trans: n = max(n, 1)
                if "_sdwa" in p.op and "dst_sel:DWORD" not in p.mods: n = max(n, 1)
            if sd & c.s: n = max(n, 4 if c.op.startswith(("v_readlane", "v_writelane")) else 2)
        if c.kind == "vmem" and sd & c.s: n = max(n, 5)
        if c.kind in ("salu", "smem") and sd & c.s: n = max(n, 1)
    elif p.kind == "mfma":
        P = p.passes
        if c.kind == "mfma":
            if p.d & c.a: n = max(n, P + 4)
            if p.d & c.c and not (p.d == c.c and c.passes == P): n = max(n, P + 2)
            if p.d & c.d and not (p.d & c.c): n = max(n, P + 2)
        elif c.kind in ("valu", "vmem", "ds"):
            if p.d & (c.s | c.d): n = max(n, P + 4)
            if c.kind == "valu" and p.c & c.d: n = max(n, P - 1)
    elif p.kind == "salu":
        if ("s", "m0") in p.d and c.kind == "vmem" and c.lds: n = max(n, 1)
        if ("s", "m0") in p.d and c.kind == "ds" and "addtid" in c.op: n = max(n, 1)
    elif p.kind == "vmem":
        if p.wide and p.data & c.d: n = max(n, 2 if c.kind == "valu" else 1)
    return n
WIN = 14
def deficit(prev, c):
    dist = 0; worst = 0
    for p in reversed(prev):
        if p.ws == 0: continue
        if dist >= WIN: break
        worst = max(worst, need(p, c) - dist)
        dist += p.ws
    return worst
def pad(lines):
    ins = [I(l) for l in lines]; out = []; npad = 0
    for c in ins:
        if c.ws:
            d = deficit(out[-40:], c)
            if d > 0: out.append(I(f"    s_nop {d-1}")); npad += 1
        out.append(c)
        if c.op in ("s_endpgm", "s_branch"): out.append(I("")); out[-1].ws = WIN
    changed = True
    while changed:
        changed = False
        lab = {x.label: i for i, x in enumerate(out) if x.is_label}
        for i, b in enumerate(out):
            if b.op.startswith(("s_branch", "s_cbranch")):
                t = lab[b.ops[0]]
                prev = out[max(0, i-40):i+1]; worst = 0; seq = list(prev)
                for c in out[t:t+30]:
                    if c.ws == 0: continue
                    if c.line == "": break
                    dist = sum(x.ws for x in seq[len(prev):])
                    if dist >= WIN: break
                    dd = 0; w = 0
                    for p in reversed(prev):
                        if p.ws == 0: continue
                        if dd + dist >= WIN: break
                        w = max(w, need(p, c) - dd - dist); dd += p.ws
                    worst = max(worst, w); seq.append(c)
                if worst > 0:
                    out.insert(i, I(f"    s_nop {worst-1}")); npad += 1; changed = True; break
    return [x.line for x in out if x.line != ""], npad

class Asm:
    def __init__(self):
        self.lines = []; self.launches = []; self.kds = []; self._lbl = 0; self._start = 0
    def __call__(self, s):
        for l in s.strip("\n").split("\n"):
            l = l.strip()
            if l: self.lines.append(l if l.split(";")[0].strip().endswith(":") else "    " + l)
        return self
    def label(self, base="L"):
        self._lbl += 1; return f"{base}_{self._lbl}"
    def launch(self, name, grid, block, lds):
        self.launches.append(f"; @launch kernel={name} grid=({grid},1,1) block=({block},1,1) lds={lds}")
    def begin(self, name):
        self.lines += [".text", f".globl {name}", ".p2align 8", f".type {name},@function", f"{name}:"]
        self._start = len(self.lines)
    def end(self, name, vgpr, sgpr=96, agpr=0):
        body, n = pad(self.lines[self._start:])
        self.lines[self._start:] = body
        mx = {"v": -1, "a": -1, "s": -1}
        for l in body:
            it = I(l)
            for r in it.d | it.s:
                if isinstance(r[1], int): mx[r[0]] = max(mx[r[0]], r[1])
        assert mx["v"] < vgpr and mx["s"] < sgpr and mx["a"] < max(agpr, 0) or (mx["a"] < 0 and mx["v"] < vgpr and mx["s"] < sgpr), (name, mx, vgpr, sgpr, agpr)
        acc = (vgpr + 3)//4*4
        nfv = acc + agpr if agpr else vgpr
        self.kds.append(f""".p2align 6
.amdhsa_kernel {name}
  .amdhsa_next_free_vgpr {nfv}
  .amdhsa_next_free_sgpr {sgpr}
  .amdhsa_accum_offset {acc}
  .amdhsa_group_segment_fixed_size 0
  .amdhsa_kernarg_size 128
  .amdhsa_user_sgpr_count 2
  .amdhsa_user_sgpr_kernarg_segment_ptr 1
  .amdhsa_system_sgpr_workgroup_id_x 1
  .amdhsa_float_denorm_mode_32 3
.end_amdhsa_kernel""")
        return mx, n
    def srd(self, d, b, nbytes, off=0):
        if off:
            self(f"s_add_u32 s{d}, s{b}, {off}\ns_addc_u32 s{d+1}, s{b+1}, 0\ns_and_b32 s{d+1}, s{d+1}, 0xffff")
        else:
            self(f"s_mov_b32 s{d}, s{b}\ns_and_b32 s{d+1}, s{b+1}, 0xffff")
        self(f"s_mov_b32 s{d+2}, {nbytes}\ns_mov_b32 s{d+3}, 0x00020000")
    def text(self, header=""):
        return header + "\n".join(self.launches) + "\n.amdgcn_target \"amdgcn-amd-amdhsa--gfx950\"\n" + "\n".join(self.lines) + "\n.section .rodata,\"a\"\n" + "\n".join(self.kds) + "\n"
```

```python
import sys, struct
from asmgen import Asm
S, D, F, FH = 2048, 1024, 3584, 1792
MB = 1 << 20
WS_MOD, WS_GRAN, WS_KV, WS_Y2, WS_X1, WS_H2, WS_Z1, WS_Z2, WS_P, WS_TS = 0, 0x10000, 1*MB, 9*MB, 13*MB, 17*MB, 21*MB, 28*MB, 35*MB, 64*MB
GRAN_BYTES = 16*14*128*8
ARG = dict(q=0, k=8, v=16, shift=24, ssmk=32, ssmd=40, bx=48, win=56, wsp=64, bsp=72, wout=80, c=88, wmod=96, out=104, dbg=112, ws=120)
def fbits(x): return "0x%08x" % struct.unpack("<I", struct.pack("<f", x))[0]
LOG2E = 1.4426950408889634
DIAG = False
OPT = {}

def stamp_begin(a):
    if DIAG: a("s_memrealtime s[88:89]")
def stamp_end(a, kidx, wave_sgpr=None):
    if not DIAG: return
    l = a.label("L_st")
    a("s_waitcnt vmcnt(0) lgkmcnt(0)\ns_memrealtime s[90:91]\ns_load_dwordx2 s[92:93], s[0:1], 120\ns_waitcnt lgkmcnt(0)")
    a.srd(84, 92, 1*MB, WS_TS + kidx*65536)
    a(f"""s_lshl_b32 s92, s2, 8
    v_lshrrev_b32 v1, 6, v0
    v_lshlrev_b32 v1, 4, v1
    v_add_u32 v1, s92, v1
    v_mov_b32 v4, s88
    v_mov_b32 v5, s89
    v_mov_b32 v6, s90
    v_mov_b32 v7, s91
    v_and_b32 v2, 63, v0
    v_cmp_eq_u32 vcc, 0, v2
    s_and_saveexec_b64 s[92:93], vcc
    s_cbranch_execz {l}
    buffer_store_dwordx4 v[4:7], v1, s[84:87], 0 offen
    {l}:""")

def ld_args(a, items):
    for sreg, name in items: a(f"s_load_dwordx2 s[{sreg}:{sreg+1}], s[0:1], {ARG[name]}")

def unpack(a, lo, hi, src):
    a(f"v_lshlrev_b32 v{lo}, 16, v{src}\nv_and_b32 v{hi}, 0xffff0000, v{src}")

def k_prep(a):
    name = "prep_kernel"; a.launch(name, 256, 256, 0); a.begin(name)
    a("s_cmp_ge_u32 s2, 256\ns_cbranch_scc1 L_prep_done")
    stamp_begin(a)
    ld_args(a, [(4, "k"), (6, "v"), (24, "shift"), (26, "ws"), (28, "ssmk")])
    a("""s_and_b32 s30, s2, 7
    s_lshr_b32 s31, s2, 3
    s_lshr_b32 s32, s31, 4
    s_lshl_b32 s30, s30, 1
    s_add_u32 s32, s32, s30       ; cb
    s_and_b32 s33, s31, 15        ; sb
    v_and_b32 v1, 15, v0          ; g
    v_lshrrev_b32 v2, 4, v0       ; 4w+q
    v_lshlrev_b32 v2, 3, v2       ; 8*(4w+q)
    s_lshl_b32 s34, s33, 7
    v_add_u32 v2, s34, v2         ; s0
    s_lshl_b32 s35, s32, 6
    v_lshl_add_u32 v3, v1, 2, s35 ; ch
    v_lshlrev_b32 v4, 11, v2
    v_lshl_add_u32 v4, v3, 1, v4  ; s0*2048+ch*2
    s_waitcnt lgkmcnt(0)""")
    a.srd(8, 4, S*D*2); a.srd(12, 6, S*D*2); a.srd(16, 24, D*8); a.srd(20, 26, 9*MB); a.srd(36, 28, D*S*2)
    KR, VR, SH = 20, 44, 64
    for r in range(12): a(f"v_add_u32 v{8+r}, {(r-4)*2048 & 0xffffffff}, v4")
    a(f"v_lshlrev_b32 v5, 3, v3")
    a(f"buffer_load_dwordx4 v[{SH}:{SH+3}], v5, s[16:19], 0 offen\nbuffer_load_dwordx4 v[{SH+4}:{SH+7}], v5, s[16:19], 0 offen offset:16")
    for r in range(12):
        a(f"buffer_load_dwordx2 v[{KR+2*r}:{KR+2*r+1}], v{8+r}, s[8:11], 0 offen")
        if r >= 3: a(f"buffer_load_dwordx2 v[{VR+2*(r-3)}:{VR+2*(r-3)+1}], v{8+r}, s[12:15], 0 offen")
    a("""s_and_b32 s30, s2, 7
    s_lshl_b32 s30, s30, 5
    s_add_u32 s30, s30, s31
    s_lshl_b32 s30, s30, 14
    v_and_b32 v6, 127, v0
    v_lshlrev_b32 v6, 7, v6
    v_add_u32 v6, s30, v6
    buffer_load_dword v7, v6, s[36:39], 0 offen""")
    a(f"""s_mul_i32 s30, s2, 96
    v_lshl_add_u32 v5, v0, 2, s30
    v_cmp_gt_u32 vcc, 24, v0
    v_mov_b32 v72, 0
    v_mov_b32 v73, 0x7fffffff
    v_cndmask_b32 v5, v73, v5, vcc
    buffer_store_dword v72, v5, s[20:23], 0 offen
    s_mul_i32 s30, s2, 896
    s_add_u32 s30, s30, {WS_GRAN}
    v_lshl_add_u32 v5, v0, 2, s30
    v_cmp_gt_u32 vcc, 224, v0
    v_mov_b32 v72, -1
    v_cndmask_b32 v5, v73, v5, vcc
    buffer_store_dword v72, v5, s[20:23], 0 offen""")
    SF, KF, VF = 72, 88, 136
    a("s_waitcnt vmcnt(24)")
    for e in range(4):
        for hf in range(2):
            unpack(a, SF + (2*hf)*4 + e, SF + (2*hf+1)*4 + e, SH + 2*e + hf)
    n_after = 3
    cnt = 21
    for r in range(12):
        cnt -= 1 if r < 3 else 2
        a(f"s_waitcnt vmcnt({cnt + n_after})")
        for hf in range(2): unpack(a, KF + 4*r + 2*hf, KF + 4*r + 2*hf + 1, KR + 2*r + hf)
        if r >= 3:
            o = r - 3
            for hf in range(2): unpack(a, VF + 4*o + 2*hf, VF + 4*o + 2*hf + 1, VR + 2*o + hf)
            for hf in range(2):
                t = 8 + 2*hf
                pr = lambda b: f"v[{b+2*hf}:{b+2*hf+1}]"
                a(f"v_pk_mul_f32 v[{t}:{t+1}], {pr(KF+4*(r-3))}, {pr(SF+12)}")
                for j in (2, 1, 0): a(f"v_pk_fma_f32 v[{t}:{t+1}], {pr(KF+4*(r-j))}, {pr(SF+4*j)}, v[{t}:{t+1}]")
                a(f"v_pk_mul_f32 {pr(VF+4*o)}, v[{t}:{t+1}], {pr(VF+4*o)}")
    a(f"""v_sub_u32 v5, 2040, v2
    v_lshlrev_b32 v5, 1, v5
    v_lshl_add_u32 v5, v3, 13, v5
    v_add_u32 v5, {WS_KV}, v5""")
    for e in range(4):
        for cp in range(2):
            t = 20 + 8*e + 4*cp
            for d in range(4):
                o = 8 - cp - 2*d
                a(f"v_cvt_pk_bf16_f32 v{t+d}, v{VF+4*o+e}, v{VF+4*(o-1)+e}")
            a(f"s_mov_b32 s30, {e*8192 + cp*4096}\nbuffer_store_dwordx4 v[{t}:{t+3}], v5, s[20:23], s30 offen")
    stamp_end(a, 0)
    a("L_prep_done:\ns_endpgm")
    return a.end(name, 176)

CH_STRIDE, KVE_OFF, KA_OFF, KB_OFF = 17664, 4576, 9216, 13440
CONV_LDS = 4*CH_STRIDE + 3*16384 + 3*256
def k_conv(a):
    name = "conv_kernel"; a.launch(name, 256, 512, CONV_LDS); a.begin(name)
    a("s_cmp_ge_u32 s2, 256\ns_cbranch_scc1 L_conv_done")
    stamp_begin(a)
    ld_args(a, [(4, "ssmk"), (6, "ws"), (24, "ssmd"), (26, "wmod"), (28, "c"), (40, "q")])
    a("""v_lshrrev_b32 v1, 6, v0
    v_and_b32 v2, 63, v0
    v_readfirstlane_b32 s30, v1
    s_and_b32 s31, s2, 7
    s_lshr_b32 s32, s2, 3
    s_lshl_b32 s31, s31, 5
    s_add_u32 s31, s31, s32
    v_and_b32 v3, 15, v2           ; c / r
    v_lshrrev_b32 v4, 4, v2        ; h
    s_cmp_ge_u32 s30, 4
    s_cbranch_scc1 L_conv_help
    s_lshl_b32 s33, s31, 2
    s_add_u32 s33, s33, s30        ; channel
    s_waitcnt lgkmcnt(0)""")
    a.srd(8, 4, D*S*2); a.srd(12, 6, 13*MB); a.srd(16, 24, D*2)
    a(f"""s_mul_i32 s34, s30, {CH_STRIDE}
    v_lshlrev_b32 v5, 4, v2
    s_lshl_b32 s35, s33, 13
    s_add_u32 s35, s35, {WS_KV}
    s_lshl_b32 s36, s33, 12
    v_mov_b32 v6, s36
    s_lshl_b32 s37, s33, 1
    v_mov_b32 v7, s37
    buffer_load_dword v8, v6, s[8:11], 0 offen
    buffer_load_ushort v9, v7, s[16:19], 0 offen""")
    for i in range(4):
        a(f"s_add_u32 m0, s34, {1024*i}\ns_add_u32 s37, s35, {1024*i}\nbuffer_load_dwordx4 v5, s[12:15], s37 offen lds")
        a(f"s_add_u32 m0, s34, {KVE_OFF+1024*i}\ns_add_u32 s37, s35, {4096+1024*i}\nbuffer_load_dwordx4 v5, s[12:15], s37 offen lds")
        a(f"s_add_u32 m0, s34, {KA_OFF+64+1024*i}\ns_add_u32 s37, s36, {1024*i}\nbuffer_load_dwordx4 v5, s[8:11], s37 offen lds")
        a(f"s_add_u32 m0, s34, {KB_OFF+64+1024*i}\ns_add_u32 s37, s36, {4+1024*i}\nbuffer_load_dwordx4 v5, s[8:11], s37 offen lds")
    a("s_barrier")
    a(f"""v_and_b32 v10, 31, v2
    v_min_u32 v10, 27, v10
    v_lshlrev_b32 v10, 4, v10
    v_lshrrev_b32 v11, 5, v2
    v_mul_u32_u24 v11, {KVE_OFF}, v11
    v_add3_u32 v10, v10, v11, s34
    v_mov_b32 v12, 0
    v_mov_b32 v13, 0
    v_mov_b32 v14, 0
    v_mov_b32 v15, 0
    ds_write_b128 v10, v[12:15] offset:4096
    v_and_b32 v10, 1, v3
    v_xor_b32 v11, 1, v10
    v_mul_u32_u24 v11, {KVE_OFF}, v11
    v_lshrrev_b32 v16, 1, v3
    v_sub_u32 v16, 7, v16
    v_lshlrev_b32 v16, 6, v16
    v_lshl_add_u32 v16, v4, 4, v16
    v_add3_u32 v16, v16, v11, s34      ; v16 = A addr
    ; B (K) address
    v_mul_u32_u24 v11, {KB_OFF - KA_OFF - 4}, v10
    v_sub_u32 v11, {KB_OFF}, v11
    v_lshl_add_u32 v11, v3, 2, v11
    v_lshl_add_u32 v11, v4, 4, v11
    v_add_u32 v17, s34, v11            ; v17 = B addr
    v_and_b32 v10, 1, v4
    v_mul_u32_u24 v10, {KB_OFF - KA_OFF}, v10
    v_lshl_add_u32 v10, v3, 2, v10
    v_add_u32 v10, s34, v10
    v_and_b32 v11, 31, v2
    v_cmp_eq_u32 vcc, 31, v11
    s_waitcnt vmcnt(16)
    v_cndmask_b32 v8, 0, v8, vcc
    ds_write_b32 v10, v8 offset:{KA_OFF}
    v_lshlrev_b32 v10, 2, v4
    v_add_u32 v10, v10, v3
    v_sub_u32 v10, 15, v10""")
    for w in range(4): a(f"v_cmp_eq_u32 vcc, {w}, v10\nv_cndmask_b32 v{20+w}, 0, v9, vcc")
    ACC, SET = 24, [56, 120]
    def reads(st, mu):
        out = []
        for n in range(8):
            b = SET[st] + 32 + 4*n
            out.append(f"ds_read_b128 v[{SET[st]+4*n}:{SET[st]+4*n+3}], v16 offset:{512*(7-n)+64*mu}")
            out.append(f"ds_read_b64 v[{b}:{b+1}], v17 offset:{512*n+64*mu}")
            out.append(f"ds_read_b64 v[{b+2}:{b+3}], v17 offset:{512*n+64*mu+8}")
        return out
    a("s_waitcnt vmcnt(0) lgkmcnt(0)")
    for r in reads(0, 0): a(r)
    for mu in range(8):
        st = mu & 1
        nxt = reads(1-st, mu+1) if mu < 7 else []
        a("s_waitcnt lgkmcnt(0)")
        ms = []
        if mu == 0:
            for t in range(8): ms.append(f"v_mfma_f32_16x16x32_bf16 v[{ACC+4*t}:{ACC+4*t+3}], v[{SET[0]+4*t}:{SET[0]+4*t+3}], v[20:23], 0")
        for j in range(8):
            for i in range(8-j):
                t = i+j; A = SET[st]+4*i; B = SET[st]+32+4*j
                ms.append(f"v_mfma_f32_16x16x32_bf16 v[{ACC+4*t}:{ACC+4*t+3}], v[{A}:{A+3}], v[{B}:{B+3}], v[{ACC+4*t}:{ACC+4*t+3}]")
        for n, m in enumerate(ms):
            a(m)
            if n < len(nxt): a(nxt[n])
    a(f"""s_mul_i32 s37, s30, {CH_STRIDE + 64}
    v_lshlrev_b32 v10, 2, v3
    v_lshl_add_u32 v10, v4, 7, v10
    v_add_u32 v10, s37, v10""")
    for t in range(8):
        for jp in range(2):
            r = 56 + 2*t + jp
            a(f"v_cvt_pk_bf16_f32 v{r}, v{ACC+4*t+2*jp}, v{ACC+4*t+2*jp+1}\nds_write_b32 v10, v{r} offset:{512*t+64*jp}")
    a(f"""v_and_b32 v11, 3, v2
    v_lshrrev_b32 v12, 2, v2
    v_mul_u32_u24 v13, {CH_STRIDE + 64}, v11
    v_lshl_add_u32 v13, v12, 4, v13
    s_lshl_b32 s37, s30, 10
    v_add_u32 v13, s37, v13
    s_lshl_b32 s37, s31, 2
    v_add_u32 v11, s37, v11
    v_lshlrev_b32 v11, 4, v11
    v_lshl_add_u32 v11, v12, 14, v11
    s_lshl_b32 s37, s30, 20
    s_add_u32 s37, s37, {WS_Y2}
    s_waitcnt lgkmcnt(0)
    s_barrier""")
    for q in range(4): a(f"ds_read_b128 v[{72+4*q}:{75+4*q}], v13 offset:{256*q}")
    for q in range(4):
        a(f"s_waitcnt lgkmcnt({3-q})\nbuffer_store_dwordx4 v[{72+4*q}:{75+4*q}], v11, s[12:15], s37 offen\ns_add_u32 s37, s37, {16*16384}")
    a("s_branch L_conv_end")
    a("L_conv_help:\ns_waitcnt lgkmcnt(0)\ns_cmp_eq_u32 s30, 7\ns_cbranch_scc1 L_conv_touch")
    a.srd(8, 26, D*6*D*2); a.srd(12, 6, 6144*4); a.srd(16, 28, D*2)
    HB = 4*CH_STRIDE
    a(f"""s_sub_u32 s30, s30, 4
    s_mul_i32 s33, s2, 3
    s_add_u32 s33, s33, s30          ; task
    s_mul_i32 s34, s33, 683
    s_lshr_b32 s34, s34, 16
    s_mul_i32 s35, s34, 96
    s_sub_u32 s35, s33, s35          ; group
    s_lshl_b32 s36, s34, 8
    v_lshl_add_u32 v5, v2, 2, s36
    buffer_load_dword v8, v5, s[16:19], 0 offen
    s_mul_i32 s36, s34, {128*12288}
    s_lshl_b32 s37, s35, 7
    s_add_u32 s36, s36, s37
    v_lshrrev_b32 v5, 3, v2
    v_mul_u32_u24 v5, 12288, v5
    v_and_b32 v6, 7, v2
    v_and_b32 v7, 1, v4
    v_lshlrev_b32 v7, 1, v7
    v_xor_b32 v6, v6, v7
    v_lshl_add_u32 v5, v6, 4, v5
    v_xor_b32 v6, 64, v5
    s_lshl_b32 s38, s30, 14
    s_add_u32 s38, s38, {HB}
    s_barrier""")
    for i in range(16):
        a(f"s_add_u32 m0, s38, {1024*i}\nbuffer_load_dwordx4 v{5+(i&1)}, s[8:11], s36 offen lds\ns_add_u32 s36, s36, {8*12288}")
    a(f"""s_waitcnt vmcnt(16)
    v_lshlrev_b32 v10, 16, v8
    v_and_b32 v11, 0xffff0000, v8
    v_mul_f32 v12, {fbits(-LOG2E)}, v10
    v_mul_f32 v13, {fbits(-LOG2E)}, v11
    v_exp_f32 v12, v12
    v_exp_f32 v13, v13
    v_add_f32 v12, 1.0, v12
    v_add_f32 v13, 1.0, v13
    v_rcp_f32 v12, v12
    v_rcp_f32 v13, v13
    v_mul_f32 v10, v10, v12
    v_mul_f32 v11, v11, v13
    v_cvt_pk_bf16_f32 v10, v10, v11
    s_lshl_b32 s39, s30, 8
    s_add_u32 s39, s39, {HB + 3*16384}
    v_lshl_add_u32 v11, v2, 2, s39
    ds_write_b32 v11, v10
    v_lshl_add_u32 v11, v4, 4, s39
    s_waitcnt lgkmcnt(0)""")
    for kk in range(4): a(f"ds_read_b128 v[{24+4*kk}:{27+4*kk}], v11 offset:{64*kk}")
    a(f"""v_bfe_u32 v12, v2, 2, 2
    v_and_b32 v13, 3, v2
    v_lshl_add_u32 v14, v4, 3, v12
    v_lshlrev_b32 v14, 7, v14
    v_lshl_add_u32 v14, v13, 3, v14
    v_add_u32 v14, s38, v14
    v_lshrrev_b32 v12, 1, v12
    v_and_b32 v13, 1, v4
    v_lshl_or_b32 v12, v13, 1, v12""")
    for u in range(4): a(f"v_xor_b32 v13, {u}, v12\nv_lshl_add_u32 v{16+u}, v13, 5, v14")
    a("s_waitcnt vmcnt(0)")
    for kk in range(4):
        for u in range(4):
            b = 56 + 16*kk + 4*u
            a(f"ds_read_b64_tr_b16 v[{b}:{b+1}], v{16+u} offset:{4096*kk}\nds_read_b64_tr_b16 v[{b+2}:{b+3}], v{16+u} offset:{4096*kk+512}")
        a("s_waitcnt lgkmcnt(0)")
        for u in range(4):
            b = 56 + 16*kk + 4*u
            a(f"v_mfma_f32_16x16x32_bf16 v[{40+4*u}:{43+4*u}], v[{24+4*kk}:{27+4*kk}], v[{b}:{b+3}], " + (f"v[{40+4*u}:{43+4*u}]" if kk else "0"))
    for u in range(1, 4): a(f"v_cmp_eq_u32 vcc, {u}, v4\nv_cndmask_b32 v40, v40, v{40+4*u}, vcc")
    a("""s_lshl_b32 s35, s35, 8
    v_lshl_add_u32 v5, v2, 2, s35
    buffer_atomic_add_f32 v40, v5, s[12:15], 0 offen
    s_branch L_conv_end
    L_conv_touch:""")
    a.srd(8, 40, S*D*2)
    a("""s_lshl_b32 s33, s2, 14
    v_lshl_add_u32 v5, v2, 7, s33
    s_barrier
    s_movk_i32 s34, 0x2000
    buffer_load_dword v6, v5, s[8:11], 0 offen
    buffer_load_dword v7, v5, s[8:11], s34 offen
    L_conv_end:""")
    stamp_end(a, 1)
    a("L_conv_done:\ns_endpgm")
    return a.end(name, 184)

def rnd_bf16(a, regs, tmp):
    for i in range(0, len(regs), 2):
        a(f"v_cvt_pk_bf16_f32 v{tmp}, v{regs[i]}, v{regs[i+1]}")
        unpack(a, regs[i], regs[i+1], tmp)
def k_row(a):
    name = "row_kernel"; a.launch(name, 256, 256, 1024); a.begin(name)
    a("s_cmp_ge_u32 s2, 256\ns_cbranch_scc1 L_row_done")
    stamp_begin(a)
    ld_args(a, [(4, "q"), (6, "ws"), (24, "win")])
    a("""s_and_b32 s30, s2, 7
    s_lshr_b32 s31, s2, 3
    s_lshl_b32 s30, s30, 5
    s_add_u32 s30, s30, s31
    s_lshl_b32 s32, s30, 14
    v_lshlrev_b32 v1, 3, v0
    v_lshlrev_b32 v2, 6, v0
    v_lshlrev_b32 v3, 4, v0
    v_lshrrev_b32 v4, 6, v0
    v_and_b32 v5, 63, v0
    s_waitcnt lgkmcnt(0)""")
    a.srd(8, 4, S*D*2); a.srd(12, 6, 21*MB); a.srd(16, 24, D*F*2)
    XR, YR, MODV, XF, YF = 8, 24, 40, 64, 96
    for r in range(8): a(f"s_add_u32 s33, s32, {2048*r}\nbuffer_load_dwordx2 v[{XR+2*r}:{XR+2*r+1}], v1, s[8:11], s33 offen")
    for m in range(5): a(f"s_mov_b32 s33, {WS_MOD + 4096*m}\nbuffer_load_dwordx4 v[{MODV+4*m}:{MODV+4*m+3}], v3, s[12:15], s33 offen")
    a(f"s_add_u32 s33, s32, {WS_Y2}")
    for e in range(4): a(f"buffer_load_dwordx4 v[{YR+4*e}:{YR+4*e+3}], v2, s[12:15], s33 offen offset:{16*e}")
    a("""s_mul_i32 s33, s2, 28672
    v_min_u32 v6, 223, v0
    v_lshlrev_b32 v6, 7, v6
    buffer_load_dword v7, v6, s[16:19], s33 offen""")
    T = 128
    def stats(src, sbase, ldsoff):
        for r in range(8):
            x = src + 4*r
            a(f"""v_pk_add_f32 v[{T+16}:{T+17}], v[{x}:{x+1}], v[{x+2}:{x+3}]
            v_pk_mul_f32 v[{T+18}:{T+19}], v[{x}:{x+1}], v[{x}:{x+1}]
            v_pk_fma_f32 v[{T+18}:{T+19}], v[{x+2}:{x+3}], v[{x+2}:{x+3}], v[{T+18}:{T+19}]
            v_add_f32 v{T+r}, v{T+16}, v{T+17}
            v_add_f32 v{T+8+r}, v{T+18}, v{T+19}""")
        for p in range(8): a(f"v_permlane32_swap_b32 v{T+2*p}, v{T+2*p+1}")
        for p in range(8): a(f"v_add_f32 v{T+2*p}, v{T+2*p}, v{T+2*p+1}")
        for p in range(4): a(f"v_permlane16_swap_b32 v{T+4*p}, v{T+4*p+2}")
        for p in range(4): a(f"v_add_f32 v{T+4*p}, v{T+4*p}, v{T+4*p+2}")
        for sh in (8, 4, 2, 1):
            for p in range(4): a(f"v_add_f32_dpp v{T+4*p}, v{T+4*p}, v{T+4*p} row_ror:{sh} row_mask:0xf bank_mask:0xf")
        for p in range(4): a(f"ds_write_b32 v61, v{T+4*p} offset:{ldsoff + (p&1)*128 + (p>>1)*16}")
        a(f"""s_waitcnt lgkmcnt(0)
        s_barrier
        ds_read_b128 v[{T}:{T+3}], v62 offset:{ldsoff}
        ds_read_b128 v[{T+4}:{T+7}], v62 offset:{ldsoff+16}
        s_waitcnt lgkmcnt(0)
        v_add_f32 v{T}, v{T}, v{T+1}
        v_add_f32 v{T+2}, v{T+2}, v{T+3}
        v_add_f32 v{T+4}, v{T+4}, v{T+5}
        v_add_f32 v{T+6}, v{T+6}, v{T+7}
        v_add_f32 v{T}, v{T}, v{T+2}
        v_add_f32 v{T+4}, v{T+4}, v{T+6}
        v_mul_f32 v{T}, {fbits(1/1024)}, v{T}
        v_mul_f32 v{T+4}, {fbits(1/1024)}, v{T+4}
        v_fma_f32 v{T+4}, -v{T}, v{T}, v{T+4}
        v_max_f32 v{T+4}, 0, v{T+4}
        v_add_f32 v{T+4}, {fbits(1e-5)}, v{T+4}
        v_rsq_f32 v{T+4}, v{T+4}
        v_sub_f32 v{T}, 0, v{T}""")
        for r in range(8): a(f"v_readlane_b32 s{sbase+2*r}, v{T}, {r}\nv_readlane_b32 s{sbase+2*r+1}, v{T+4}, {r}")
    a("""v_lshrrev_b32 v60, 4, v5
    v_and_b32 v61, 1, v60
    v_lshrrev_b32 v60, 1, v60
    v_lshl_or_b32 v61, v61, 1, v60
    v_lshlrev_b32 v61, 5, v61
    v_lshl_add_u32 v61, v4, 2, v61
    v_and_b32 v62, 7, v0
    v_lshlrev_b32 v62, 5, v62""")
    for r in range(8):
        a(f"s_waitcnt vmcnt({17-r})")
        for hf in range(2): unpack(a, XF+4*r+2*hf, XF+4*r+2*hf+1, XR+2*r+hf)
    stats(XF, 40, 0)
    a("s_waitcnt vmcnt(5)")
    rnd_bf16(a, list(range(MODV, MODV+20)), 63)
    for m in (1, 4):
        for e in range(4): a(f"v_add_f32 v{MODV+4*m+e}, 1.0, v{MODV+4*m+e}")
        rnd_bf16(a, list(range(MODV+4*m, MODV+4*m+4)), 63)
    a("s_waitcnt vmcnt(1)")
    for e in range(4):
        for q in range(4): unpack(a, YF+4*(2*q)+e, YF+4*(2*q+1)+e, YR+4*e+q)
    P = lambda b: f"v[{b}:{b+1}]"
    a(f"s_add_u32 s33, s32, {WS_X1}")
    for r in range(8):
        for hf in range(2):
            x = XF+4*r+2*hf; y = YF+4*r+2*hf; t = T+2*hf; o = 2*hf
            a(f"""v_pk_add_f32 {P(t)}, {P(x)}, s[{40+2*r}:{41+2*r}] op_sel_hi:[1,0]
            v_pk_mul_f32 {P(t)}, {P(t)}, s[{40+2*r}:{41+2*r}] op_sel:[0,1] op_sel_hi:[1,1]
            v_pk_fma_f32 {P(t)}, {P(t)}, {P(MODV+4+o)}, {P(MODV+o)}
            v_pk_mul_f32 {P(t)}, {P(t)}, {P(y)}
            v_pk_fma_f32 {P(x)}, {P(t)}, {P(MODV+8+o)}, {P(x)}
            v_cvt_pk_bf16_f32 v{XR+2*r+hf}, v{x}, v{x+1}""")
        a(f"buffer_store_dwordx2 v[{XR+2*r}:{XR+2*r+1}], v1, s[12:15], s33 offen\ns_add_u32 s33, s33, 2048")
    stats(XF, 40, 512)
    a(f"s_add_u32 s33, s32, {WS_H2}")
    for r in range(8):
        for hf in range(2):
            x = XF+4*r+2*hf; t = T+2*hf; o = 2*hf
            a(f"""v_pk_add_f32 {P(t)}, {P(x)}, s[{40+2*r}:{41+2*r}] op_sel_hi:[1,0]
            v_pk_mul_f32 {P(t)}, {P(t)}, s[{40+2*r}:{41+2*r}] op_sel:[0,1] op_sel_hi:[1,1]
            v_pk_fma_f32 {P(t)}, {P(t)}, {P(MODV+16+o)}, {P(MODV+12+o)}
            v_cvt_pk_bf16_f32 v{YR+2*r+hf}, v{t}, v{t+1}""")
        a(f"buffer_store_dwordx2 v[{YR+2*r}:{YR+2*r+1}], v1, s[12:15], s33 offen\ns_add_u32 s33, s33, 2048")
    stamp_end(a, 2)
    a("L_row_done:\ns_endpgm")
    return a.end(name, 160)

def k_gemm(a, which):
    name = f"gemm{which}_kernel"; L = f"L_g{which}"
    NX, MY, K, NS = {1: (2, 128, 1024, 3), 2: (1, 128, 2048, 4), 3: (1, 64, 1792, 6)}[which]
    ldx2 = {1: F*2, 2: FH*2, 3: D*2}[which]; ldy2 = {1: D*2, 2: S*2, 3: FH*2}[which]
    NYT = MY//32; NXT = 4*NX; nsteps = K//64
    STG = NX*16384 + MY*128; YB = NX*16384
    lds = STG*NS
    RED = STG; assert (nsteps-1) % NS != 1
    a.launch(name, 256, 512, lds); a.begin(name)
    a(f"s_cmp_ge_u32 s2, 256\ns_cbranch_scc1 {L}_done")
    stamp_begin(a)
    ld_args(a, [(4, "ws"), (6, {1: "win", 2: "wsp", 3: "wout"}[which]), (24, {1: "wsp", 2: "bsp", 3: "out"}[which]), (26, "wout")])
    a("""v_lshrrev_b32 v1, 6, v0
    v_and_b32 v2, 63, v0
    v_readfirstlane_b32 s30, v1
    s_and_b32 s31, s2, 7
    s_lshr_b32 s32, s2, 3
    s_lshr_b32 s33, s31, 1
    s_and_b32 s34, s31, 1
    v_and_b32 v3, 15, v2
    v_lshrrev_b32 v4, 4, v2""")
    if which < 3:
        a(f"""s_cmp_ge_u32 s32, 28
        s_cbranch_scc1 {L}_spare
        s_mul_i32 s35, s32, 37
        s_lshr_b32 s35, s35, 8
        s_mul_i32 s36, s35, 7
        s_sub_u32 s36, s32, s36
        s_lshl_b32 s28, s33, 2
        s_add_u32 s28, s28, s35
        s_mul_i32 s29, s34, 7
        s_add_u32 s29, s29, s36""")
    else:
        a("""s_lshr_b32 s35, s32, 2
        s_and_b32 s36, s32, 3
        s_lshl_b32 s28, s33, 3
        s_add_u32 s28, s28, s35
        s_lshl_b32 s29, s34, 2
        s_add_u32 s29, s29, s36""")
    a(f"s_waitcnt lgkmcnt(0)\ns_cmp_ge_u32 s30, 4\ns_cbranch_scc1 {L}_load")
    ACC = 0 + 16; nacc = NXT*NYT*4
    FR = [ACC + nacc, ACC + nacc + 4*(NXT+NYT)]; TOP = FR[1] + 4*(NXT+NYT)
    acc = lambda x, ts: ACC + 4*(x*NYT + ts)
    a(f"""s_and_b32 s35, s30, 1        ; wx
    s_lshr_b32 s36, s30, 1       ; wy
    v_bfe_u32 v5, v2, 2, 2
    v_and_b32 v6, 3, v2
    v_lshl_add_u32 v7, v4, 3, v5
    v_lshlrev_b32 v7, 8, v7
    v_lshl_add_u32 v7, v6, 3, v7
    v_and_b32 v6, 1, v4
    v_xor_b32 v6, s35, v6
    v_lshl_add_u32 v7, v6, 7, v7""")
    for i in range(4): a(f"v_xor_b32 v6, {i}, v5\nv_lshl_add_u32 v{8+i}, v6, 5, v7")
    a(f"""s_mul_i32 s37, s36, {MY//2*128}
    v_lshrrev_b32 v5, 1, v3
    v_xor_b32 v5, v5, v4
    v_lshlrev_b32 v5, 4, v5
    v_lshl_add_u32 v5, v3, 7, v5
    v_add_u32 v12, s37, v5
    v_xor_b32 v13, 64, v12
    s_mov_b32 s38, 0
    s_mov_b32 s48, {STG}
    s_mov_b32 s39, 1""")
    def reads(ks):
        o = []; f = FR[ks]
        for n in range(max(NXT, NYT)):
            if n < NYT: o.append(f"ds_read_b128 v[{f+4*(NXT+n)}:{f+4*(NXT+n)+3}], v{12+ks} offset:{YB+2048*n}")
            if n < NXT:
                off = (n>>2)*16384 + ks*8192
                o.append(f"ds_read_b64_tr_b16 v[{f+4*n}:{f+4*n+1}], v{8+(n&3)} offset:{off}")
                o.append(f"ds_read_b64_tr_b16 v[{f+4*n+2}:{f+4*n+3}], v{8+(n&3)} offset:{off+1024}")
        return o
    def mfmas(ks, first=False):
        f = FR[ks]; o = []
        for x in range(NXT):
            for ts in range(NYT):
                c = acc(x, ts)
                o.append(f"v_mfma_f32_16x16x32_bf16 v[{c}:{c+3}], v[{f+4*x}:{f+4*x+3}], v[{f+4*(NXT+ts)}:{f+4*(NXT+ts)+3}], " + ("0" if first else f"v[{c}:{c+3}]"))
        return o
    def inter(ms, rs, extra=()):
        rs = list(rs); per = -(-len(rs)//max(1, (len(ms)*5)//8)); ex = list(extra)
        for m in ms:
            a(m)
            for _ in range(per):
                if rs: a(rs.pop(0))
            if not rs and ex: a(ex.pop(0))
        for r in rs + ex: a(r)
    adv = [f"v_add_u32 v{8+i}, s40, v{8+i}" for i in range(6)]
    def stage_delta():
        a(f"s_add_u32 s38, s38, 1\ns_cmp_eq_u32 s38, {NS}\ns_cselect_b32 s40, {(-(NS-1)*STG) & 0xffffffff}, s48\ns_cselect_b32 s38, 0, s38")
    a("s_barrier"); stage_delta()
    for r in reads(0): a(r)
    a("s_waitcnt lgkmcnt(0)")
    inter(mfmas(0, True), reads(1), adv)
    a(f"s_waitcnt lgkmcnt(0)\n{L}_cloop:\ns_barrier")
    inter(mfmas(1), reads(0))
    stage_delta()
    a("s_waitcnt lgkmcnt(0)")
    inter(mfmas(0), reads(1), adv)
    a(f"s_add_u32 s39, s39, 1\ns_cmp_lt_u32 s39, {nsteps}\ns_waitcnt lgkmcnt(0)\ns_cbranch_scc1 {L}_cloop")
    P = lambda b: f"v[{b}:{b+1}]"
    Q = lambda b: f"v[{b}:{b+3}]"
    def swap_store(t, voff, srd, soff, imm):
        a(f"""v_permlane32_swap_b32 v{t}, v{t+2}
        v_permlane32_swap_b32 v{t+1}, v{t+3}
        v_permlane16_swap_b32 v{t}, v{t+2}
        v_permlane16_swap_b32 v{t+1}, v{t+3}
        buffer_store_dwordx4 {Q(t)}, v{voff}, s[{srd}:{srd+3}], {soff} offen offset:{imm}""")
    if which == 1:
        a.srd(16, 4, 7*MB, WS_Z1); a.srd(20, 4, S*FH*2, WS_Z2)
        for m in mfmas(1): a(m)
        T = FR[0]
        a(f"v_mov_b32 v14, {fbits(-1.5957691216057308*LOG2E)}\nv_mov_b32 v15, v14\ns_mov_b32 s42, {fbits(-0.07135481282636784*LOG2E)}\ns_mov_b32 s43, s42")
        def gelu4(c):
            for hf in (0, 2): a(f"v_pk_mul_f32 {P(T+hf)}, {P(c+hf)}, {P(c+hf)}")
            for hf in (0, 2): a(f"v_pk_fma_f32 {P(T+hf)}, {P(T+hf)}, s[42:43], v[14:15]")
            for hf in (0, 2): a(f"v_pk_mul_f32 {P(T+hf)}, {P(T+hf)}, {P(c+hf)}")
            for j in range(4): a(f"v_exp_f32 v{T+j}, v{T+j}")
            for hf in (0, 2): a(f"v_pk_add_f32 {P(T+hf)}, {P(T+hf)}, 1.0 op_sel_hi:[1,0]")
            for j in range(4): a(f"v_rcp_f32 v{T+j}, v{T+j}")
            for hf in (0, 2): a(f"v_pk_mul_f32 {P(c+hf)}, {P(c+hf)}, {P(T+hf)}")
        SU = T + 8
        for ts in range(4):
            for i in range(4):
                c = acc(4+i, ts); gelu4(c)
                if i == 0:
                    a(f"v_pk_add_f32 {P(SU+2*ts)}, {P(c)}, {P(c+2)}\nv_pk_mul_f32 {P(SU+8+2*ts)}, {P(c)}, {P(c)}")
                else:
                    a(f"v_pk_add_f32 {P(SU+2*ts)}, {P(SU+2*ts)}, {P(c)}\nv_pk_fma_f32 {P(SU+8+2*ts)}, {P(c)}, {P(c)}, {P(SU+8+2*ts)}\nv_pk_add_f32 {P(SU+2*ts)}, {P(SU+2*ts)}, {P(c+2)}")
                a(f"v_pk_fma_f32 {P(SU+8+2*ts)}, {P(c+2)}, {P(c+2)}, {P(SU+8+2*ts)}")
        for n in range(8): a(f"v_add_f32 v{SU+2*n}, v{SU+2*n}, v{SU+2*n+1}")
        for st in range(2):
            b = SU + 8*st
            a(f"v_permlane32_swap_b32 v{b}, v{b+2}\nv_permlane32_swap_b32 v{b+4}, v{b+6}")
        for st in range(2):
            b = SU + 8*st
            a(f"v_add_f32 v{b}, v{b}, v{b+2}\nv_add_f32 v{b+4}, v{b+4}, v{b+6}")
        for st in range(2): a(f"v_permlane16_swap_b32 v{SU+8*st}, v{SU+8*st+4}")
        a(f"""v_add_f32 v{T}, v{SU}, v{SU+4}
        v_add_f32 v{T+1}, v{SU+8}, v{SU+12}
        v_and_b32 v5, 1, v4
        v_lshrrev_b32 v6, 1, v4
        v_lshl_or_b32 v5, v5, 1, v6
        v_lshl_add_u32 v5, v5, 4, v3
        s_lshl_b32 s37, s36, 6
        v_add_u32 v5, s37, v5
        v_lshlrev_b32 v5, 4, v5
        s_lshl_b32 s37, s35, 3
        s_add_u32 s37, s37, {RED}
        v_add_u32 v5, s37, v5
        ds_write_b64 v5, {P(T)}
        s_waitcnt lgkmcnt(0)
        s_barrier""")
        a(f"""s_mul_i32 s37, s28, 14
        s_add_u32 s37, s37, s29
        s_lshl_b32 s37, s37, 15
        s_lshl_b32 s41, s30, 13
        s_add_u32 s37, s37, s41
        v_lshlrev_b32 v5, 4, v2""")
        for ts in range(4):
            for ip in range(2):
                t = T + 8 + 4*((2*ts+ip) & 3)
                for ii in range(2):
                    c = acc(2*ip+ii, ts); gelu4(c)
                    a(f"v_cvt_pk_bf16_f32 v{t+2*ii}, v{c}, v{c+1}\nv_cvt_pk_bf16_f32 v{t+2*ii+1}, v{c+2}, v{c+3}")
                n = 2*ts+ip
                if n == 4: a("s_add_u32 s37, s37, 4096")
                a(f"buffer_store_dwordx4 {Q(t)}, v5, s[16:19], s37 offen offset:{1024*(n&3)}")
        a(f"""s_lshl_b32 s37, s36, 6
        v_add_u32 v5, s37, v3
        v_lshlrev_b32 v6, 3, v5
        s_lshl_b32 s37, s28, 7
        v_add_u32 v5, s37, v5
        v_mul_u32_u24 v5, {FH*2}, v5
        v_lshl_add_u32 v5, v4, 4, v5
        s_lshl_b32 s37, s29, 8
        s_lshl_b32 s41, s35, 7
        s_add_u32 s37, s37, s41
        s_barrier""")
        for ts in range(4): a(f"ds_read_b64 {P(T+2*ts)}, v6 offset:{RED+2048+128*ts}")
        a("s_waitcnt lgkmcnt(0)")
        for ts in range(4):
            for ip in range(2):
                t = T + 8 + 4*((2*ts+ip) & 3)
                for ii in range(2):
                    c = acc(4+2*ip+ii, ts)
                    for hf in (0, 2): a(f"v_pk_fma_f32 {P(c+hf)}, {P(c+hf)}, {P(T+2*ts)}, {P(T+2*ts)} op_sel:[0,0,1] op_sel_hi:[1,0,1]")
                    a(f"v_cvt_pk_bf16_f32 v{t+2*ii}, v{c}, v{c+1}\nv_cvt_pk_bf16_f32 v{t+2*ii+1}, v{c+2}, v{c+3}")
                swap_store(t, 5, 20, "s37", 64*ip)
            a(f"s_add_u32 s37, s37, {16*FH*2}")
    elif which == 2:
        a.srd(16, 4, 7*MB, WS_Z1); a.srd(20, 4, S*FH*2, WS_P); a.srd(44, 24, S*2)
        Z = TOP; B = Z + 32; T = FR[0]
        a(f"""s_mul_i32 s37, s28, 14
        s_add_u32 s37, s37, s29
        s_lshl_b32 s37, s37, 15
        s_lshl_b32 s41, s30, 13
        s_add_u32 s37, s37, s41
        v_lshlrev_b32 v5, 4, v2
        s_lshl_b32 s41, s28, 7
        s_lshl_b32 s42, s36, 6
        s_add_u32 s41, s41, s42
        v_add_u32 v6, s41, v3
        v_lshlrev_b32 v7, 1, v6""")
        for ts in range(4): a(f"buffer_load_ushort v{B+2*ts}, v7, s[44:47], 0 offen offset:{32*ts}")
        for n in range(8):
            if n == 4: a("s_add_u32 s37, s37, 4096")
            a(f"buffer_load_dwordx4 {Q(Z+4*n)}, v5, s[16:19], s37 offen offset:{1024*(n&3)}")
        for m in mfmas(1): a(m)
        a(f"""v_mul_u32_u24 v5, {FH*2}, v6
        v_lshl_add_u32 v5, v4, 4, v5
        s_lshl_b32 s37, s29, 8
        s_lshl_b32 s41, s35, 7
        s_add_u32 s37, s37, s41
        s_waitcnt vmcnt(8)""")
        for ts in range(4): a(f"v_lshlrev_b32 v{B+2*ts}, 16, v{B+2*ts}")
        for ts in range(4):
            for ip in range(2):
                n = 2*ts+ip; t = T + 8 + 4*(n & 3)
                a(f"s_waitcnt vmcnt(7)")
                for ii in range(2):
                    c = acc(2*ip+ii, ts)
                    for hf in (0, 2):
                        unpack(a, T+hf, T+hf+1, Z+4*n+2*ii+hf//2)
                        a(f"v_pk_add_f32 {P(c+hf)}, {P(c+hf)}, {P(B+2*ts)} op_sel_hi:[1,0]")
                    for hf in (0, 2): a(f"v_pk_mul_f32 {P(c+hf)}, {P(c+hf)}, {P(T+hf)}")
                    a(f"v_cvt_pk_bf16_f32 v{t+2*ii}, v{c}, v{c+1}\nv_cvt_pk_bf16_f32 v{t+2*ii+1}, v{c+2}, v{c+3}")
                swap_store(t, 5, 20, "s37", 64*ip)
            a(f"s_add_u32 s37, s37, {16*FH*2}")
    else:
        a.srd(16, 4, 17*MB); a.srd(20, 24, S*D*2)
        Z = TOP; G = Z + 16; T = FR[0]
        a(f"""s_lshl_b32 s41, s28, 6
        s_lshl_b32 s42, s36, 5
        s_add_u32 s41, s41, s42
        v_add_u32 v6, s41, v3
        v_lshlrev_b32 v5, 11, v6
        v_lshl_add_u32 v5, v4, 4, v5
        s_lshl_b32 s37, s29, 8
        s_lshl_b32 s41, s35, 7
        s_add_u32 s37, s37, s41
        v_lshlrev_b32 v6, 5, v4
        s_lshl_b32 s41, s37, 1
        s_add_u32 s41, s41, {WS_MOD + 5*4096}""")
        for n in range(4): a(f"buffer_load_dwordx4 {Q(G+4*n)}, v6, s[16:19], s41 offen offset:{128*(n>>1)+16*(n&1)}")
        for ts in range(2):
            a(f"s_add_u32 s41, s37, {WS_X1 + ts*16*2048}")
            for ip in range(2): a(f"buffer_load_dwordx4 {Q(Z+8*ts+4*ip)}, v5, s[16:19], s41 offen offset:{64*ip}")
        for m in mfmas(1): a(m)
        a("s_waitcnt vmcnt(4)")
        rnd_bf16(a, list(range(G, G+16)), 7)
        for ts in range(2):
            for ip in range(2):
                c0 = acc(2*ip, ts); c1 = acc(2*ip+1, ts); n = 2*ts+ip; t = T + 8 + 4*n
                for j in range(4): a(f"v_permlane32_swap_b32 v{c0+j}, v{c1+j}")
                for j in range(4): a(f"v_permlane16_swap_b32 v{c0+j}, v{c1+j}")
                a("s_waitcnt vmcnt(3)")
                for ii, c in enumerate((c0, c1)):
                    for hf in (0, 2):
                        unpack(a, T+hf, T+hf+1, Z+4*n+2*ii+hf//2)
                    for hf in (0, 2): a(f"v_pk_fma_f32 {P(c+hf)}, {P(c+hf)}, {P(G+8*ip+4*ii+hf)}, {P(T+hf)}")
                    a(f"v_cvt_pk_bf16_f32 v{t+2*ii}, v{c}, v{c+1}\nv_cvt_pk_bf16_f32 v{t+2*ii+1}, v{c+2}, v{c+3}")
                a(f"buffer_store_dwordx4 {Q(t)}, v5, s[20:23], s37 offen offset:{64*ip}")
            a(f"s_add_u32 s37, s37, {16*2048}")
    a(f"s_branch {L}_end")
    a(f"{L}_load:\ns_sub_u32 s30, s30, 4")
    if which == 1: a.srd(8, 6, D*F*2); a.srd(12, 4, S*D*2, WS_H2)
    elif which == 2: a.srd(8, 4, S*FH*2, WS_Z2); a.srd(12, 6, S*S*2)
    else: a.srd(8, 6, FH*D*2); a.srd(12, 4, S*FH*2, WS_P)
    NYI = MY//32
    a(f"""s_lshl_b32 s35, s30, 4
    v_add_u32 v5, s35, v4
    s_mov_b32 s36, {ldx2}
    v_mul_lo_u32 v5, v5, s36
    s_lshl_b32 s36, s29, 8
    v_add_u32 v5, s36, v5
    v_lshlrev_b32 v6, 1, v4
    v_xor_b32 v6, v6, v3""")
    for i in range(4):
        a(f"v_xor_b32 v7, {8*(i>>1)}, v6\nv_lshl_add_u32 v7, v7, 4, v5\nv_add_u32 v{8+i}, {i*4*ldx2}, v7")
        if NX == 2: a(f"v_add_u32 v{12+i}, {FH*2}, v{8+i}")
    a(f"""s_mul_i32 s35, s28, {MY}
    s_mul_i32 s36, s30, {8*NYI}
    s_add_u32 s35, s35, s36
    v_lshrrev_b32 v5, 3, v2
    v_add_u32 v5, s35, v5
    s_mov_b32 s36, {ldy2}
    v_mul_lo_u32 v5, v5, s36
    v_and_b32 v6, 7, v2
    v_xor_b32 v6, v6, v4""")
    for i in range(NYI):
        a(f"v_xor_b32 v7, {4*(i&1)}, v6\nv_lshl_add_u32 v7, v7, 4, v5\nv_add_u32 v{16+i}, {i*8*ldy2}, v7")
    a(f"""s_mov_b32 s37, 0
    s_mov_b32 s38, 0
    s_lshl_b32 s39, s30, 12
    s_mul_i32 s40, s30, {1024*NYI}
    s_add_u32 s40, s40, {YB}
    s_mov_b32 s41, 0""")
    per = 4*NX + NYI
    def issue():
        a("s_add_u32 s42, s39, s41\ns_add_u32 s43, s40, s41")
        for i in range(4):
            if i < NYI: a(f"s_add_u32 m0, s43, {1024*i}\nbuffer_load_dwordx4 v{16+i}, s[12:15], s38 offen lds")
            for sub in range(NX): a(f"s_add_u32 m0, s42, {sub*16384+1024*i}\nbuffer_load_dwordx4 v{8+4*sub+i}, s[8:11], s37 offen lds")
        a(f"s_add_u32 s37, s37, {64*ldx2}\ns_add_u32 s38, s38, 128\ns_add_u32 s41, s41, {STG}\ns_cmp_eq_u32 s41, {STG*NS}\ns_cselect_b32 s41, 0, s41")
    for s in range(NS-1): issue()
    a(f"s_mov_b32 s44, {nsteps-(NS-1)}\ns_waitcnt vmcnt({per*(NS-2)})\n{L}_lloop:\ns_barrier")
    issue()
    a(f"s_sub_u32 s44, s44, 1\ns_cmp_lg_u32 s44, 0\ns_waitcnt vmcnt({per*(NS-2)})\ns_cbranch_scc1 {L}_lloop")
    for s in range(NS-1):
        a("s_barrier")
        if s < NS-2: a(f"s_waitcnt vmcnt({per*(NS-3-s)})")
    if which == 1:
        a.srd(16, 4, GRAN_BYTES, WS_GRAN)
        a(f"""s_cmp_ge_u32 s30, 2
        s_cbranch_scc1 {L}_end
        s_lshl_b32 s35, s30, 6
        v_add_u32 v5, s35, v2
        v_lshlrev_b32 v6, 4, v5
        v_lshlrev_b32 v5, 3, v5
        s_mul_i32 s36, s28, {14*1024}
        s_lshl_b32 s37, s29, 10
        s_add_u32 s37, s37, s36
        s_barrier
        ds_read_b128 v[8:11], v6 offset:{RED}
        s_waitcnt lgkmcnt(0)
        v_add_f32 v8, v8, v10
        v_add_f32 v9, v9, v11
        v_cmp_o_f32 vcc, v9, v9
        v_mov_b32 v10, 0x7fc00000
        v_cndmask_b32 v9, v10, v9, vcc
        buffer_store_dwordx2 v[8:9], v5, s[16:19], s37 offen sc0 sc1
        s_mov_b32 s38, 0
        {L}_poll:""")
        for n in range(14):
            if n and n % 4 == 0: a("s_add_u32 s36, s36, 4096")
            a(f"buffer_load_dwordx2 v[{12+2*n}:{13+2*n}], v5, s[16:19], s36 offen offset:{1024*(n&3)} sc0 sc1")
        a("s_sub_u32 s36, s36, 12288\ns_waitcnt vmcnt(0)\nv_max_u32 v8, v13, v15")
        for n in range(2, 14, 2): a(f"v_max3_u32 v8, v8, v{13+2*n}, v{15+2*n}")
        a(f"""v_cmp_eq_u32 vcc, -1, v8
        s_add_u32 s38, s38, 1
        s_cmp_gt_u32 s38, 20000
        s_cbranch_scc1 {L}_go
        s_cbranch_vccnz {L}_poll
        {L}_go:""")
        for n in range(1, 14): a(f"v_pk_add_f32 v[12:13], v[12:13], v[{12+2*n}:{13+2*n}]")
        a(f"""v_mul_f32 v12, {fbits(1/FH)}, v12
        v_mul_f32 v13, {fbits(1/FH)}, v13
        v_fma_f32 v13, -v12, v12, v13
        v_max_f32 v13, 0, v13
        v_add_f32 v13, {fbits(1e-5)}, v13
        v_rsq_f32 v8, v13
        v_mul_f32 v9, -v12, v8
        ds_write_b64 v5, v[8:9] offset:{RED+2048}
        s_waitcnt lgkmcnt(0)
        s_barrier""")
    a(f"s_branch {L}_end")
    if which < 3:
        a(f"{L}_spare:\ns_waitcnt lgkmcnt(0)\ns_sub_u32 s32, s32, 28\ns_lshl_b32 s32, s32, 3\ns_add_u32 s32, s32, s31")
        nb = S*S*2 if which == 1 else FH*D*2
        a.srd(8, 24 if which == 1 else 26, nb)
        per_wg = nb//32; n_it = per_wg//(512*128)
        a(f"s_mul_i32 s33, s32, {per_wg}\nv_lshlrev_b32 v5, 7, v0")
        for i in range(-(-per_wg//(512*128))):
            a(f"buffer_load_dword v{8+i}, v5, s[8:11], s33 offen\ns_add_u32 s33, s33, {512*128}")
    a(f"{L}_end:")
    stamp_end(a, 2+which)
    a(f"{L}_done:\ns_endpgm")
    return a.end(name, {1: 240, 2: 16+64+64+40, 3: 16+32+48+32}[which])

HEADER = """; adaLN-conditioned H3 long-conv block + gMLP block, six launches (generated by the author's gen.py)
"""
def build(diag=False, only=None, **opt):
    global DIAG, OPT
    DIAG = diag; OPT = opt
    a = Asm()
    ks = [k_prep, k_conv, k_row, lambda a: k_gemm(a, 1), lambda a: k_gemm(a, 2), lambda a: k_gemm(a, 3)]
    for i, k in enumerate(ks):
        if only is None or i in only:
            info = k(a)
            if "-v" in sys.argv: print(i, info, file=sys.stderr)
    return a.text(HEADER)
if __name__ == "__main__":
    out = sys.argv[1]
    open(out, "w").write(build(diag="--diag" in sys.argv))
```

```python
import sys, struct
from asmgen import Asm
S, D, F, FH = 2048, 1024, 3584, 1792
MB = 1 << 20
WS_MOD, WS_EPOCH, WS_GRAN, WS_FLAG = 0, 0x8000, 0x10000, 0x50000
WS_KV, WS_Y2, WS_X1, WS_H2, WS_Z2, WS_P, WS_TS = 1*MB, 9*MB, 13*MB, 17*MB, 28*MB, 35*MB, 64*MB
PTR = dict(q=64, k=66, v=68, shift=70, ssmk=72, ssmd=74, win=78, wsp=80, bsp=82, wout=84, c=86, wmod=88, out=90, ws=94)
def fbits(x): return "0x%08x" % struct.unpack("<I", struct.pack("<f", x))[0]
LOG2E = 1.4426950408889634
CH_STRIDE, KVE_OFF, KA_OFF, KB_OFF = 17664, 4576, 9216, 13440
HB = 4*CH_STRIDE
MISC = 147456
LDS_BYTES = 163840
W = "s[8:11]"
P2 = lambda b: f"v[{b}:{b+1}]"
Q4 = lambda b: f"v[{b}:{b+3}]"
NAME = "adaLN_cond__ssm_conv_h3__mixer_gmlp__prompt_kernel"

class G:
    def __init__(s, diag=False, **opt):
        s.a = Asm(); s.diag = diag; s.opt = opt; s.nbar = 0; s.names = {}
    def bar(s, n=1):
        s.a("s_barrier"); s.nbar += n
    def stamp(s, i, name=None):
        if name: s.names[i] = name
        if s.diag: s.a(f"s_memrealtime s[96:97]\ns_waitcnt lgkmcnt(0)\nv_writelane_b32 v255, s96, {i}")
    def unpack(s, lo, hi, src):
        s.a(f"v_lshlrev_b32 v{lo}, 16, v{src}\nv_and_b32 v{hi}, 0xffff0000, v{src}")
    def srd(s, d, name, nbytes): s.a.srd(d, PTR[name], nbytes)
    def set_flag(s, sync, idx_sgpr):
        s.a(f"""s_lshl_b32 s60, {idx_sgpr}, 7
        s_add_u32 s60, s60, {WS_FLAG + sync*32768}
        v_mov_b32 v250, s6
        v_mov_b32 v251, 0
        s_mov_b64 exec, 1
        buffer_store_dword v250, v251, {W}, s60 offen sc1
        s_mov_b64 exec, -1""")
    def poll(s, sync, first_sgpr, cnt):
        a = s.a; l = a.label("L_poll"); go = a.label("L_go")
        if first_sgpr is None: a(f"s_mov_b32 s60, {WS_FLAG + sync*32768}")
        else: a(f"s_lshl_b32 s60, {first_sgpr}, 7\ns_add_u32 s60, s60, {WS_FLAG + sync*32768}")
        a(f"v_min_u32 v250, {min(cnt, 64)-1}, v2\nv_lshlrev_b32 v250, 7, v250\ns_mov_b32 s61, 0\n{l}:")
        nl = -(-cnt//64)
        for q in range(nl):
            if q: a(f"s_add_u32 s62, s60, {q*8192}")
            a(f"buffer_load_dword v{251+q}, v250, {W}, {'s62' if q else 's60'} offen sc1")
        a(f"s_add_u32 s61, s61, 1\ns_cmp_gt_u32 s61, 30000\ns_cbranch_scc1 {go}\ns_waitcnt vmcnt(0)")
        for q in range(nl): a(f"v_xor_b32 v{251+q}, s6, v{251+q}")
        if nl == 4: a("v_or3_b32 v251, v251, v252, v253\nv_or_b32 v251, v251, v254")
        a(f"v_cmp_ne_u32 vcc, 0, v251\ns_cbranch_vccnz {l}\n{go}:\ns_waitcnt vmcnt(0)")
    def only_wave(s, w):
        l = s.a.label("L_skip"); s.a(f"s_cmp_lg_u32 s3, {w}\ns_cbranch_scc1 {l}"); return l

    def prep_conv_A(s):
        a = s.a
        a("""s_lshr_b32 s32, s5, 4
        s_lshl_b32 s30, s4, 1
        s_add_u32 s32, s32, s30
        s_and_b32 s33, s5, 15
        v_lshrrev_b32 v5, 4, v0
        v_lshlrev_b32 v5, 3, v5
        s_lshl_b32 s34, s33, 7
        v_add_u32 v5, s34, v5         ; s0
        s_lshl_b32 s35, s32, 6
        v_lshl_add_u32 v6, v3, 2, s35 ; ch
        v_lshlrev_b32 v7, 11, v5
        v_lshl_add_u32 v7, v6, 1, v7
        s_waitcnt lgkmcnt(0)""")
        a.srd(8, PTR["ws"], 128*MB)
        s.srd(12, "k", S*D*2); s.srd(16, "v", S*D*2); s.srd(20, "shift", D*8); s.srd(24, "ssmd", D*2)
        KR, VR, SH = 20, 44, 64
        for r in range(11): a(f"v_add_u32 v{8+r}, {(r-3)*2048 & 0xffffffff}, v7")
        a(f"v_lshlrev_b32 v1, 3, v6\nbuffer_load_dwordx4 {Q4(SH)}, v1, s[20:23], 0 offen\nbuffer_load_dwordx4 {Q4(SH+4)}, v1, s[20:23], 0 offen offset:16")
        for r in range(11):
            a(f"buffer_load_dwordx2 {P2(KR+2*r)}, v{8+r}, s[12:15], 0 offen nt")
            if r >= 3: a(f"buffer_load_dwordx2 {P2(VR+2*(r-3))}, v{8+r}, s[16:19], 0 offen nt")
        a("s_lshl_b32 s33, s7, 2\ns_add_u32 s33, s33, s3\ns_lshl_b32 s37, s33, 1\nv_mov_b32 v1, s37\nbuffer_load_ushort v190, v1, s[24:27], 0 offen")
        s.stamp(1, "kv loads issued")
        s.bar()
        SF, KF, VF = 72, 88, 136
        a("s_waitcnt vmcnt(20)")
        for e in range(4):
            for hf in range(2): s.unpack(SF + (2*hf)*4 + e, SF + (2*hf+1)*4 + e, SH + 2*e + hf)
        cnt = 19
        for r in range(11):
            cnt -= 1 if r < 3 else 2
            a(f"s_waitcnt vmcnt({cnt + 1})")
            for hf in range(2): s.unpack(KF + 4*r + 2*hf, KF + 4*r + 2*hf + 1, KR + 2*r + hf)
            if r >= 3:
                o = r - 3
                for hf in range(2): s.unpack(VF + 4*o + 2*hf, VF + 4*o + 2*hf + 1, VR + 2*o + hf)
                for hf in range(2):
                    t = 8 + 2*hf; pr = lambda b: P2(b+2*hf)
                    a(f"v_pk_mul_f32 {P2(t)}, {pr(KF+4*(r-3))}, {pr(SF+12)}")
                    for j in (2, 1, 0): a(f"v_pk_fma_f32 {P2(t)}, {pr(KF+4*(r-j))}, {pr(SF+4*j)}, {P2(t)}")
                    a(f"v_pk_mul_f32 {pr(VF+4*o)}, {P2(t)}, {pr(VF+4*o)}")
        s.stamp(2, "kv computed")
        a(f"v_sub_u32 v1, 2040, v5\nv_lshlrev_b32 v1, 1, v1\nv_lshl_add_u32 v1, v6, 12, v1")
        for e in range(4):
            t = 20 + 4*e
            for d in range(4): a(f"v_cvt_pk_bf16_f32 v{t+d}, v{VF+4*(7-2*d)+e}, v{VF+4*(6-2*d)+e}")
            a(f"s_mov_b32 s30, {WS_KV + e*4096}\nbuffer_store_dwordx4 {Q4(t)}, v1, {W}, s30 offen sc1")
        a(f"""s_mul_i32 s34, s3, {CH_STRIDE}
        v_and_b32 v10, 1, v3
        v_xor_b32 v11, 1, v10
        v_mul_u32_u24 v11, {KVE_OFF}, v11
        v_lshrrev_b32 v16, 1, v3
        v_sub_u32 v16, 7, v16
        v_lshlrev_b32 v16, 6, v16
        v_lshl_add_u32 v16, v4, 4, v16
        v_add3_u32 v16, v16, v11, s34
        v_mul_u32_u24 v11, {KB_OFF - KA_OFF - 4}, v10
        v_sub_u32 v11, {KB_OFF}, v11
        v_lshl_add_u32 v11, v3, 2, v11
        v_lshl_add_u32 v11, v4, 4, v11
        v_add_u32 v17, s34, v11
        v_lshlrev_b32 v10, 2, v4
        v_add_u32 v10, v10, v3
        v_sub_u32 v10, 15, v10
        v_lshlrev_b32 v5, 4, v2
        s_lshl_b32 s35, s33, 12
        s_add_u32 s35, s35, {WS_KV}
        v_mov_b32 v18, s34
        v_mov_b32 v19, 0
        s_waitcnt vmcnt(0)""")
        for w in range(4): a(f"v_cmp_eq_u32 vcc, {w}, v10\nv_cndmask_b32 v{12+w}, 0, v190, vcc")
        s.stamp(3, "kv stored")
        s.bar(); s.bar()
        s.stamp(4, "sync1 released")
        for i in range(4):
            a(f"s_add_u32 m0, s34, {1024*i}\ns_add_u32 s37, s35, {1024*i}\nbuffer_load_dwordx4 v5, {W}, s37 offen sc1 lds")
            a(f"s_add_u32 m0, s34, {KVE_OFF+1024*i}\ns_add_u32 s37, s35, {2+1024*i}\nbuffer_load_dwordx4 v5, {W}, s37 offen sc1 lds")
        s.load_x()
        s.bar()
        ACC, SET = 24, [56, 120]
        def reads(st, mu):
            out = []
            for n in range(8):
                b = SET[st] + 32 + 4*n
                out.append(f"ds_read_b128 {Q4(SET[st]+4*n)}, v16 offset:{512*(7-n)+64*mu}")
                out.append(f"ds_read_b64 {P2(b)}, v17 offset:{512*n+64*mu}")
                out.append(f"ds_read_b64 {P2(b+2)}, v17 offset:{512*n+64*mu+8}")
            return out
        a(f"s_waitcnt vmcnt(4)\nds_write_b16 v18, v19 offset:{KVE_OFF+4094}")
        s.stamp(5, "kv in lds")
        for r in reads(0, 0): a(r)
        for mu in range(8):
            st = mu & 1
            nxt = reads(1-st, mu+1) if mu < 7 else []
            a("s_waitcnt lgkmcnt(0)")
            ms = []
            if mu == 0:
                for t in range(8): ms.append(f"v_mfma_f32_16x16x32_bf16 {Q4(ACC+4*t)}, {Q4(SET[0]+4*t)}, v[12:15], 0")
            for j in range(8):
                for i in range(8-j):
                    t = i+j
                    ms.append(f"v_mfma_f32_16x16x32_bf16 {Q4(ACC+4*t)}, {Q4(SET[st]+4*i)}, {Q4(SET[st]+32+4*j)}, {Q4(ACC+4*t)}")
            for n, m in enumerate(ms):
                a(m)
                if n < len(nxt): a(nxt[n])
        s.stamp(6, "conv mfma done")
        a(f"s_mul_i32 s37, s3, {CH_STRIDE + 64}\nv_lshlrev_b32 v10, 2, v3\nv_lshl_add_u32 v10, v4, 7, v10\nv_add_u32 v10, s37, v10")
        for t in range(8):
            for jp in range(2):
                r = 56 + 2*t + jp
                a(f"v_cvt_pk_bf16_f32 v{r}, v{ACC+4*t+2*jp}, v{ACC+4*t+2*jp+1}\nds_write_b32 v10, v{r} offset:{512*t+64*jp}")
        a(f"""v_and_b32 v11, 3, v2
        v_lshrrev_b32 v12, 2, v2
        v_mul_u32_u24 v13, {CH_STRIDE + 64}, v11
        v_lshl_add_u32 v13, v12, 4, v13
        s_lshl_b32 s37, s3, 10
        v_add_u32 v13, s37, v13
        s_lshl_b32 s37, s7, 2
        v_add_u32 v11, s37, v11
        v_lshlrev_b32 v11, 4, v11
        v_lshl_add_u32 v11, v12, 14, v11
        s_lshl_b32 s37, s3, 20
        s_add_u32 s37, s37, {WS_Y2}
        s_waitcnt lgkmcnt(0)""")
        s.bar()
        s.stamp(7, "bar4")
        for q in range(4): a(f"ds_read_b128 {Q4(72+4*q)}, v13 offset:{256*q}")
        for q in range(4):
            a(f"s_waitcnt lgkmcnt({3-q})\nbuffer_store_dwordx4 {Q4(72+4*q)}, v11, {W}, s37 offen sc1\ns_add_u32 s37, s37, {16*16384}")
        a("s_waitcnt vmcnt(0)")
        s.stamp(8, "y stored")
        s.bar()

    XR = 184
    def load_x(s):
        a = s.a
        s.srd(24, "q", S*D*2)
        a("v_and_b32 v1, 255, v0\nv_lshlrev_b32 v1, 3, v1\ns_lshl_b32 s38, s7, 14\ns_lshr_b32 s39, s3, 2\ns_lshl_b32 s39, s39, 13\ns_add_u32 s38, s38, s39")
        for r in range(2):
            a(f"buffer_load_dwordx2 {P2(s.XR+4*r)}, v1, s[24:27], s38 offen nt\nbuffer_load_dwordx2 {P2(s.XR+4*r+2)}, v1, s[24:27], s38 offen offset:2048 nt")
            if r == 0: a("s_add_u32 s38, s38, 4096")

    def prep_conv_B(s):
        a = s.a
        a("s_waitcnt lgkmcnt(0)")
        a.srd(8, PTR["ws"], 128*MB)
        a(f"s_load_dword s6, s[94:95], {WS_EPOCH}")
        s.srd(12, "ssmk", D*S*2); s.srd(16, "wmod", D*6*D*2); s.srd(20, "c", D*2)
        a(f"""s_sub_u32 s30, s3, 4
        s_lshl_b32 s33, s7, 2
        s_add_u32 s33, s33, s30
        s_mul_i32 s34, s30, {CH_STRIDE}
        s_lshl_b32 s36, s33, 12
        v_lshlrev_b32 v5, 4, v2
        v_mov_b32 v6, s36
        v_and_b32 v10, 31, v2
        v_min_u32 v10, 27, v10
        v_lshlrev_b32 v10, 4, v10
        v_lshrrev_b32 v11, 5, v2
        v_mul_u32_u24 v11, {KVE_OFF}, v11
        v_add3_u32 v10, v10, v11, s34
        v_mov_b32 v12, 0
        v_mov_b32 v13, 0
        v_mov_b32 v14, 0
        v_mov_b32 v15, 0
        ds_write_b128 v10, v[12:15] offset:4096
        v_and_b32 v10, 1, v4
        v_mul_u32_u24 v10, {KB_OFF - KA_OFF}, v10
        v_lshl_add_u32 v10, v3, 2, v10
        v_add_u32 v10, s34, v10
        v_and_b32 v11, 31, v2""")
        s.bar()
        a("buffer_load_dword v8, v6, s[12:15], 0 offen")
        for i in range(4):
            a(f"s_add_u32 m0, s34, {KA_OFF+64+1024*i}\ns_add_u32 s37, s36, {1024*i}\nbuffer_load_dwordx4 v5, s[12:15], s37 offen nt lds")
            a(f"s_add_u32 m0, s34, {KB_OFF+64+1024*i}\ns_add_u32 s37, s36, {4+1024*i}\nbuffer_load_dwordx4 v5, s[12:15], s37 offen nt lds")
        l = s.only_wave(4)
        a(f"s_cmp_ge_u32 s2, 96\ns_cbranch_scc1 {l}\ns_lshl_b32 s37, s2, 8\nv_lshlrev_b32 v16, 2, v2\nbuffer_store_dword v12, v16, {W}, s37 offen sc1\n{l}:")
        l = s.only_wave(5)
        a(f"s_cmp_ge_u32 s5, 28\ns_cbranch_scc1 {l}\ns_mul_i32 s37, s58, 14\ns_add_u32 s37, s37, s59\ns_lshl_b32 s37, s37, 10\ns_add_u32 s37, s37, {WS_GRAN}")
        for j in range(4): a(f"v_mov_b32 v{16+j}, -1")
        a(f"buffer_store_dwordx4 v[16:19], v5, {W}, s37 offen sc1\n{l}:")
        a(f"""v_cmp_eq_u32 vcc, 31, v11
        s_waitcnt vmcnt(0)
        v_cndmask_b32 v8, 0, v8, vcc
        ds_write_b32 v10, v8 offset:{KA_OFF}
        s_waitcnt lgkmcnt(0)
        s_add_u32 s6, s6, 1""")
        s.stamp(3, None)
        s.bar()
        l = s.only_wave(4)
        s.set_flag(0, "s7")
        a("s_andn2_b32 s37, s7, 15")
        s.poll(0, "s37", 16)
        a(f"{l}:")
        s.bar()
        a(f"""s_mul_i32 s33, s2, 3
        s_add_u32 s33, s33, s30
        s_mul_i32 s34, s33, 683
        s_lshr_b32 s34, s34, 16
        s_mul_i32 s35, s34, 96
        s_sub_u32 s35, s33, s35
        s_lshl_b32 s36, s34, 8
        v_lshl_add_u32 v9, v2, 2, s36
        s_mul_i32 s36, s34, {128*12288}
        s_lshl_b32 s37, s35, 7
        s_add_u32 s36, s36, s37
        v_lshrrev_b32 v5, 3, v2
        v_mul_u32_u24 v5, 12288, v5
        v_and_b32 v6, 7, v2
        v_and_b32 v7, 1, v4
        v_lshlrev_b32 v7, 1, v7
        v_xor_b32 v6, v6, v7
        v_lshl_add_u32 v5, v6, 4, v5
        v_xor_b32 v6, 64, v5
        s_lshl_b32 s40, s30, 14
        s_add_u32 s40, s40, {HB}""")
        s.bar()
        a("s_cmp_eq_u32 s3, 7\ns_cbranch_scc1 L_nogemv\nbuffer_load_dword v8, v9, s[20:23], 0 offen")
        for i in range(16):
            a(f"s_add_u32 m0, s40, {1024*i}\nbuffer_load_dwordx4 v{5+(i&1)}, s[16:19], s36 offen nt lds\ns_add_u32 s36, s36, {8*12288}")
        s.load_x()
        a(f"""s_waitcnt vmcnt(20)
        v_lshlrev_b32 v10, 16, v8
        v_and_b32 v11, 0xffff0000, v8
        v_mul_f32 v12, {fbits(-LOG2E)}, v10
        v_mul_f32 v13, {fbits(-LOG2E)}, v11
        v_exp_f32 v12, v12
        v_exp_f32 v13, v13
        v_add_f32 v12, 1.0, v12
        v_add_f32 v13, 1.0, v13
        v_rcp_f32 v12, v12
        v_rcp_f32 v13, v13
        v_mul_f32 v10, v10, v12
        v_mul_f32 v11, v11, v13
        v_cvt_pk_bf16_f32 v10, v10, v11
        s_lshl_b32 s41, s30, 8
        s_add_u32 s41, s41, {HB + 3*16384}
        v_lshl_add_u32 v11, v2, 2, s41
        ds_write_b32 v11, v10
        v_lshl_add_u32 v11, v4, 4, s41
        s_waitcnt lgkmcnt(0)""")
        for kk in range(4): a(f"ds_read_b128 {Q4(24+4*kk)}, v11 offset:{64*kk}")
        a(f"""v_bfe_u32 v12, v2, 2, 2
        v_and_b32 v13, 3, v2
        v_lshl_add_u32 v14, v4, 3, v12
        v_lshlrev_b32 v14, 7, v14
        v_lshl_add_u32 v14, v13, 3, v14
        v_add_u32 v14, s40, v14
        v_lshrrev_b32 v12, 1, v12
        v_and_b32 v13, 1, v4
        v_lshl_or_b32 v12, v13, 1, v12""")
        for u in range(4): a(f"v_xor_b32 v13, {u}, v12\nv_lshl_add_u32 v{16+u}, v13, 5, v14")
        a("s_and_b32 s41, s35, 7\ns_lshl_b32 s41, s41, 5\ns_lshr_b32 s42, s35, 3\ns_add_u32 s41, s41, s42")
        s.poll(0, "s41", 1)
        s.stamp(6, None)
        for kk in range(4):
            for u in range(4):
                b = 56 + 16*kk + 4*u
                a(f"ds_read_b64_tr_b16 {P2(b)}, v{16+u} offset:{4096*kk}\nds_read_b64_tr_b16 {P2(b+2)}, v{16+u} offset:{4096*kk+512}")
            a("s_waitcnt lgkmcnt(0)")
            for u in range(4):
                a(f"v_mfma_f32_16x16x32_bf16 {Q4(40+4*u)}, {Q4(24+4*kk)}, {Q4(56+16*kk+4*u)}, " + (Q4(40+4*u) if kk else "0"))
        for u in range(1, 4): a(f"v_cmp_eq_u32 vcc, {u}, v4\nv_cndmask_b32 v40, v40, v{40+4*u}, vcc")
        a(f"""s_lshl_b32 s35, s35, 8
        v_lshl_add_u32 v5, v2, 2, s35
        buffer_atomic_add_f32 v40, v5, {W}, 0 offen
        s_branch L_gemvdone
        L_nogemv:""")
        s.load_x()
        a("L_gemvdone:")
        s.bar()
        a("s_waitcnt vmcnt(0)")
        s.stamp(8, None)
        s.bar()
        l = s.only_wave(4); s.set_flag(1, "s2"); a(f"{l}:")
        s.srd(12, "win", D*F*2)
        a("s_mul_i32 s33, s2, 28672\ns_mul_i32 s34, s30, 7168\ns_add_u32 s33, s33, s34\nv_min_u32 v6, 55, v2\nv_lshlrev_b32 v6, 7, v6\nbuffer_load_dword v100, v6, s[12:15], s33 offen")

    def row(s, isB):
        a = s.a; XR = s.XR
        YR, MODV, XF, XN, YF, T = 8, 16, 40, 56, 72, 88
        def stats(src, off):
            for r in range(4):
                x = src + 4*r
                a(f"""v_pk_add_f32 {P2(T+8)}, {P2(x)}, {P2(x+2)}
                v_pk_mul_f32 {P2(T+10)}, {P2(x)}, {P2(x)}
                v_pk_fma_f32 {P2(T+10)}, {P2(x+2)}, {P2(x+2)}, {P2(T+10)}
                v_add_f32 v{T+r}, v{T+8}, v{T+9}
                v_add_f32 v{T+4+r}, v{T+10}, v{T+11}""")
            for p in range(4): a(f"v_permlane32_swap_b32 v{T+2*p}, v{T+2*p+1}")
            for p in range(4): a(f"v_add_f32 v{T+2*p}, v{T+2*p}, v{T+2*p+1}")
            for p in range(2): a(f"v_permlane16_swap_b32 v{T+4*p}, v{T+4*p+2}")
            for p in range(2): a(f"v_add_f32 v{T+4*p}, v{T+4*p}, v{T+4*p+2}")
            for sh in (8, 4, 2, 1):
                for p in range(2): a(f"v_add_f32_dpp v{T+4*p}, v{T+4*p}, v{T+4*p} row_ror:{sh} row_mask:0xf bank_mask:0xf")
            for p in range(2): a(f"ds_write_b32 v36, v{T+4*p} offset:{off + p*16}")
            a("s_waitcnt lgkmcnt(0)")
            s.bar()
            a(f"""ds_read_b128 {Q4(T)}, v37 offset:{off}
            ds_read_b128 {Q4(T+4)}, v37 offset:{off+16}
            s_waitcnt lgkmcnt(0)
            v_pk_add_f32 {P2(T)}, {P2(T)}, {P2(T+2)}
            v_pk_add_f32 {P2(T+4)}, {P2(T+4)}, {P2(T+6)}
            v_add_f32 v{T}, v{T}, v{T+1}
            v_add_f32 v{T+4}, v{T+4}, v{T+5}
            v_mul_f32 v{T}, {fbits(-1/1024)}, v{T}
            v_mul_f32 v{T+4}, {fbits(1/1024)}, v{T+4}
            v_fma_f32 v{T+4}, -v{T}, v{T}, v{T+4}
            v_max_f32 v{T+4}, 0, v{T+4}
            v_add_f32 v{T+4}, {fbits(1e-5)}, v{T+4}
            v_rsq_f32 v{T+4}, v{T+4}""")
            for r in range(4): a(f"v_readlane_b32 s{40+2*r}, v{T}, {r}\nv_readlane_b32 s{41+2*r}, v{T+4}, {r}")
        def normalise(dst, src):
            for r in range(4):
                for hf in (0, 2): a(f"v_pk_add_f32 {P2(dst+4*r+hf)}, {P2(src+4*r+hf)}, s[{40+2*r}:{41+2*r}] op_sel_hi:[1,0]")
            for r in range(4):
                for hf in (0, 2): a(f"v_pk_mul_f32 {P2(dst+4*r+hf)}, {P2(dst+4*r+hf)}, s[{40+2*r}:{41+2*r}] op_sel:[0,1] op_sel_hi:[1,1]")
        a(f"""s_lshr_b32 s39, s3, 2
        s_lshl_b32 s38, s39, 7
        s_add_u32 s38, s38, {MISC}
        s_and_b32 s37, s3, 3
        s_lshl_b32 s37, s37, 2
        s_add_u32 s37, s37, s38
        v_and_b32 v36, 1, v4
        v_lshrrev_b32 v37, 1, v4
        v_lshl_or_b32 v36, v36, 1, v37
        v_lshl_add_u32 v36, v36, 5, s37
        v_and_b32 v37, 3, v2
        v_lshl_add_u32 v37, v37, 5, s38
        v_and_b32 v38, 255, v0
        v_lshlrev_b32 v1, 3, v38
        v_lshlrev_b32 v39, 4, v38
        v_lshlrev_b32 v38, 6, v38
        s_lshl_b32 s32, s7, 14
        s_lshl_b32 s33, s39, 3
        s_add_u32 s33, s33, s32
        s_add_u32 s33, s33, {WS_Y2}
        s_lshl_b32 s34, s39, 13
        s_add_u32 s32, s32, s34""")
        for r in range(4):
            for hf in range(2): s.unpack(XF+4*r+2*hf, XF+4*r+2*hf+1, XR+2*r+hf)
        stats(XF, 0)
        normalise(XN, XF)
        if isB:
            l = s.only_wave(4); s.poll(1, None, 256)
            a(f"s_cmp_lg_u32 s2, 0\ns_cbranch_scc1 {l}\nv_mov_b32 v250, s6\nv_mov_b32 v251, {WS_EPOCH}\ns_mov_b64 exec, 1\nbuffer_store_dword v250, v251, {W}, 0 offen sc1\ns_mov_b64 exec, -1\n{l}:")
        s.stamp(9, "ln1 done / poll2 done")
        s.bar()
        s.stamp(10, "sync2 released")
        for m in range(5): a(f"s_mov_b32 s35, {WS_MOD + 4096*m}\nbuffer_load_dwordx4 {Q4(MODV+4*m)}, v39, {W}, s35 offen sc1")
        for e in range(4): a(f"buffer_load_dwordx2 {P2(YR+2*e)}, v38, {W}, s33 offen offset:{16*e} sc1")
        a("s_waitcnt vmcnt(4)")
        for m in (1, 4):
            for hf in (0, 2): a(f"v_pk_add_f32 {P2(MODV+4*m+hf)}, {P2(MODV+4*m+hf)}, 1.0 op_sel_hi:[1,0]")
        for r in range(4):
            for hf in (0, 2): a(f"v_pk_fma_f32 {P2(XN+4*r+hf)}, {P2(XN+4*r+hf)}, {P2(MODV+4+hf)}, {P2(MODV+hf)}")
        for r in range(4):
            for hf in (0, 2): a(f"v_pk_mul_f32 {P2(XN+4*r+hf)}, {P2(XN+4*r+hf)}, {P2(MODV+8+hf)}")
        for e in range(4):
            a(f"s_waitcnt vmcnt({3-e})")
            for q in range(2): s.unpack(YF+4*(2*q)+e, YF+4*(2*q+1)+e, YR+2*e+q)
        s.stamp(11, "y landed")
        for r in range(4):
            for hf in (0, 2): a(f"v_pk_fma_f32 {P2(XF+4*r+hf)}, {P2(XN+4*r+hf)}, {P2(YF+4*r+hf)}, {P2(XF+4*r+hf)}")
        a(f"s_add_u32 s35, s32, {WS_X1}")
        for r in range(4):
            for hf in range(2): a(f"v_cvt_pk_bf16_f32 v{XR+2*r+hf}, v{XF+4*r+2*hf}, v{XF+4*r+2*hf+1}")
            if r == 2: a("s_add_u32 s35, s35, 4096")
            a(f"buffer_store_dwordx2 {P2(XR+2*r)}, v1, {W}, s35 offen offset:{2048*(r&1)} sc1")
        stats(XF, 256)
        normalise(XN, XF)
        a(f"s_add_u32 s35, s32, {WS_H2}")
        for r in range(4):
            for hf in (0, 2): a(f"v_pk_fma_f32 {P2(XN+4*r+hf)}, {P2(XN+4*r+hf)}, {P2(MODV+16+hf)}, {P2(MODV+12+hf)}")
            for hf in range(2): a(f"v_cvt_pk_bf16_f32 v{YR+2*r+hf}, v{XN+4*r+2*hf}, v{XN+4*r+2*hf+1}")
            if r == 2: a("s_add_u32 s35, s35, 4096")
            a(f"buffer_store_dwordx2 {P2(YR+2*r)}, v1, {W}, s35 offen offset:{2048*(r&1)} sc1")
        s.stamp(12, "h2 issued")
        a("s_waitcnt vmcnt(0)")
        s.stamp(13, "h2 stored")
        s.bar()
        if isB:
            l = s.only_wave(4); s.set_flag(2, "s7"); a(f"{l}:")

    CFG = {1: dict(NX=2, MY=128, K=1024, NS=3, rot=0, ldx2=F*2, ldy2=D*2), 2: dict(NX=1, MY=128, K=2048, NS=4, rot=1, ldx2=FH*2, ldy2=S*2),
           3: dict(NX=1, MY=64, K=1792, NS=6, rot=2, ldx2=D*2, ldy2=FH*2)}
    Z1 = 208
    def gemm_A(s, which):
        a = s.a; c = s.CFG[which]; NX, MY, NS, rot = c["NX"], c["MY"], c["NS"], c["rot"]; L = f"L_g{which}"
        NYT = MY//32; NXT = 4*NX; nsteps = c["K"]//64; STG = NX*16384 + MY*128; YB = NX*16384
        sm, sn = ("s58", "s59") if which < 3 else ("s56", "s57")
        ACC = 16; nacc = NXT*NYT*4
        FR = [ACC + nacc, ACC + nacc + 4*(NXT+NYT)]; TOP = FR[1] + 4*(NXT+NYT)
        acc = lambda x, ts: ACC + 4*(x*NYT + ts)
        a(f"""s_and_b32 s35, s3, 1
        s_lshr_b32 s36, s3, 1
        v_bfe_u32 v5, v2, 2, 2
        v_and_b32 v6, 3, v2
        v_lshl_add_u32 v7, v4, 3, v5
        v_lshlrev_b32 v7, 8, v7
        v_lshl_add_u32 v7, v6, 3, v7
        v_and_b32 v6, 1, v4
        v_xor_b32 v6, s35, v6
        v_lshl_add_u32 v7, v6, 7, v7
        v_add_u32 v7, {rot*STG}, v7""")
        for i in range(4): a(f"v_xor_b32 v6, {i}, v5\nv_lshl_add_u32 v{8+i}, v6, 5, v7")
        a(f"""s_mul_i32 s37, s36, {MY//2*128}
        s_add_u32 s37, s37, {rot*STG}
        v_lshrrev_b32 v5, 1, v3
        v_xor_b32 v5, v5, v4
        v_lshlrev_b32 v5, 4, v5
        v_lshl_add_u32 v5, v3, 7, v5
        v_xor_b32 v6, 64, v5
        v_add_u32 v12, s37, v5
        v_add_u32 v13, s37, v6
        s_mov_b32 s38, {rot}
        s_mov_b32 s48, {STG}
        s_mov_b32 s39, 1""")
        def reads(ks):
            o = []; f = FR[ks]
            for n in range(max(NXT, NYT)):
                if n < NYT: o.append(f"ds_read_b128 {Q4(f+4*(NXT+n))}, v{12+ks} offset:{YB+2048*n}")
                if n < NXT:
                    off = (n>>2)*16384 + ks*8192
                    o.append(f"ds_read_b64_tr_b16 {P2(f+4*n)}, v{8+(n&3)} offset:{off}")
                    o.append(f"ds_read_b64_tr_b16 {P2(f+4*n+2)}, v{8+(n&3)} offset:{off+1024}")
            return o
        def mfmas(ks, first=False, order=None):
            f = FR[ks]; o = []
            for x in (order or range(NXT)):
                for ts in range(NYT):
                    cc = acc(x, ts)
                    o.append(f"v_mfma_f32_16x16x32_bf16 {Q4(cc)}, {Q4(f+4*x)}, {Q4(f+4*(NXT+ts))}, " + ("0" if first else Q4(cc)))
            return o
        def inter(ms, rs, extra=()):
            rs = list(rs); per = -(-len(rs)//max(1, (len(ms)*5)//8)); ex = list(extra)
            for m in ms:
                a(m)
                for _ in range(per):
                    if rs: a(rs.pop(0))
                if not rs and ex: a(ex.pop(0))
            for r in rs + ex: a(r)
        adv = [f"v_add_u32 v{8+i}, s40, v{8+i}" for i in range(6)]
        def stage_delta():
            a(f"s_add_u32 s38, s38, 1\ns_cmp_eq_u32 s38, {NS}\ns_cselect_b32 s40, {(-(NS-1)*STG) & 0xffffffff}, s48\ns_cselect_b32 s38, 0, s38")
        s.bar()
        s.stamp(14+8*(which-1), f"g{which} released")
        s.bar(); s.stamp(15+8*(which-1), f"g{which} first stage"); stage_delta()
        for r in reads(0): a(r)
        a("s_waitcnt lgkmcnt(0)")
        inter(mfmas(0, True), reads(1), adv)
        a(f"s_waitcnt lgkmcnt(0)\n{L}_cloop:"); s.bar(nsteps-1)
        inter(mfmas(1), reads(0))
        stage_delta()
        a("s_waitcnt lgkmcnt(0)")
        inter(mfmas(0), reads(1), adv)
        a(f"s_add_u32 s39, s39, 1\ns_cmp_lt_u32 s39, {nsteps}\ns_waitcnt lgkmcnt(0)\ns_cbranch_scc1 {L}_cloop")
        s.stamp(16+8*(which-1), f"g{which} loop done")
        def swap_store(t, voff, srd, soff, imm, fl):
            a(f"""v_permlane32_swap_b32 v{t}, v{t+2}
            v_permlane32_swap_b32 v{t+1}, v{t+3}
            v_permlane16_swap_b32 v{t}, v{t+2}
            v_permlane16_swap_b32 v{t+1}, v{t+3}
            buffer_store_dwordx4 {Q4(t)}, v{voff}, {srd}, {soff} offen offset:{imm} {fl}""")
        T = FR[0]; RED = MISC + 1024
        if which == 1:
            for m in mfmas(1, order=[4, 5, 6, 7, 0, 1, 2, 3]): a(m)
            a(f"v_mov_b32 v14, {fbits(-1.5957691216057308*LOG2E)}\nv_mov_b32 v15, v14\ns_mov_b32 s42, {fbits(-0.07135481282636784*LOG2E)}\ns_mov_b32 s43, s42")
            def gelu4(cc):
                for hf in (0, 2): a(f"v_pk_mul_f32 {P2(T+hf)}, {P2(cc+hf)}, {P2(cc+hf)}")
                for hf in (0, 2): a(f"v_pk_fma_f32 {P2(T+hf)}, {P2(T+hf)}, s[42:43], v[14:15]")
                for hf in (0, 2): a(f"v_pk_mul_f32 {P2(T+hf)}, {P2(T+hf)}, {P2(cc+hf)}")
                for j in range(4): a(f"v_exp_f32 v{T+j}, v{T+j}")
                for hf in (0, 2): a(f"v_pk_add_f32 {P2(T+hf)}, {P2(T+hf)}, 1.0 op_sel_hi:[1,0]")
                for j in range(4): a(f"v_rcp_f32 v{T+j}, v{T+j}")
                for hf in (0, 2): a(f"v_pk_mul_f32 {P2(cc+hf)}, {P2(cc+hf)}, {P2(T+hf)}")
            SU = T + 8
            for i in range(4):
                for ts in range(4):
                    cc = acc(4+i, ts); gelu4(cc)
                    if i == 0: a(f"v_pk_add_f32 {P2(SU+2*ts)}, {P2(cc)}, {P2(cc+2)}\nv_pk_mul_f32 {P2(SU+8+2*ts)}, {P2(cc)}, {P2(cc)}")
                    else: a(f"v_pk_add_f32 {P2(SU+2*ts)}, {P2(SU+2*ts)}, {P2(cc)}\nv_pk_fma_f32 {P2(SU+8+2*ts)}, {P2(cc)}, {P2(cc)}, {P2(SU+8+2*ts)}\nv_pk_add_f32 {P2(SU+2*ts)}, {P2(SU+2*ts)}, {P2(cc+2)}")
                    a(f"v_pk_fma_f32 {P2(SU+8+2*ts)}, {P2(cc+2)}, {P2(cc+2)}, {P2(SU+8+2*ts)}")
            for n in range(8): a(f"v_add_f32 v{SU+2*n}, v{SU+2*n}, v{SU+2*n+1}")
            for st in range(2): a(f"v_permlane32_swap_b32 v{SU+8*st}, v{SU+8*st+2}\nv_permlane32_swap_b32 v{SU+8*st+4}, v{SU+8*st+6}")
            for st in range(2): a(f"v_add_f32 v{SU+8*st}, v{SU+8*st}, v{SU+8*st+2}\nv_add_f32 v{SU+8*st+4}, v{SU+8*st+4}, v{SU+8*st+6}")
            for st in range(2): a(f"v_permlane16_swap_b32 v{SU+8*st}, v{SU+8*st+4}")
            a(f"""v_add_f32 v{T}, v{SU}, v{SU+4}
            v_add_f32 v{T+1}, v{SU+8}, v{SU+12}
            v_and_b32 v5, 1, v4
            v_lshrrev_b32 v6, 1, v4
            v_lshl_or_b32 v5, v5, 1, v6
            v_lshl_add_u32 v5, v5, 4, v3
            s_lshl_b32 s37, s36, 6
            v_add_u32 v5, s37, v5
            v_lshlrev_b32 v5, 4, v5
            s_lshl_b32 s37, s35, 3
            s_add_u32 s37, s37, {RED}
            v_add_u32 v5, s37, v5
            ds_write_b64 v5, {P2(T)}
            s_waitcnt lgkmcnt(0)""")
            s.bar()
            s.stamp(17, "z2 gelu done")
            for ts in range(4):
                for i in range(4):
                    cc = acc(i, ts); gelu4(cc); z = s.Z1 + 8*ts + 2*i
                    a(f"v_cvt_pk_bf16_f32 v{z}, v{cc}, v{cc+1}\nv_cvt_pk_bf16_f32 v{z+1}, v{cc+2}, v{cc+3}")
            a(f"""s_lshl_b32 s37, s36, 6
            v_add_u32 v5, s37, v3
            v_lshlrev_b32 v6, 3, v5
            v_add_u32 v6, {RED+2048}, v6
            s_lshl_b32 s37, {sm}, 7
            v_add_u32 v5, s37, v5
            v_mul_u32_u24 v5, {FH*2}, v5
            v_lshl_add_u32 v5, v4, 4, v5
            s_lshl_b32 s37, {sn}, 8
            s_lshl_b32 s41, s35, 7
            s_add_u32 s37, s37, s41
            s_add_u32 s37, s37, {WS_Z2}""")
            s.stamp(18, "z1 gelu done")
            s.bar()
            s.stamp(19, "ln3 ready")
            for ts in range(4): a(f"ds_read_b64 {P2(T+2*ts)}, v6 offset:{128*ts}")
            a("s_waitcnt lgkmcnt(0)")
            for ts in range(4):
                for ip in range(2):
                    t = T + 8 + 4*((2*ts+ip) & 3)
                    for ii in range(2):
                        cc = acc(4+2*ip+ii, ts)
                        for hf in (0, 2): a(f"v_pk_fma_f32 {P2(cc+hf)}, {P2(cc+hf)}, {P2(T+2*ts)}, {P2(T+2*ts)} op_sel:[0,0,1] op_sel_hi:[1,0,1]")
                        a(f"v_cvt_pk_bf16_f32 v{t+2*ii}, v{cc}, v{cc+1}\nv_cvt_pk_bf16_f32 v{t+2*ii+1}, v{cc+2}, v{cc+3}")
                    swap_store(t, 5, W, "s37", 64*ip, "sc1")
                a(f"s_add_u32 s37, s37, {16*FH*2}")
            s.stamp(20, "z2 issued")
            a("s_waitcnt vmcnt(0)")
            s.stamp(21, "z2 stored")
            s.bar()
        elif which == 2:
            s.srd(44, "bsp", S*2)
            B = TOP
            a(f"""s_lshl_b32 s41, {sm}, 7
            s_lshl_b32 s42, s36, 6
            s_add_u32 s41, s41, s42
            v_add_u32 v6, s41, v3
            v_lshlrev_b32 v7, 1, v6""")
            for ts in range(4): a(f"buffer_load_ushort v{B+2*ts}, v7, s[44:47], 0 offen offset:{32*ts}")
            for m in mfmas(1): a(m)
            a(f"""v_mul_u32_u24 v5, {FH*2}, v6
            v_lshl_add_u32 v5, v4, 4, v5
            s_lshl_b32 s37, {sn}, 8
            s_lshl_b32 s41, s35, 7
            s_add_u32 s37, s37, s41
            s_add_u32 s37, s37, {WS_P}
            s_waitcnt vmcnt(0)""")
            for ts in range(4): a(f"v_lshlrev_b32 v{B+2*ts}, 16, v{B+2*ts}")
            for ts in range(4):
                for ip in range(2):
                    t = T + 8 + 4*((2*ts+ip) & 3)
                    for ii in range(2):
                        cc = acc(2*ip+ii, ts); z = s.Z1 + 8*ts + 2*(2*ip+ii)
                        for hf in (0, 2):
                            s.unpack(T+hf, T+hf+1, z+hf//2)
                            a(f"v_pk_add_f32 {P2(cc+hf)}, {P2(cc+hf)}, {P2(B+2*ts)} op_sel_hi:[1,0]")
                        for hf in (0, 2): a(f"v_pk_mul_f32 {P2(cc+hf)}, {P2(cc+hf)}, {P2(T+hf)}")
                        a(f"v_cvt_pk_bf16_f32 v{t+2*ii}, v{cc}, v{cc+1}\nv_cvt_pk_bf16_f32 v{t+2*ii+1}, v{cc+2}, v{cc+3}")
                    swap_store(t, 5, W, "s37", 64*ip, "sc1")
                a(f"s_add_u32 s37, s37, {16*FH*2}")
            s.stamp(28, "p issued")
            a("s_waitcnt vmcnt(0)")
            s.stamp(29, "p stored")
            s.bar()
        else:
            s.srd(20, "out", S*D*2)
            Z = TOP; GB = Z + 16
            a(f"""s_lshl_b32 s41, {sm}, 6
            s_lshl_b32 s42, s36, 5
            s_add_u32 s41, s41, s42
            v_add_u32 v6, s41, v3
            v_lshlrev_b32 v5, 11, v6
            v_lshl_add_u32 v5, v4, 4, v5
            s_lshl_b32 s37, {sn}, 8
            s_lshl_b32 s41, s35, 7
            s_add_u32 s37, s37, s41
            v_lshlrev_b32 v6, 5, v4
            s_lshl_b32 s41, s37, 1
            s_add_u32 s41, s41, {WS_MOD + 5*4096}""")
            for n in range(4): a(f"buffer_load_dwordx4 {Q4(GB+4*n)}, v6, {W}, s41 offen offset:{128*(n>>1)+16*(n&1)} sc1")
            for ts in range(2):
                a(f"s_add_u32 s41, s37, {WS_X1 + ts*16*2048}")
                for ip in range(2): a(f"buffer_load_dwordx4 {Q4(Z+8*ts+4*ip)}, v5, {W}, s41 offen offset:{64*ip} sc1")
            for m in mfmas(1): a(m)
            for ts in range(2):
                for ip in range(2):
                    c0 = acc(2*ip, ts); c1 = acc(2*ip+1, ts); n = 2*ts+ip; t = T + 8 + 4*n
                    for j in range(4): a(f"v_permlane32_swap_b32 v{c0+j}, v{c1+j}")
                    for j in range(4): a(f"v_permlane16_swap_b32 v{c0+j}, v{c1+j}")
                    a("s_waitcnt vmcnt(3)")
                    for ii, cc in enumerate((c0, c1)):
                        for hf in (0, 2): s.unpack(T+hf, T+hf+1, Z+4*n+2*ii+hf//2)
                        for hf in (0, 2): a(f"v_pk_fma_f32 {P2(cc+hf)}, {P2(cc+hf)}, {P2(GB+8*ip+4*ii+hf)}, {P2(T+hf)}")
                        a(f"v_cvt_pk_bf16_f32 v{t+2*ii}, v{cc}, v{cc+1}\nv_cvt_pk_bf16_f32 v{t+2*ii+1}, v{cc+2}, v{cc+3}")
                    a(f"buffer_store_dwordx4 {Q4(t)}, v5, s[20:23], s37 offen offset:{64*ip}")
                a(f"s_add_u32 s37, s37, {16*2048}")

    def ld_setup(s, which):
        a = s.a; c = s.CFG[which]; NX, MY = c["NX"], c["MY"]; ldx2, ldy2 = c["ldx2"], c["ldy2"]
        sm, sn = ("s58", "s59") if which < 3 else ("s56", "s57")
        XV = 16*which; YV = XV + 8; NYI = MY//32
        if which == 1: s.srd(12, "win", D*F*2)
        elif which == 2: s.srd(16, "wsp", S*S*2)
        else: s.srd(12, "wout", FH*D*2)
        xb = WS_Z2 if which == 2 else 0; yb = {1: WS_H2, 2: 0, 3: WS_P}[which]
        a(f"""s_sub_u32 s30, s3, 4
        s_lshl_b32 s35, s30, 4
        v_add_u32 v5, s35, v4
        s_mov_b32 s36, {ldx2}
        v_mul_lo_u32 v5, v5, s36
        s_lshl_b32 s36, {sn}, 8
        s_add_u32 s36, s36, {xb}
        v_add_u32 v5, s36, v5
        v_lshlrev_b32 v6, 1, v4
        v_xor_b32 v6, v6, v3""")
        for i in range(4):
            a(f"v_xor_b32 v7, {8*(i>>1)}, v6\nv_lshl_add_u32 v7, v7, 4, v5\nv_add_u32 v{XV+i}, {i*4*ldx2}, v7")
            if NX == 2: a(f"v_add_u32 v{XV+4+i}, {FH*2}, v{XV+i}")
        a(f"""s_mul_i32 s35, {sm}, {MY}
        s_mul_i32 s36, s30, {8*NYI}
        s_add_u32 s35, s35, s36
        v_lshrrev_b32 v5, 3, v2
        v_add_u32 v5, s35, v5
        s_mov_b32 s36, {ldy2}
        v_mul_lo_u32 v5, v5, s36
        v_add_u32 v5, {yb}, v5
        v_and_b32 v6, 7, v2
        v_xor_b32 v6, v6, v4""")
        for i in range(NYI):
            a(f"v_xor_b32 v7, {4*(i&1)}, v6\nv_lshl_add_u32 v7, v7, 4, v5\nv_add_u32 v{YV+i}, {i*8*ldy2}, v7")
    def ld_ops(s, which, part, step=None):
        a = s.a; c = s.CFG[which]; NX, MY, NS = c["NX"], c["MY"], c["NS"]; STG = NX*16384 + MY*128; YB = NX*16384
        XV = 16*which; YV = XV + 8; NYI = MY//32
        wt = (part == "X") == (which != 2)
        srd = ("s[16:19]" if which == 2 else "s[12:15]") if wt else W
        fl = "" if wt else "sc1"
        if part == "X":
            if step is None: a("s_lshl_b32 s42, s30, 12\ns_add_u32 s42, s42, s41"); so = "s37"
            else: a(f"s_lshl_b32 s42, s30, 12\ns_add_u32 s42, s42, {((step+c['rot']) % NS)*STG}\ns_mov_b32 s43, {step*64*c['ldx2']}"); so = "s43"
            for i in range(4):
                for sub in range(NX): a(f"s_add_u32 m0, s42, {sub*16384+1024*i}\nbuffer_load_dwordx4 v{XV+4*sub+i}, {srd}, {so} offen {fl} lds")
            return 4*NX
        if step is None: a(f"s_mul_i32 s42, s30, {1024*NYI}\ns_add_u32 s42, s42, s41"); so = "s38"
        else: a(f"s_mul_i32 s42, s30, {1024*NYI}\ns_add_u32 s42, s42, {((step+c['rot']) % NS)*STG}\ns_mov_b32 s43, {step*128}"); so = "s43"
        for i in range(NYI): a(f"s_add_u32 m0, s42, {YB+1024*i}\nbuffer_load_dwordx4 v{YV+i}, {srd}, {so} offen {fl} lds")
        return NYI
    def ld_preload(s, which, steps):
        for st in steps: s.ld_ops(which, "Y" if which == 2 else "X", st)
    def gemm_B(s, which, pre, after_loop):
        a = s.a; c = s.CFG[which]; NX, MY, NS, rot = c["NX"], c["MY"], c["NS"], c["rot"]; L = f"L_g{which}"
        nsteps = c["K"]//64; STG = NX*16384 + MY*128
        wpart, apart = ("Y", "X") if which == 2 else ("X", "Y")
        l = s.only_wave(4)
        if which == 1: a("s_lshl_b32 s37, s58, 4"); s.poll(2, "s37", 16)
        elif which == 2: a("s_lshl_b32 s37, s59, 4"); s.poll(3, "s37", 16)
        else: a("s_lshr_b32 s37, s56, 1\ns_lshl_b32 s37, s37, 4"); s.poll(4, "s37", 14)
        a(f"{l}:")
        s.bar()
        issued = []
        def issue(st):
            issued.extend([st]*s.ld_ops(which, apart, st))
            if st not in pre: issued.extend([st]*s.ld_ops(which, wpart, st))
        def wait_for(st):
            last = max(i for i, x in enumerate(issued) if x == st)
            a(f"s_waitcnt vmcnt({len(issued)-1-last})")
        for st in range(NS-1): issue(st)
        wait_for(0)
        npeel = NS
        for st in range(npeel):
            s.bar(); issue(st+NS-1); wait_for(st+1)
        nxt = npeel + NS - 1; per = 4*NX + MY//32
        a(f"s_mov_b32 s37, {nxt*64*c['ldx2']}\ns_mov_b32 s38, {nxt*128}\ns_mov_b32 s41, {((nxt+rot) % NS)*STG}\ns_mov_b32 s44, {nsteps-nxt}\n{L}_lloop:")
        s.bar(nsteps-nxt)
        s.ld_ops(which, apart); s.ld_ops(which, wpart)
        a(f"s_add_u32 s37, s37, {64*c['ldx2']}\ns_add_u32 s38, s38, 128\ns_add_u32 s41, s41, {STG}\ns_cmp_eq_u32 s41, {STG*NS}\ns_cselect_b32 s41, 0, s41")
        a(f"s_sub_u32 s44, s44, 1\ns_cmp_lg_u32 s44, 0\ns_waitcnt vmcnt({per*(NS-2)})\ns_cbranch_scc1 {L}_lloop")
        for t in range(NS-1):
            s.bar()
            if t < NS-2: a(f"s_waitcnt vmcnt({per*(NS-3-t)})")
        after_loop()
        if which == 1:
            RED = MISC + 1024
            a(f"""s_lshl_b32 s35, s30, 6
            v_add_u32 v5, s35, v2
            v_lshlrev_b32 v6, 4, v5
            v_add_u32 v6, {RED}, v6
            v_lshlrev_b32 v5, 3, v5
            v_add_u32 v7, {RED+2048}, v5
            s_mul_i32 s36, s58, {14*1024}
            s_add_u32 s36, s36, {WS_GRAN}
            s_lshl_b32 s37, s59, 10
            s_add_u32 s37, s37, s36""")
            s.bar()
            a(f"""s_cmp_ge_u32 s30, 2
            s_cbranch_scc1 {L}_noln
            ds_read_b128 v[8:11], v6
            s_waitcnt lgkmcnt(0)
            v_add_f32 v8, v8, v10
            v_add_f32 v9, v9, v11
            v_cmp_o_f32 vcc, v9, v9
            v_mov_b32 v10, 0x7fc00000
            v_cndmask_b32 v9, v10, v9, vcc
            buffer_store_dwordx2 v[8:9], v5, {W}, s37 offen sc1
            s_mov_b32 s38, 0
            {L}_poll:""")
            for n in range(14):
                if n and n % 4 == 0: a("s_add_u32 s36, s36, 4096")
                a(f"buffer_load_dwordx2 {P2(72+2*n)}, v5, {W}, s36 offen offset:{1024*(n&3)} sc1")
            a("s_sub_u32 s36, s36, 12288\ns_waitcnt vmcnt(0)\nv_max_u32 v8, v73, v75")
            for n in range(2, 14, 2): a(f"v_max3_u32 v8, v8, v{73+2*n}, v{75+2*n}")
            a(f"""v_cmp_eq_u32 vcc, -1, v8
            s_add_u32 s38, s38, 1
            s_cmp_gt_u32 s38, 20000
            s_cbranch_scc1 {L}_go
            s_cbranch_vccnz {L}_poll
            {L}_go:""")
            for n in range(1, 14): a(f"v_pk_add_f32 v[72:73], v[72:73], {P2(72+2*n)}")
            a(f"""v_mul_f32 v72, {fbits(1/FH)}, v72
            v_mul_f32 v73, {fbits(1/FH)}, v73
            v_fma_f32 v73, -v72, v72, v73
            v_max_f32 v73, 0, v73
            v_add_f32 v73, {fbits(1e-5)}, v73
            v_rsq_f32 v8, v73
            v_mul_f32 v9, -v72, v8
            ds_write_b64 v7, v[8:9]
            s_waitcnt lgkmcnt(0)
            {L}_noln:""")
            s.bar()
        if which < 3:
            s.bar()
            l = s.only_wave(4)
            if which == 1: a("s_lshl_b32 s37, s59, 4\ns_add_u32 s37, s37, s58")
            else: a("s_lshl_b32 s37, s58, 4\ns_add_u32 s37, s37, s59")
            s.set_flag(2+which, "s37"); a(f"{l}:")

    def build(s):
        a = s.a
        a.launch(NAME, 256, 512, LDS_BYTES); a.begin(NAME)
        a("s_cmp_ge_u32 s2, 256\ns_cbranch_scc1 L_done")
        if s.diag: a("v_mov_b32 v255, 0")
        s.stamp(0, "start")
        a("""s_load_dwordx16 s[64:79], s[0:1], 0
        s_load_dwordx16 s[80:95], s[0:1], 64
        v_lshrrev_b32 v1, 6, v0
        v_and_b32 v2, 63, v0
        v_readfirstlane_b32 s3, v1
        s_and_b32 s4, s2, 7
        s_lshr_b32 s5, s2, 3
        s_lshl_b32 s7, s4, 5
        s_add_u32 s7, s7, s5
        v_and_b32 v3, 15, v2
        v_lshrrev_b32 v4, 4, v2
        s_lshr_b32 s33, s4, 1
        s_and_b32 s34, s4, 1
        s_mul_i32 s35, s5, 37
        s_lshr_b32 s35, s35, 8
        s_mul_i32 s36, s35, 7
        s_sub_u32 s36, s5, s36
        s_lshl_b32 s58, s33, 2
        s_add_u32 s58, s58, s35
        s_mul_i32 s59, s34, 7
        s_add_u32 s59, s59, s36
        s_lshr_b32 s35, s5, 2
        s_and_b32 s36, s5, 3
        s_lshl_b32 s56, s33, 3
        s_add_u32 s56, s56, s35
        s_lshl_b32 s57, s34, 2
        s_add_u32 s57, s57, s36
        s_cmp_ge_u32 s3, 4
        s_cbranch_scc1 L_B""")
        s.nbar = 0
        s.prep_conv_A(); s.row(False)
        a("s_cmp_ge_u32 s5, 28\ns_cbranch_scc1 L_A3")
        n0 = s.nbar; s.gemm_A(1); s.gemm_A(2); nskipA = s.nbar - n0
        a("L_A3:"); s.gemm_A(3)
        nA = s.nbar
        a("s_branch L_end\nL_B:")
        s.nbar = 0
        s.prep_conv_B(); s.row(True)
        a("s_cmp_ge_u32 s5, 28\ns_cbranch_scc1 L_Bspare")
        n0 = s.nbar
        s.ld_setup(1); s.ld_preload(1, [0, 1, 2]); s.ld_setup(2)
        s.gemm_B(1, {0, 1, 2}, lambda: s.ld_preload(2, [0, 1, 2]))
        s.ld_preload(2, [3]); s.ld_setup(3)
        s.gemm_B(2, {0, 1, 2, 3}, lambda: s.ld_preload(3, [0, 1, 2, 3]))
        nskipB = s.nbar - n0
        s.ld_preload(3, [4, 5])
        a("s_branch L_B3\nL_Bspare:")
        a("s_sub_u32 s32, s5, 28\ns_lshl_b32 s32, s32, 3\ns_add_u32 s32, s32, s4\nv_and_b32 v5, 255, v0\nv_lshlrev_b32 v5, 7, v5")
        for nm, nb in (("wsp", S*S*2), ("wout", FH*D*2)):
            s.srd(16, nm, nb); per_wg = nb//32
            a(f"s_mul_i32 s33, s32, {per_wg}")
            for i in range(-(-per_wg//32768)): a(f"buffer_load_dword v100, v5, s[16:19], s33 offen\ns_add_u32 s33, s33, 32768")
        s.ld_setup(3); s.ld_preload(3, range(6))
        a("L_B3:")
        s.gemm_B(3, set(range(6)), lambda: None)
        assert nA == s.nbar and nskipA == nskipB, (nA, s.nbar, nskipA, nskipB)
        a("L_end:")
        if s.diag:
            a("s_waitcnt vmcnt(0)"); s.stamp(63, "end")
            a(f"s_lshl_b32 s92, s2, 11\ns_add_u32 s92, s92, {WS_TS}\nv_lshlrev_b32 v1, 2, v0\nbuffer_store_dword v255, v1, {W}, s92 offen")
        a("L_done:\ns_endpgm")
        info = a.end(NAME, 256, sgpr=100)
        if "-v" in sys.argv: print(info, file=sys.stderr)
        return a.text(HEADER)
HEADER = """; adaLN-conditioned H3 long-conv block + gMLP block in one persistent launch (emitted by the author's generator script)
"""
def build(diag=False, **opt):
    g = G(diag, **opt); t = g.build(); build.names = g.names; return t
if __name__ == "__main__":
    open(sys.argv[1], "w").write(build(diag="--diag" in sys.argv))
```

```python
import re
TRANS = ("v_exp_", "v_log_", "v_rcp_", "v_rsq_", "v_sqrt_", "v_sin_", "v_cos_")
NODST_S = ("s_cmp", "s_waitcnt", "s_branch", "s_barrier", "s_nop", "s_cbranch", "s_setprio", "s_sleep", "s_endpgm", "s_bitcmp", "s_setreg")
def regs(tok):
    tok = tok.strip()
    tok = re.sub(r"^-|^abs\(|^\|", "", tok); tok = re.sub(r"\)$|\|$", "", tok)
    m = re.fullmatch(r"([vas])(\d+)", tok)
    if m: return {(m.group(1), int(m.group(2)))}
    m = re.fullmatch(r"([vas])\[(\d+):(\d+)\]", tok)
    if m: return {(m.group(1), i) for i in range(int(m.group(2)), int(m.group(3))+1)}
    if tok in ("vcc", "vcc_lo", "vcc_hi"): return {("s", "vcc")}
    if tok in ("exec", "exec_lo", "exec_hi"): return {("s", "exec")}
    if tok == "m0": return {("s", "m0")}
    return set()
class I:
    def __init__(self, line):
        self.line = line
        t = line.split(";")[0].strip()
        self.is_label = t.endswith(":"); self.is_dir = t.startswith(".") or t == ""
        self.op = ""; self.d = set(); self.s = set(); self.kind = "none"; self.ws = 0
        if self.is_label: self.label = t[:-1]; return
        if self.is_dir: return
        p = t.split(None, 1); op = self.op = p[0]
        ops = []
        if len(p) > 1:
            parts = [x.strip() for x in re.split(r",(?![^\[]*\])", p[1])]
            last = parts[-1].split(None, 1) if not parts[-1].startswith("hwreg") else [parts[-1]]
            self.mods = last[1] if len(last) > 1 else ""
            parts[-1] = last[0]; ops = parts
        else: self.mods = ""
        self.ops = ops
        R = [regs(o) for o in ops]; U = lambda l: set().union(*l) if l else set()
        self.ws = 1
        if op == "s_nop": self.ws = int(ops[0], 0) + 1
        self.dpp = "_dpp" in op or any(k in self.mods for k in ("quad_perm", "row_", "wave_"))
        if op.startswith(("v_mfma", "v_smfmac")):
            self.kind = "mfma"; self.d = R[0]; self.a = R[1] | R[2]; self.c = R[3]; self.s = self.a | self.c
            self.passes = 8 if "32x32" in op else 4
        elif op.startswith("v_"):
            self.kind = "valu"; self.trans = op.startswith(TRANS)
            if op.startswith("v_nop"): pass
            elif "permlane" in op and "swap" in op: self.d = R[0] | R[1]; self.s = R[0] | R[1]
            elif re.match(r"v_(add|sub|subrev|addc|subb|subbrev)_co_", op) or op.startswith(("v_mad_u64", "v_mad_i64", "v_div_scale")):
                self.d = R[0] | R[1]; self.s = U(R[2:])
            else:
                self.d = R[0]; self.s = U(R[1:])
                if op.startswith(("v_fmac", "v_dot2c", "v_pk_fmac", "v_writelane")) or self.dpp or "d16" in op: self.s |= R[0]
                if op.startswith("v_cmpx"): self.d |= {("s", "exec")}
        elif op.startswith(("buffer_", "global_", "flat_")):
            self.kind = "vmem"; self.lds = bool(re.search(r"\blds\b", self.mods)) or "_lds_" in op
            self.data = set()
            if op.startswith(("buffer_wbl2", "buffer_inv")): pass
            elif "load" in op:
                if self.lds: self.s = U(R) | {("s", "m0")}
                else:
                    self.d = R[0]; self.s = U(R[1:])
                    if "d16" in op: self.s |= R[0]
            else:
                self.s = U(R)
                self.data = R[0] if op.startswith("buffer_") else R[1]
                if "atomic" in op and "sc0" in self.mods:
                    self.d = R[0]
                    if op.startswith("global_"): self.data = R[2]; self.s = U(R[1:])
            self.wide = ("store" in op and ("x3" in op or "x4" in op))
        elif op.startswith("ds_"):
            self.kind = "ds"
            if op.startswith(("ds_read", "ds_bpermute", "ds_permute", "ds_swizzle")) or "_rtn" in op: self.d = R[0]; self.s = U(R[1:])
            else: self.s = U(R)
        elif op.startswith(("s_load", "s_buffer_load", "s_memtime", "s_memrealtime")):
            self.kind = "smem"; self.d = R[0]; self.s = U(R[1:])
        elif op.startswith("s_"):
            self.kind = "salu"
            if op.startswith(NODST_S): self.s = U(R)
            else:
                self.d = R[0]; self.s = U(R[1:])
                if "saveexec" in op: self.d |= {("s", "exec")}
        else: raise ValueError("unknown instr: " + line)
def vg(S): return {r for r in S if r[0] in "va"}
def sg(S): return {r for r in S if r[0] == "s"}
def need(p, c):
    n = 0
    if p.kind == "valu":
        vd = vg(p.d); sd = sg(p.d)
        if c.kind == "mfma" and vd & c.s: n = max(n, 2)
        if c.kind == "mfma" and ("s", "exec") in sd: n = max(n, 4)
        if c.kind == "valu":
            if vd & c.s:
                if c.op.startswith(("v_readlane", "v_readfirstlane")): n = max(n, 1)
                if "permlane" in c.op or c.dpp: n = max(n, 2)
                if p.trans and not c.trans: n = max(n, 1)
                if "_sdwa" in p.op and "dst_sel:DWORD" not in p.mods: n = max(n, 1)
            if sd & c.s: n = max(n, 4 if c.op.startswith(("v_readlane", "v_writelane")) else 2)
        if c.kind == "vmem" and sd & c.s: n = max(n, 5)
        if c.kind in ("salu", "smem") and sd & c.s: n = max(n, 1)
    elif p.kind == "mfma":
        P = p.passes
        if c.kind == "mfma":
            if p.d & c.a: n = max(n, P + 4)
            if p.d & c.c and not (p.d == c.c and c.passes == P): n = max(n, P + 2)
            if p.d & c.d and not (p.d & c.c): n = max(n, P + 2)
        elif c.kind in ("valu", "vmem", "ds"):
            if p.d & (c.s | c.d): n = max(n, P + 4)
            if c.kind == "valu" and p.c & c.d: n = max(n, P - 1)
    elif p.kind == "salu":
        if ("s", "m0") in p.d and c.kind == "vmem" and c.lds: n = max(n, 1)
        if ("s", "m0") in p.d and c.kind == "ds" and "addtid" in c.op: n = max(n, 1)
    elif p.kind == "vmem":
        if p.wide and p.data & c.d: n = max(n, 2 if c.kind == "valu" else 1)
    return n
WIN = 14
def deficit(prev, c):
    dist = 0; worst = 0
    for p in reversed(prev):
        if p.ws == 0: continue
        if dist >= WIN: break
        worst = max(worst, need(p, c) - dist)
        dist += p.ws
    return worst
def pad(lines):
    ins = [I(l) for l in lines]; out = []; npad = 0
    for c in ins:
        if c.ws:
            d = deficit(out[-40:], c)
            if d > 0: out.append(I(f"    s_nop {d-1}")); npad += 1
        out.append(c)
        if c.op in ("s_endpgm", "s_branch"): out.append(I("")); out[-1].ws = WIN
    changed = True
    while changed:
        changed = False
        lab = {x.label: i for i, x in enumerate(out) if x.is_label}
        for i, b in enumerate(out):
            if b.op.startswith(("s_branch", "s_cbranch")):
                t = lab[b.ops[0]]
                prev = out[max(0, i-40):i+1]; worst = 0; seq = list(prev)
                for c in out[t:t+30]:
                    if c.ws == 0: continue
                    if c.line == "": break
                    dist = sum(x.ws for x in seq[len(prev):])
                    if dist >= WIN: break
                    dd = 0; w = 0
                    for p in reversed(prev):
                        if p.ws == 0: continue
                        if dd + dist >= WIN: break
                        w = max(w, need(p, c) - dd - dist); dd += p.ws
                    worst = max(worst, w); seq.append(c)
                if worst > 0:
                    out.insert(i, I(f"    s_nop {worst-1}")); npad += 1; changed = True; break
    return [x.line for x in out if x.line != ""], npad

import subprocess
def sizes(lines, name):
    r = subprocess.run(["llvm-mc", "-triple=amdgcn-amd-amdhsa", "-mcpu=gfx950", "-show-encoding"], input=name + ":\n" + "\n".join(lines) + "\n", capture_output=True, text=True)
    assert r.returncode == 0, r.stderr[:2000]
    return [l.split("encoding: [")[1].count(",") + 1 for l in r.stdout.splitlines() if "encoding: [" in l]
WIDEN = ("v_add_u32", "v_sub_u32", "v_add_f32", "v_sub_f32", "v_mul_f32", "v_max_f32", "v_fmac_f32", "v_mov_b32", "v_lshlrev_b32", "v_lshrrev_b32", "v_and_b32", "v_xor_b32", "v_or_b32",
         "v_exp_f32", "v_rcp_f32", "v_rsq_f32", "v_min_u32", "v_max_u32", "v_mul_u32_u24", "v_permlane32_swap_b32", "v_permlane16_swap_b32")
def align8(lines, name, loop_align=5, minrun=2):
    ins = [I(l) for l in lines]; sz = iter(sizes(lines, name))
    for x in ins: x.size = next(sz) if x.op else 0
    pos = {x.label: i for i, x in enumerate(ins) if x.is_label}
    heads = {x.ops[0] for i, x in enumerate(ins) if x.op.startswith(("s_cbranch", "s_branch")) and pos[x.ops[0]] < i and "loop" in x.ops[0].lower() or x.op.startswith("s_cbranch") and x.ops[0].startswith("L_ld") and pos[x.ops[0]] < i}
    out = []; addr = 0; nw = nn = 0
    def nop():
        n = I("    s_nop 0"); n.size = 4; return n
    for i, x in enumerate(ins):
        if x.is_label and x.label in heads:
            while addr % (1 << loop_align): out.append(nop()); addr += 4
        if x.size == 8 and addr % 8 == 4:
            run = [y.size for y in ins[i:i+12] if y.size][:minrun]
            if all(z == 8 for z in run):
                j = len(out) - 1
                while j >= 0 and out[j].size in (0, 8) and not out[j].is_label: j -= 1
                if j >= 0 and out[j].size == 4 and out[j].op in WIDEN:
                    w = I(out[j].line.replace(out[j].op, out[j].op + "_e64", 1)); w.size = 8; out[j] = w; nw += 1
                else: out.append(nop()); nn += 1
                addr += 4
        out.append(x); addr += x.size
    return [x.line for x in out], (nw, nn)

SCC_USE = ("s_cbranch_scc", "s_cselect", "s_addc", "s_subb", "s_cmov")
SCC_DEF = ("s_cmp", "s_bitcmp", "s_add_", "s_sub_", "s_and_", "s_or_", "s_xor_", "s_andn2", "s_lshl", "s_lshr", "s_min", "s_max", "s_bfe", "s_not")
def add_pads(lines, name, npads, flag, base=0):
    ins = [I(l) for l in lines]; sz = iter(sizes(lines + [f"L_pad_{n}:" for n in range(npads)], name))
    for x in ins: x.size = next(sz) if x.op else 0
    def scc_dead(i):
        for y in ins[i:i+6000]:
            if y.op.startswith(SCC_USE): return False
            if y.op.startswith(SCC_DEF) or y.op == "s_endpgm": return True
            if y.op.startswith(("s_branch", "s_cbranch")): return False
        return False
    out = []; addr = base; page = base >> 12; n = 0; hopping = False
    for i, x in enumerate(ins):
        if i and ins[i-1].op == "s_mov_b32" and ins[i-1].ops[0] == flag: hopping = ins[i-1].ops[1] != "0"
        if x.op and not hopping and (addr >> 12) > page and addr % 8 == 0 and n < npads and scc_dead(i) and ins[i-1].op not in ("s_branch", "s_endpgm") and not (ins[i-1].kind == "salu" and ("s", "m0") in ins[i-1].d):
            out += [f"L_pad_{n}:", f"    s_cmp_eq_u32 {flag}, 1", f"    s_cbranch_scc1 L_padret_{n}"]; addr += 8; n += 1; page = addr >> 12
        out.append(x.line); addr += x.size
    rest = []
    for k in range(n, npads): rest += [f"L_pad_{k}:", f"    s_branch L_padret_{k}"]
    return out + rest, n

class Asm:
    def __init__(self):
        self.lines = []; self.launches = []; self.kds = []; self._lbl = 0; self._start = 0
    def __call__(self, s):
        for l in s.strip("\n").split("\n"):
            l = l.strip()
            if l: self.lines.append(l if l.split(";")[0].strip().endswith(":") else "    " + l)
        return self
    def label(self, base="L"):
        self._lbl += 1; return f"{base}_{self._lbl}"
    def launch(self, name, grid, block, lds):
        self.launches.append(f"; @launch kernel={name} grid=({grid},1,1) block=({block},1,1) lds={lds}")
    def begin(self, name):
        self.lines += [".text", f".globl {name}", ".p2align 8", f".type {name},@function", f"{name}:"]
        self._start = len(self.lines)
    def end(self, name, vgpr, sgpr=96, agpr=0, align=None, pads=None):
        body = self.lines[self._start:]
        stub = [f"L_pad_{k}:" for k in range(pads[0])] if pads else []
        body, n = pad(body + stub)
        if align: body, k = align8(body, name, *align); n = (n, k)
        if pads: body, k = add_pads(body[:len(body)-len(stub)], name, *pads); n = (n, k)
        self.lines[self._start:] = body
        mx = {"v": -1, "a": -1, "s": -1}
        for l in body:
            it = I(l)
            for r in it.d | it.s:
                if isinstance(r[1], int): mx[r[0]] = max(mx[r[0]], r[1])
        assert mx["v"] < vgpr and mx["s"] < sgpr and mx["a"] < max(agpr, 0) or (mx["a"] < 0 and mx["v"] < vgpr and mx["s"] < sgpr), (name, mx, vgpr, sgpr, agpr)
        acc = (vgpr + 3)//4*4
        nfv = acc + agpr if agpr else vgpr
        self.kds.append(f""".p2align 6
.amdhsa_kernel {name}
  .amdhsa_next_free_vgpr {nfv}
  .amdhsa_next_free_sgpr {sgpr}
  .amdhsa_accum_offset {acc}
  .amdhsa_group_segment_fixed_size 0
  .amdhsa_kernarg_size 128
  .amdhsa_user_sgpr_count 2
  .amdhsa_user_sgpr_kernarg_segment_ptr 1
  .amdhsa_system_sgpr_workgroup_id_x 1
  .amdhsa_float_denorm_mode_32 3
.end_amdhsa_kernel""")
        return mx, n
    def srd(self, d, b, nbytes, off=0):
        if off:
            self(f"s_add_u32 s{d}, s{b}, {off}\ns_addc_u32 s{d+1}, s{b+1}, 0\ns_and_b32 s{d+1}, s{d+1}, 0xffff")
        else:
            self(f"s_mov_b32 s{d}, s{b}\ns_and_b32 s{d+1}, s{b+1}, 0xffff")
        self(f"s_mov_b32 s{d+2}, {nbytes}\ns_mov_b32 s{d+3}, 0x00020000")
    def text(self, header=""):
        return header + "\n".join(self.launches) + "\n.amdgcn_target \"amdgcn-amd-amdhsa--gfx950\"\n" + "\n".join(self.lines) + "\n.section .rodata,\"a\"\n" + "\n".join(self.kds) + "\n"
```

```python
import sys
def check(txt):
    hop = False; bad = []
    for l in txt.splitlines():
        t = l.strip()
        if t.startswith("s_mov_b32 s99,"): hop = not t.endswith(" 0")
        if t.startswith("L_pad_") and hop: bad.append(t)
    return bad
if __name__ == "__main__":
    for f in sys.argv[1:]: print(f, check(open(f).read()))
```

```python
import sys, struct
from asmgen import Asm
S, D, F, FH = 2048, 1024, 3584, 1792
MB = 1 << 20
WS_MOD, WS_EPOCH, WS_GRAN, WS_FLAG = 0, 0xc000, 0x10000, 0x50000
WS_KV, WS_Y2, WS_X1, WS_H2, WS_Z2, WS_P, WS_WOC, WS_WIC, WS_WSC, WS_TS = 1*MB, 9*MB, 13*MB, 17*MB, 25*MB, 33*MB, 41*MB, 45*MB, 53*MB, 64*MB
AP_ = 4096
SLOT = lambda j: j + (j + 4)//7
def slot_s(d, j, t): return f"s_add_u32 {t}, {j}, 4\ns_mul_i32 {t}, {t}, 37\ns_lshr_b32 {t}, {t}, 8\ns_add_u32 {d}, {j}, {t}"
def slot_v(d, j, t): return f"v_add_u32 {t}, 4, {j}\nv_mul_u32_u24 {t}, 37, {t}\nv_lshrrev_b32 {t}, 8, {t}\nv_add_u32 {d}, {j}, {t}"

PTR = dict(q=64, k=66, v=68, shift=70, ssmk=72, ssmd=74, win=78, wsp=80, bsp=82, wout=84, c=86, wmod=88, out=90, ws=94)
def fbits(x): return "0x%08x" % struct.unpack("<I", struct.pack("<f", x))[0]
LOG2E = 1.4426950408889634
CH_STRIDE, KVE_OFF, KA_OFF, KB_OFF = 17664, 4576, 9216, 13440
HB = 4*CH_STRIDE
YST, MODST = 16384, 131072
MISC = 155648
LDS_BYTES = 163840
W = "s[8:11]"
P2 = lambda b: f"v[{b}:{b+1}]"
Q4 = lambda b: f"v[{b}:{b+3}]"
NAME = "adaLN_cond__ssm_conv_h3__mixer_gmlp__prompt_kernel"

class G:
    def __init__(s, diag=False, **opt):
        s.G_, s.N_, s.K_ = opt.get('G', 20), opt.get('N', 25), opt.get('K', 29); s.a = Asm(); s.diag = diag; s.opt = opt; s.fix = opt.get('fix', 'o'); s.NG = 20 if opt.get('gblate', 1) else 24; assert s.NG == 24 or 'o' in s.fix; s.bars = []; s.names = {}; s.jit = {k: list(v) for k, v in opt.get('jit', {}).items()}; s.jit_on = False; s.jit_pads = {k for v in s.jit.values() for k in v}
    def bar(s, name, n=1):
        tr = s.opt.get("trace")
        if tr and name[0] == tr[0] and name[1:].isdigit() and 0 <= int(name[1:]) - tr[1] < 22: s.stamp(41 + int(name[1:]) - tr[1], "arrive " + name)
        s.a(f"s_barrier ; {name}"); s.bars.append((name, n))
        if s.jit_on:
            for k in s.jit.pop(name, []):
                l = s.only_wave(6); s.a(f"s_mov_b32 s99, 1\ns_branch L_pad_{k}\nL_padret_{k}:\ns_mov_b32 s99, 0\n{l}:")
    def stamp(s, i, name=None):
        if name: s.names[i] = name
        if name and s.opt.get("fixat") == i: s.a("s_memrealtime s[100:101]\ns_waitcnt lgkmcnt(0)")
        if s.diag: s.a(f"s_memrealtime s[96:97]\ns_waitcnt lgkmcnt(0)\nv_writelane_b32 v255, s96, {i}")
        cyc = {5: 33, 6: 34, 15: 35, 16: 36, 23: 37, 24: 38, 31: 39, 32: 25, 21: 26}
        if s.diag and name and i in cyc: s.a(f"s_memtime s[96:97]\ns_waitcnt lgkmcnt(0)\nv_writelane_b32 v255, s96, {cyc[i]}")
    def unpack(s, lo, hi, src):
        s.a(f"v_lshlrev_b32 v{lo}, 16, v{src}\nv_and_b32 v{hi}, 0xffff0000, v{src}")
    def srd(s, d, name, nbytes): s.a.srd(d, PTR[name], nbytes)
    def set_flag(s, sync, idx_sgpr, local=False):
        a = s.a
        a(f"""s_lshl_b32 s60, {idx_sgpr}, 7
        s_add_u32 s60, s60, {WS_FLAG + sync*32768}
        v_mov_b32 v250, s6
        v_mov_b32 v251, 0
        s_mov_b64 exec, 1""")
        if local:
            l, l2 = a.label("L_far"), a.label("L_set")
            a(f"s_cmp_eq_u32 s28, 0\ns_cbranch_scc1 {l}\nbuffer_store_dword v250, v251, {W}, s60 offen\ns_branch {l2}\n{l}:\nbuffer_wbl2 sc1\ns_waitcnt vmcnt(0)")
        a(f"buffer_store_dword v250, v251, {W}, s60 offen sc1")
        if local: a(f"{l2}:")
        a("s_mov_b64 exec, -1")
    def acquire_if_far(s):
        l = s.a.label("L_near"); s.a(f"s_cmp_lg_u32 s28, 0\ns_cbranch_scc1 {l}\nbuffer_inv sc1\ns_waitcnt vmcnt(0)\n{l}:")
    def hello_send(s):
        s.a(f"""s_getreg_b32 s29, hwreg(HW_REG_XCC_ID, 0, 4)
        s_lshl_b32 s60, s7, 7
        s_add_u32 s60, s60, {WS_FLAG + 6*32768}
        v_mov_b32 v250, s6
        v_mov_b32 v251, s29
        v_mov_b32 v252, 0
        s_mov_b64 exec, 1
        buffer_store_dwordx2 v[250:251], v252, {W}, s60 offen sc1
        s_mov_b64 exec, -1""")
    def hello_check(s):
        a = s.a; l = a.label("L_hello"); go = a.label("L_hgo")
        a(f"""s_andn2_b32 s60, s7, 31
        s_lshl_b32 s60, s60, 7
        s_add_u32 s60, s60, {WS_FLAG + 6*32768}
        v_and_b32 v250, 31, v2
        v_lshlrev_b32 v250, 7, v250
        s_mov_b32 s61, 0
        s_mov_b32 s28, 0
        {l}:
        buffer_load_dwordx2 v[252:253], v250, {W}, s60 offen sc1
        s_add_u32 s61, s61, 1
        s_cmp_gt_u32 s61, 30000
        s_cbranch_scc1 {go}
        s_waitcnt vmcnt(0)
        v_cmp_ne_u32 vcc, s6, v252
        s_cbranch_vccnz {l}
        v_cmp_ne_u32 vcc, s29, v253
        s_cbranch_vccnz {go}
        s_mov_b32 s28, {0 if s.opt.get("forcefar") else 1}
        {go}:
        s_waitcnt vmcnt(0)""")
    def poll_early(s, sync, first=None, cnt=32):
        s.a(f"v_min_u32 v248, {cnt-1}, v2\nv_lshlrev_b32 v248, 7, v248")
        s.a(f"s_lshl_b32 s60, {first}, 7\ns_add_u32 s60, s60, {WS_FLAG + sync*32768}" if first else f"s_mov_b32 s60, {WS_FLAG + sync*32768}")
        s.a(f"buffer_load_dword v249, v248, {W}, s60 offen sc1")
    def poll_late(s, sync, first=None, cnt=32):
        l = s.a.label("L_seen")
        s.a(f"s_waitcnt vmcnt(0)\nv_cmp_ne_u32 vcc, s6, v249\ns_cbranch_vccz {l}"); s.poll(sync, first, cnt); s.a(f"{l}:")
    def poll(s, sync, first_sgpr, cnt, sleep=0, fl='sc1'):
        a = s.a; l = a.label("L_poll"); go = a.label("L_go")
        if first_sgpr is None: a(f"s_mov_b32 s60, {WS_FLAG + sync*32768}")
        else: a(f"s_lshl_b32 s60, {first_sgpr}, 7\ns_add_u32 s60, s60, {WS_FLAG + sync*32768}")
        a(f"v_min_u32 v250, {min(cnt, 64)-1}, v2\nv_lshlrev_b32 v250, 7, v250\ns_mov_b32 s61, 0\n{l}:")
        nl = -(-cnt//64)
        if sleep: a(f"s_sleep {sleep}")
        for q in range(nl):
            if q: a(f"s_add_u32 s62, s60, {min(q*64, cnt-64)*128}")
            a(f"buffer_load_dword v{251+q}, v250, {W}, {'s62' if q else 's60'} offen {fl}")
        a(f"s_add_u32 s61, s61, 1\ns_cmp_gt_u32 s61, 30000\ns_cbranch_scc1 {go}\ns_waitcnt vmcnt(0)")
        for q in range(nl): a(f"v_xor_b32 v{251+q}, s6, v{251+q}")
        if nl == 4: a("v_or3_b32 v251, v251, v252, v253\nv_or_b32 v251, v251, v254")
        if nl == 2: a("v_or_b32 v251, v251, v252")
        a(f"v_cmp_ne_u32 vcc, 0, v251\ns_cbranch_vccnz {l}\n{go}:\ns_waitcnt vmcnt(0)")
    def only_wave(s, w):
        l = s.a.label("L_skip"); s.a(f"s_cmp_lg_u32 s3, {w}\ns_cbranch_scc1 {l}"); return l

    XR = 184
    KST, VST = HB, HB + 17408
    def kv_stage(s):
        a = s.a
        s.srd(12, "k", S*D*2); s.srd(16, "v", S*D*2)
        a(f"""s_lshr_b32 s32, s7, 4
        s_and_b32 s33, s7, 15
        s_lshl_b32 s34, s33, 18
        s_lshl_b32 s35, s32, 7
        s_add_u32 s34, s34, s35
        v_lshrrev_b32 v5, 3, v2
        v_and_b32 v6, 7, v2
        v_lshlrev_b32 v6, 4, v6
        v_lshl_add_u32 v7, v5, 11, v6
        v_xor_b32 v8, 2048, v7
        s_lshl_b32 s36, s3, 15
        s_add_u32 s36, s36, s34
        s_add_u32 s37, s36, 16384
        s_lshl_b32 s38, s3, 11
        s_add_u32 m0, s38, {s.KST + 1024}
        s_nop 0
        buffer_load_dwordx4 v8, s[12:15], s36 offen nt lds
        s_add_u32 m0, s38, {s.VST}
        s_nop 0
        buffer_load_dwordx4 v7, s[16:19], s36 offen nt lds
        s_add_u32 m0, s38, {s.KST + 2048}
        s_nop 0
        buffer_load_dwordx4 v7, s[12:15], s37 offen nt lds
        s_add_u32 m0, s38, {s.VST + 1024}
        s_nop 0
        buffer_load_dwordx4 v8, s[16:19], s37 offen nt lds""")
        l = s.only_wave(3)
        a(f"s_sub_u32 s36, s34, 16384\nv_add_u32 v8, s36, v7\ns_mov_b32 m0, {s.KST}\nbuffer_load_dwordx4 v8, s[12:15], 0 offen nt lds\n{l}:")
    def kv_build(s):
        a = s.a
        KR, VR, SH, SF, KF, VF = 20, 44, 64, 72, 88, 136
        s.srd(20, "shift", D*8)
        a(f"""s_lshl_b32 s35, s32, 6
        v_lshl_add_u32 v6, v3, 2, s35 ; ch
        v_lshlrev_b32 v1, 3, v6
        buffer_load_dwordx4 {Q4(SH)}, v1, s[20:23], 0 offen
        buffer_load_dwordx4 {Q4(SH+4)}, v1, s[20:23], 0 offen offset:16""")
        s.load_d()
        a(f"""v_lshrrev_b32 v5, 4, v0
        v_lshlrev_b32 v7, 10, v5
        v_lshl_add_u32 v7, v3, 3, v7
        v_add_u32 v7, {s.KST}, v7
        v_and_b32 v8, 1, v5
        v_lshlrev_b32 v8, 7, v8
        v_add_u32 v12, v7, v8
        v_sub_u32 v13, v7, v8
        v_xor_b32 v8, 128, v8
        v_add_u32 v14, v7, v8
        v_sub_u32 v15, v7, v8
        v_lshlrev_b32 v5, 3, v5
        s_lshl_b32 s36, s33, 7
        v_add_u32 v5, s36, v5         ; s0
        v_sub_u32 v1, 2040, v5
        v_lshlrev_b32 v1, 1, v1
        v_lshl_add_u32 v1, v6, 12, v1
        s_waitcnt vmcnt(0)""")
        s.stamp(1, "kv landed")
        s.bar("kv in")
        for r in range(11):
            rho = r + 5; base = (12 if rho < 8 else 14) + (rho & 1)
            a(f"ds_read_b64 {P2(KR+2*r)}, v{base} offset:{128*rho}")
            if r >= 3: a(f"ds_read_b64 {P2(VR+2*(r-3))}, v{12+((r-3)&1)} offset:{s.VST-s.KST+128*(r-3)}")
            if r == 5:
                for e in range(4):
                    for hf in range(2): s.unpack(SF + (2*hf)*4 + e, SF + (2*hf+1)*4 + e, SH + 2*e + hf)
        cnt = 19
        for r in range(11):
            cnt -= 1 if r < 3 else 2
            a(f"s_waitcnt lgkmcnt({min(cnt, 15)})")
            for hf in range(2): s.unpack(KF + 4*r + 2*hf, KF + 4*r + 2*hf + 1, KR + 2*r + hf)
            if r >= 3:
                o = r - 3
                for hf in range(2): s.unpack(VF + 4*o + 2*hf, VF + 4*o + 2*hf + 1, VR + 2*o + hf)
                for hf in range(2): a(f"v_pk_mul_f32 {P2(8+2*hf)}, {P2(KF+4*(r-3)+2*hf)}, {P2(SF+12+2*hf)}")
                for j in (2, 1, 0):
                    for hf in range(2): a(f"v_pk_fma_f32 {P2(8+2*hf)}, {P2(KF+4*(r-j)+2*hf)}, {P2(SF+4*j+2*hf)}, {P2(8+2*hf)}")
                for hf in range(2): a(f"v_pk_mul_f32 {P2(VF+4*o+2*hf)}, {P2(8+2*hf)}, {P2(VF+4*o+2*hf)}")
        s.stamp(2, "kv computed")
        for e in range(4):
            t = 20 + 4*e
            for d in range(4): a(f"v_cvt_pk_bf16_f32 v{t+d}, v{VF+4*(7-2*d)+e}, v{VF+4*(6-2*d)+e}")
            a(f"s_mov_b32 s30, {WS_KV + e*4096}\nbuffer_store_dwordx4 {Q4(t)}, v1, {W}, s30 offen {'' if s.opt.get('kvlocal', 0) else 'sc1'}")
    def load_d(s):
        s.srd(24, "ssmd", D*2)
        s.a("s_lshl_b32 s37, s7, 2\ns_add_u32 s37, s37, s3\ns_lshl_b32 s37, s37, 1\nv_mov_b32 v1, s37\nbuffer_load_ushort v190, v1, s[24:27], 0 offen")
    def poison(s):
        a = s.a; l = s.only_wave(5)
        a(f"s_cmp_ge_u32 s5, 28\ns_cbranch_scc1 {l}\ns_mul_i32 s37, s58, 14\ns_add_u32 s37, s37, s59\ns_lshl_b32 s37, s37, 10\ns_add_u32 s37, s37, {WS_GRAN}\nv_lshlrev_b32 v1, 4, v2")
        for j in range(4): a(f"v_mov_b32 v{16+j}, -1")
        a(f"buffer_store_dwordx4 v[16:19], v1, {W}, s37 offen sc1\n{l}:")
    def k_load(s):
        a = s.a
        s.srd(12, "ssmk", D*S*2)
        a(f"""s_sub_u32 s30, s3, 4
        s_lshl_b32 s33, s7, 2
        s_add_u32 s33, s33, s30
        s_mul_i32 s34, s30, {CH_STRIDE}
        s_lshl_b32 s36, s33, 12
        v_lshlrev_b32 v5, 4, v2
        v_mov_b32 v6, s36
        buffer_load_dword v8, v6, s[12:15], 0 offen""")
        for i in range(4):
            a(f"s_add_u32 m0, s34, {KA_OFF+64+1024*i}\ns_add_u32 s37, s36, {1024*i}\nbuffer_load_dwordx4 v5, s[12:15], s37 offen nt lds")
            a(f"s_add_u32 m0, s34, {KB_OFF+64+1024*i}\ns_add_u32 s37, s36, {4+1024*i}\nbuffer_load_dwordx4 v5, s[12:15], s37 offen nt lds")
        a(f"""v_and_b32 v10, 31, v2
        v_min_u32 v10, 27, v10
        v_lshlrev_b32 v10, 4, v10
        v_lshrrev_b32 v11, 5, v2
        v_mul_u32_u24 v11, {KVE_OFF}, v11
        v_add3_u32 v10, v10, v11, s34
        v_mov_b32 v12, 0
        v_mov_b32 v13, 0
        v_mov_b32 v14, 0
        v_mov_b32 v15, 0
        ds_write_b128 v10, v[12:15] offset:4096
        v_mov_b32 v10, {MISC+768}
        ds_write_b64 v10, v[12:13]
        v_and_b32 v10, 1, v4
        v_mul_u32_u24 v10, {KB_OFF - KA_OFF}, v10
        v_lshl_add_u32 v10, v3, 2, v10
        v_add_u32 v10, s34, v10
        v_and_b32 v11, 31, v2""")
    def k_patch(s):
        s.a(f"v_cmp_eq_u32 vcc, 31, v11\ns_waitcnt vmcnt(0)\nv_cndmask_b32 v8, 0, v8, vcc\nds_write_b32 v10, v8 offset:{KA_OFF}\ns_waitcnt lgkmcnt(0)")
    def gemv_setup(s):
        a = s.a
        s.srd(16, "wmod", D*6*D*2); s.srd(20, "c", D*2)
        a(f"""s_lshl_b32 s36, s34, 8
        v_lshl_add_u32 v29, v2, 2, s36
        buffer_load_dword v28, v29, s[20:23], 0 offen
        s_mul_i32 s36, s34, {128*12288}
        s_lshl_b32 s37, s35, 7
        s_add_u32 s46, s36, s37
        v_lshrrev_b32 v20, 3, v2
        v_mul_u32_u24 v20, 12288, v20
        v_and_b32 v21, 7, v2
        v_and_b32 v22, 1, v4
        v_lshlrev_b32 v22, 1, v22
        v_xor_b32 v21, v21, v22
        v_lshl_add_u32 v20, v21, 4, v20
        v_xor_b32 v21, 64, v20
        s_lshl_b32 s41, s40, 8
        s_add_u32 s41, s41, {MISC - 1024}
        s_lshl_b32 s40, s40, 14
        s_add_u32 s40, s40, {HB}
        s_mov_b32 s45, s35""")
    def gemv_issue(s):
        for i in range(16):
            s.a(f"s_add_u32 m0, s40, {1024*i}\nbuffer_load_dwordx4 v{20+(i&1)}, s[16:19], s46 offen nt lds\ns_add_u32 s46, s46, {8*12288}")
    GR = 208
    def silu(s):
        a = s.a; CF, AD = s.GR, s.GR+16
        a(f"""v_lshlrev_b32 v22, 16, v28
        v_and_b32 v23, 0xffff0000, v28
        v_mul_f32 v24, {fbits(-LOG2E)}, v22
        v_mul_f32 v25, {fbits(-LOG2E)}, v23
        v_exp_f32 v24, v24
        v_exp_f32 v25, v25
        v_add_f32 v24, 1.0, v24
        v_add_f32 v25, 1.0, v25
        v_rcp_f32 v24, v24
        v_rcp_f32 v25, v25
        v_mul_f32 v22, v22, v24
        v_mul_f32 v23, v23, v25
        v_cvt_pk_bf16_f32 v22, v22, v23
        v_lshl_add_u32 v23, v2, 2, s41
        ds_write_b32 v23, v22
        v_lshl_add_u32 v23, v4, 4, s41
        s_waitcnt lgkmcnt(0)""")
        for kk in range(4): a(f"ds_read_b128 {Q4(CF+4*kk)}, v23 offset:{64*kk}")
        a(f"""v_bfe_u32 v24, v2, 2, 2
        v_and_b32 v25, 3, v2
        v_lshl_add_u32 v26, v4, 3, v24
        v_lshlrev_b32 v26, 7, v26
        v_lshl_add_u32 v26, v25, 3, v26
        v_add_u32 v26, s40, v26
        v_lshrrev_b32 v24, 1, v24
        v_and_b32 v25, 1, v4
        v_lshl_or_b32 v24, v25, 1, v24""")
        for u in range(4): a(f"v_xor_b32 v25, {u}, v24\nv_lshl_add_u32 v{AD+u}, v25, 5, v26")
        a("s_waitcnt lgkmcnt(0)")
    def gemv_finish(s, WF):
        a = s.a; CF, AD, AC = s.GR, s.GR+16, s.GR+20
        for kp in range(2):
            for kk in (2*kp, 2*kp+1):
                for u in range(4):
                    b = WF + 16*(kk & 1) + 4*u
                    a(f"ds_read_b64_tr_b16 {P2(b)}, v{AD+u} offset:{4096*kk}\nds_read_b64_tr_b16 {P2(b+2)}, v{AD+u} offset:{4096*kk+512}")
                if kk & 1 == 0: a("s_waitcnt lgkmcnt(4)")
            a("s_waitcnt lgkmcnt(0)")
            for kk in (2*kp, 2*kp+1):
                for u in range(4): a(f"v_mfma_f32_16x16x32_bf16 {Q4(AC+4*u)}, {Q4(CF+4*kk)}, {Q4(WF+16*(kk&1)+4*u)}, " + (Q4(AC+4*u) if kk else "0"))
        for u in range(1, 4): a(f"v_cmp_eq_u32 vcc, {u}, v4\nv_cndmask_b32 v{AC}, v{AC}, v{AC+4*u}, vcc")
        a(f"v_lshl_add_u32 v23, v2, 2, s41\nds_write_b32 v23, v{AC}\ns_waitcnt lgkmcnt(0)")
    def gemv_store(s, XN, lg):
        a = s.a
        s.gemv_finish(XN)
        s.spin(MISC+772)
        a(f"s_cmp_lg_u32 s3, 4\ns_cbranch_scc1 {lg}\nv_lshl_add_u32 v23, v2, 2, s41")
        for w in range(4): a(f"ds_read_b32 v{24+w}, v23 offset:{256*w}")
        a(f"""s_mul_i32 s37, s47, 24576
        s_lshl_b32 s38, s45, 8
        s_add_u32 s37, s37, s38
        v_lshlrev_b32 v23, 2, v2
        s_waitcnt lgkmcnt(0)
        v_add_f32 v24, v24, v25
        v_add_f32 v26, v26, v27
        v_add_f32 v24, v24, v26
        buffer_store_dword v24, v23, {W}, s37 offen sc1
        {lg}:""")
    def spin(s, off):
        a = s.a; sp, so = a.label("L_spin"), a.label("L_spun")
        a(f"""v_mov_b32 v7, {off}
        v_mov_b32 v6, 1
        s_mov_b64 exec, 1
        ds_add_u32 v7, v6
        s_mov_b64 exec, -1
        s_mov_b32 s39, 0
        {sp}:
        ds_read_b32 v6, v7
        s_add_u32 s39, s39, 1
        s_cmp_gt_u32 s39, 200000
        s_cbranch_scc1 {so}
        s_waitcnt lgkmcnt(0)
        v_cmp_ne_u32 vcc, 4, v6
        s_cbranch_vccnz {sp}
        {so}:""")
    def front(s):
        a = s.a
        a("s_waitcnt lgkmcnt(0)")
        s.kv_stage()
        a.srd(8, PTR["ws"], 128*MB)
        a("s_cmp_ge_u32 s3, 4\ns_cbranch_scc1 L_B")
    def gemv_task(s, late=False):
        s.a("s_add_u32 s33, s32, 160" if late else f"s_mul_i32 s33, s4, {s.NG}\ns_add_u32 s33, s33, s5")
        s.a("""s_sub_u32 s40, s3, 4
        s_lshr_b32 s35, s33, 1
        s_and_b32 s47, s33, 1
        s_lshl_b32 s34, s47, 2
        s_add_u32 s34, s34, s40""")
        s.gemv_setup()
    def gemv_part(s, lo, hi, wait=None):
        a = s.a; l, l2 = a.label("L_gp"), a.label("L_gp")
        if hi > lo:
            a(f"s_cmp_ge_u32 s5, {s.NG}\ns_cbranch_scc1 {l}\ns_cmp_lt_u32 s3, {4+lo}\ns_cbranch_scc1 {l}\ns_cmp_ge_u32 s3, {4+hi}\ns_cbranch_scc1 {l}")
            s.gemv_issue()
            if wait is not None: wait(); a(f"s_waitcnt vmcnt(16)\ns_branch {l2}")
        a(f"{l}:")
        if wait is not None: wait(); a(f"s_waitcnt vmcnt(0)\n{l2}:")
    def touch(s, srd="s[12:15]"):
        s.a(f"s_sub_u32 s30, s3, 4\ns_mul_i32 s33, s2, 28672\ns_mul_i32 s39, s30, 7168\ns_add_u32 s33, s33, s39\ns_add_u32 s33, s33, {3584 if s.opt.get('thalf', 1) else 0}\nv_min_u32 v7, {27 if s.opt.get('thalf', 1) else 55}, v2\nv_lshlrev_b32 v7, 7, v7\nbuffer_load_dword v204, v7, {srd}, s33 offen")
    def front_B(s):
        a = s.a; kl = s.opt.get("klate", 1); loc = s.opt.get("kvlocal", 0)
        a(f"s_load_dword s6, s[94:95], {WS_EPOCH}")
        if not s.opt.get("nocodepf"): s.code_prefetch(6)
        s.poison()
        s.gemv_task()
        s.hop(0, 4)
        a("s_waitcnt lgkmcnt(0)\ns_add_u32 s6, s6, 1")
        if loc: l = s.only_wave(7); s.hello_send(); a(f"{l}:")
        a("s_waitcnt vmcnt(1)")
        s.bar("kv in")
        if loc: l = s.only_wave(7); s.hello_check(); a(f"{l}:")
        if kl == 2: s.k_load()
        t3 = s.opt.get("touch", 0) == 3
        if t3: s.srd(24, "win", D*F*2); s.touch("s[24:27]")
        s.ld_setup()
        a(f"s_waitcnt vmcnt({(9 if kl == 2 else 0) + t3})")
        s.silu()
        s.stamp(3, None)
        s.bar("kv stored")
        l = s.only_wave(7); s.set_flag(0, "s7", loc); a(f"{l}:")
        if kl == 1: s.k_load()
        if s.opt.get("touch", 0) == 4: s.srd(24, "win", D*F*2); s.touch("s[24:27]")
        l = s.only_wave(7); a("s_andn2_b32 s37, s7, 15"); s.poll(0, "s37", 16, fl=s.opt.get("pollfl", "sc1"))
        if loc: s.acquire_if_far()
        a(f"{l}:")
        s.k_patch()

    def conv_A(s):
        a = s.a
        s.kv_build()
        a(f"""s_mul_i32 s34, s3, {CH_STRIDE}
        v_and_b32 v10, 1, v3
        v_xor_b32 v11, 1, v10
        v_mul_u32_u24 v11, {KVE_OFF}, v11
        v_lshrrev_b32 v16, 1, v3
        v_sub_u32 v16, 7, v16
        v_lshlrev_b32 v16, 6, v16
        v_lshl_add_u32 v16, v4, 4, v16
        v_add3_u32 v16, v16, v11, s34
        v_mul_u32_u24 v11, {KB_OFF - KA_OFF - 4}, v10
        v_sub_u32 v11, {KB_OFF}, v11
        v_lshl_add_u32 v11, v3, 2, v11
        v_lshl_add_u32 v11, v4, 4, v11
        v_add_u32 v17, s34, v11
        v_lshlrev_b32 v10, 2, v4
        v_add_u32 v10, v10, v3
        v_sub_u32 v10, 15, v10
        v_lshlrev_b32 v5, 4, v2
        s_lshl_b32 s35, s7, 2
        s_add_u32 s35, s35, s3
        s_lshl_b32 s35, s35, 12
        s_add_u32 s35, s35, {WS_KV}
        v_mov_b32 v18, s34
        v_mov_b32 v19, 0""")
        for w in range(4): a(f"v_cmp_eq_u32 vcc, {w}, v10\nv_cndmask_b32 v{12+w}, 0, v190, vcc")
        a("s_waitcnt vmcnt(0)")
        s.stamp(3, "kv stored")
        s.bar("kv stored")
        s.bar("sync1")
        s.stamp(4, "sync1 released")
        for i in range(4):
            a(f"s_add_u32 m0, s34, {1024*i}\ns_add_u32 s37, s35, {1024*i}\nbuffer_load_dwordx4 v5, {W}, s37 offen {s.opt.get('kvld', '') if s.opt.get('kvlocal', 0) else 'sc1'} lds")
            if s.opt.get("kvemis"): a(f"s_add_u32 m0, s34, {KVE_OFF+1024*i}\ns_add_u32 s37, s35, {2+1024*i}\nbuffer_load_dwordx4 v5, {W}, s37 offen sc1 lds")
        ACC, SET = 24, [56, 120]
        def reads(st, mu):
            out = []
            for n in range(8):
                b = SET[st] + 32 + 4*n
                out.append(f"ds_read_b128 {Q4(SET[st]+4*n)}, v16 offset:{512*(7-n)+64*mu}")
                out.append(f"ds_read_b64 {P2(b)}, v17 offset:{512*n+64*mu}")
                out.append(f"ds_read_b64 {P2(b+2)}, v17 offset:{512*n+64*mu+8}")
            return out
        if s.opt.get("kvemis"): a(f"s_waitcnt vmcnt(0)\nds_write_b16 v18, v19 offset:{KVE_OFF+4094}")
        else:
            a("v_add_u32 v18, s34, v5")
            for i in range(4): a(f"s_waitcnt vmcnt({3-i})\nds_read_b128 {Q4(24+8*i)}, v18 offset:{1024*i}")
            for i in range(4): a(f"ds_read_b32 v{28+8*i}, v18 offset:{1024*i+16}")
            for i in range(4):
                a(f"s_waitcnt lgkmcnt(3)")
                for j in range(4): a(f"v_alignbit_b32 v{24+8*i+j}, v{25+8*i+j}, v{24+8*i+j}, 16")
                a(f"ds_write_b128 v18, {Q4(24+8*i)} offset:{KVE_OFF+1024*i}")
        s.stamp(5, "kv in lds")
        cm = s.opt.get("cmode", 2)
        if cm:
            KVF, KF = 56, [88, 120]
            kreads = lambda mu: [f"ds_read_b64 {P2(KF[mu & 1]+4*n+2*h)}, v17 offset:{512*n+64*mu+8*h}" for n in range(8) for h in range(2)]
            nl = s.opt.get("klast", 16)
            for r in kreads(0)[:16-nl]: a(r)
            s.bar("kv landed")
            for mu in range(8):
                for n in range(8): a(f"ds_read_b128 {Q4(KVF+4*n)}, v16 offset:{512*(7-n)+64*mu}")
                for r in kreads(mu)[16-nl:]: a(r)
                nxt = kreads(mu+1)[:16-nl] if mu < 7 else []; k = 0
                for i in range(8):
                    a(f"s_waitcnt lgkmcnt({min(15, (0 if cm == 2 else 7 - i) + k)})")
                    for j in range(8-i):
                        t = i+j
                        if mu == 0 and j == 0: a(f"v_mfma_f32_16x16x32_bf16 {Q4(ACC+4*t)}, {Q4(KVF+4*i)}, v[12:15], " + ("0" if i == 0 else Q4(ACC+4*t)))
                        a(f"v_mfma_f32_16x16x32_bf16 {Q4(ACC+4*t)}, {Q4(KVF+4*i)}, {Q4(KF[mu & 1]+4*j)}, " + ("0" if mu == 0 and i == 0 and j else Q4(ACC+4*t)))
                        if i and nxt: a(nxt.pop(0)); k += 1
        else:
            for r in reads(0, 0): a(r)
            s.bar("kv landed")
            for mu in range(8):
                st = mu & 1
                nxt = reads(1-st, mu+1) if mu < 7 else []
                a("s_waitcnt lgkmcnt(0)")
                ms = []
                if mu == 0:
                    for t in range(8): ms.append(f"v_mfma_f32_16x16x32_bf16 {Q4(ACC+4*t)}, {Q4(SET[0]+4*t)}, v[12:15], 0")
                for j in range(8):
                    for i in range(8-j):
                        t = i+j
                        ms.append(f"v_mfma_f32_16x16x32_bf16 {Q4(ACC+4*t)}, {Q4(SET[st]+4*i)}, {Q4(SET[st]+32+4*j)}, {Q4(ACC+4*t)}")
                for n, m in enumerate(ms):
                    a(m)
                    if n < len(nxt): a(nxt[n])
                    cs = s.opt.get("cslow")
                    if cs and (mu < cs[0] if cs[0] > 0 else mu >= -cs[0]) and n % cs[1] == 0: a(f"s_nop {cs[2]}")
        if s.opt.get("wlate"): s.a("s_barrier")
        s.stamp(6, "conv mfma done")
        a(f"s_mul_i32 s37, s3, {CH_STRIDE + 128}\nv_lshlrev_b32 v10, 2, v3\nv_lshl_add_u32 v10, v4, 7, v10\nv_add_u32 v10, s37, v10")
        for t in range(8):
            for jp in range(2):
                r = 56 + 2*t + jp
                a(f"v_cvt_pk_bf16_f32 v{r}, v{ACC+4*t+2*jp}, v{ACC+4*t+2*jp+1}\nds_write_b32 v10, v{r} offset:{512*t+64*jp}")
        a(f"""v_bfe_u32 v11, v2, 1, 2
        v_lshrrev_b32 v12, 3, v2
        v_and_b32 v14, 1, v2
        v_mul_u32_u24 v13, {CH_STRIDE + 128}, v11
        v_lshl_add_u32 v13, v12, 5, v13
        v_lshl_add_u32 v13, v14, 4, v13
        s_lshl_b32 s37, s3, 10
        v_add_u32 v13, s37, v13
        s_lshl_b32 s37, s7, 7
        v_and_b32 v11, 7, v2
        v_lshl_add_u32 v11, v11, 4, s37
        v_lshl_add_u32 v11, v12, 15, v11
        s_lshl_b32 s37, s3, 20
        s_add_u32 s37, s37, {WS_Y2}
        s_waitcnt lgkmcnt(0)""")
        if s.opt.get("aspin", 1): s.spin(MISC+768)
        else: s.bar("y staged")
        s.stamp(7, "y staged")
        for q in range(4): a(f"ds_read_b128 {Q4(72+4*q)}, v13 offset:{256*q}")
        for q in range(4):
            a(f"s_waitcnt lgkmcnt({3-q})\nbuffer_store_dwordx4 {Q4(72+4*q)}, v11, {W}, s37 offen sc1\ns_add_u32 s37, s37, {16*16384}")
        a("s_waitcnt vmcnt(0)")
        s.stamp(8, "y stored")
        apre = s.opt.get("xpre", 0) in (3, 4)
        if apre:
            s.srd(12, "win", D*F*2)
            a(f"""s_and_b32 s30, s3, 1
            v_lshlrev_b32 v6, 1, v4
            v_xor_b32 v6, v6, v3
            s_lshl_b32 s35, s30, 5
            v_add_u32 v16, s35, v4
            v_mul_u32_u24 v5, {F*2}, v16
            s_lshl_b32 s36, s59, 8
            v_add_u32 v5, s36, v5""")
            for i in range(8): a(f"v_xor_b32 v7, {8*((i>>1)&1)}, v6\nv_lshl_add_u32 v7, v7, 4, v5\nv_add_u32 v{120+i}, {i*4*F*2}, v7")
            a(f"s_mul_i32 s33, s2, 21504\ns_mul_i32 s39, s3, 7168\ns_add_u32 s33, s33, s39\ns_add_u32 s33, s33, {256*7168 + 3584}\nv_min_u32 v7, 27, v2\nv_lshlrev_b32 v7, 7, v7")
        seq = ["y stored", "stats1", "sync2", "y landed", "stats2", "h2 stored"]; cut = 1 if s.opt.get("xpre", 0) == 4 else 4
        for b in seq[:cut]: s.bar(b)
        if apre:
            l, l2 = a.label("L_apre"), a.label("L_apre")
            a(f"s_cmp_ge_u32 s5, 28\ns_cbranch_scc1 {l}\ns_cmp_ge_u32 s3, 2\ns_cbranch_scc1 {l}")
            for k in range(4): s.ld_ops("w_in2", k)
            a(f"{l}:\ns_cmp_eq_u32 s3, 3\ns_cbranch_scc1 {l2}\nbuffer_load_dword v8, v7, s[12:15], s33 offen\n{l2}:")
        for b in seq[cut:]: s.bar(b)
        if apre: a("s_waitcnt vmcnt(0)")

    def row_B(s):
        a = s.a; o = s.opt
        XR, YR, MODV, XF, XN, T = 164, 8, 180, 32, 64, 96
        s.front_B()
        s.stamp(4, None)
        s.bar("sync1")
        s.bar("kv landed")
        if o.get("wlate"): s.a("s_barrier")
        if not o.get("xfirst", 0): s.gemv_part(o.get("e1", 0) + o.get("e2", 0), 4)
        s.srd(24, "q", S*D*2)
        a("v_and_b32 v6, 255, v0\nv_lshlrev_b32 v1, 3, v6\ns_lshl_b32 s32, s7, 14")
        for r in range(8):
            if r % 2 == 0: a(f"s_add_u32 s38, s32, {2048*r}")
            a(f"buffer_load_dwordx2 {P2(XR+2*r)}, v1, s[24:27], s38 offen offset:{2048*(r&1)} nt")
        if o.get("xfirst", 0): s.gemv_part(o.get("e1", 0) + o.get("e2", 0), 4)
        s.srd(12, "win", D*F*2)
        touch = s.touch
        if o.get("touch", 0) == 0: touch()
        a(f"""v_lshlrev_b32 v200, 4, v6
        v_bfe_u32 v201, v6, 2, 2
        v_lshlrev_b32 v6, 6, v6
        v_add_u32 v6, {YST}, v6""")
        for e in range(4): a(f"v_xor_b32 v7, {e}, v201\nv_lshl_add_u32 v{116+e}, v7, 4, v6")
        a(f"""s_lshl_b32 s37, s30, 2
        s_add_u32 s37, s37, {MISC}
        v_and_b32 v202, 1, v4
        v_lshrrev_b32 v203, 1, v4
        v_lshl_or_b32 v202, v202, 1, v203
        v_lshl_add_u32 v202, v202, 5, s37
        v_and_b32 v203, 7, v2
        v_lshlrev_b32 v203, 5, v203
        v_add_u32 v203, {MISC}, v203
        v_xor_b32 v201, v2, v4
        v_lshlrev_b32 v201, 5, v201""")
        def partial(src, off, pk=True):
            for r in range(8):
                x = src + 4*r
                if pk:
                    a(f"""v_pk_add_f32 {P2(T+16)}, {P2(x)}, {P2(x+2)}
                    v_pk_mul_f32 {P2(T+18)}, {P2(x)}, {P2(x)}
                    v_pk_fma_f32 {P2(T+18)}, {P2(x+2)}, {P2(x+2)}, {P2(T+18)}
                    v_add_f32 v{T+r}, v{T+16}, v{T+17}
                    v_add_f32 v{T+8+r}, v{T+18}, v{T+19}""")
                else:
                    a(f"v_add_f32 v{T+r}, v{x}, v{x+1}\nv_mul_f32 v{T+8+r}, v{x}, v{x}\nv_add_f32 v{T+16}, v{x+2}, v{x+3}")
                    for j in (1, 2, 3): a(f"v_fmac_f32 v{T+8+r}, v{x+j}, v{x+j}")
                    a(f"v_add_f32 v{T+r}, v{T+r}, v{T+16}")
            for p in range(8): a(f"v_permlane32_swap_b32 v{T+2*p}, v{T+2*p+1}")
            for p in range(8): a(f"v_add_f32 v{T+2*p}, v{T+2*p}, v{T+2*p+1}")
            for p in range(4): a(f"v_permlane16_swap_b32 v{T+4*p}, v{T+4*p+2}")
            for p in range(4): a(f"v_add_f32 v{T+4*p}, v{T+4*p}, v{T+4*p+2}")
            for sh in (8, 4, 2, 1):
                for p in range(4): a(f"v_add_f32_dpp v{T+4*p}, v{T+4*p}, v{T+4*p} row_ror:{sh} row_mask:0xf bank_mask:0xf")
            for p in range(4): a(f"ds_write_b32 v202, v{T+4*p} offset:{off + (p&1)*128 + (p>>1)*16}")
            a("s_waitcnt lgkmcnt(0)")
        def final(off, prod=False):
            a(f"""ds_read_b128 {Q4(T)}, v203 offset:{off}
            ds_read_b128 {Q4(T+4)}, v203 offset:{off+16}
            s_waitcnt lgkmcnt(0)
            v_add_f32 v{T}, v{T}, v{T+1}
            v_add_f32 v{T+2}, v{T+2}, v{T+3}
            v_add_f32 v{T+4}, v{T+4}, v{T+5}
            v_add_f32 v{T+6}, v{T+6}, v{T+7}
            v_add_f32 v{T}, v{T}, v{T+2}
            v_add_f32 v{T+4}, v{T+4}, v{T+6}
            v_mul_f32 v{T}, {fbits(-1/1024)}, v{T}
            v_mul_f32 v{T+4}, {fbits(1/1024)}, v{T+4}
            v_fma_f32 v{T+4}, -v{T}, v{T}, v{T+4}
            v_max_f32 v{T+4}, 0, v{T+4}
            v_add_f32 v{T+4}, {fbits(1e-5)}, v{T+4}
            v_rsq_f32 v{T+4}, v{T+4}""")
            if prod: a(f"v_mul_f32 v{T}, v{T}, v{T+4}")
            for r in range(8): a(f"v_readlane_b32 s{64+2*r}, v{T}, {r}\nv_readlane_b32 s{65+2*r}, v{T+4}, {r}")
        if o.get("touch", 0) == 1: touch()
        s.hop(4, s.NPAD)
        s.stamp(5, None)
        lg = a.label("L_nogemv"); a(f"s_cmp_ge_u32 s5, {s.NG}\ns_cbranch_scc1 {lg}\ns_waitcnt vmcnt({(1 if o.get('touch', 0) < 2 else 0) + (0 if o.get('xfirst', 0) else 8)})")
        s.gemv_store(XN, lg)
        s.srd(16, "wsp", S*S*2); s.srd(24, "win", D*F*2); s.srd(20, "wout", FH*D*2)
        s.stamp(6, None)
        if not s.opt.get("aspin", 1): s.bar("y staged")
        a("s_waitcnt vmcnt(0)")
        s.stamp(8, None)
        s.bar("y stored")
        l = s.only_wave(7); s.set_flag(1, "s2"); a(f"{l}:")
        if o.get("touch", 0) == 2 and o.get("xpre", 0) not in (3, 4): touch()
        def preload():
            l = a.label("L_nopre")
            a(f"s_cmp_ge_u32 s3, 6\ns_cbranch_scc1 {l}\ns_cmp_ge_u32 s5, 28\ns_cbranch_scc1 {l}")
            for g in range(4): s.ld_ops("w_in2", g)
            a(f"{l}:")
        if o.get("xpre", 0) == 0: preload()
        for r in range(8):
            for hf in range(2): s.unpack(XF+4*r+2*hf, XF+4*r+2*hf+1, XR+2*r+hf)
        partial(XF, 0)
        s.bar("stats1")
        final(0)
        def normalise():
            for r in range(8):
                for hf in (0, 2): a(f"v_pk_add_f32 {P2(XN+4*r+hf)}, {P2(XF+4*r+hf)}, s[{64+2*r}:{65+2*r}] op_sel_hi:[1,0]")
                for hf in (0, 2): a(f"v_pk_mul_f32 {P2(XN+4*r+hf)}, {P2(XN+4*r+hf)}, s[{64+2*r}:{65+2*r}] op_sel:[0,1] op_sel_hi:[1,1]")
        normalise()
        s.stamp(9, "ln1 done")
        if o.get("xpre", 0) == 2: preload()
        l = s.only_wave(7); s.poll(1, None, 256)
        a(f"s_cmp_lg_u32 s2, 0\ns_cbranch_scc1 {l}\nv_mov_b32 v250, s6\nv_mov_b32 v251, {WS_EPOCH}\ns_mov_b64 exec, 1\nbuffer_store_dword v250, v251, {W}, 0 offen sc1\ns_mov_b64 exec, -1\n{l}:")
        a(f"s_lshl_b32 s33, s30, 12\ns_add_u32 s48, s33, {YST}\ns_lshl_b32 s33, s30, 13\ns_lshr_b32 s38, s7, 1\ns_lshl_b32 s38, s38, 15\ns_add_u32 s33, s33, s38\ns_and_b32 s38, s7, 1\ns_lshl_b32 s38, s38, 4\ns_add_u32 s33, s33, s38\ns_add_u32 s33, s33, {WS_Y2}")
        s.bar("sync2")
        s.stamp(10, "sync2 released")
        for i in range(4): a(f"s_add_u32 m0, s48, {1024*i}\ns_add_u32 s38, s33, {2048*i}\nbuffer_load_dwordx4 v201, {W}, s38 offen sc1 lds")
        for ms in ((0, 1, 2), (3, 4)):
            for m in ms:
                for hf, base in enumerate((MODV, 208)): a(f"s_mov_b32 s38, {WS_MOD + 24576*hf + 4096*m}\nbuffer_load_dwordx4 {Q4(base+4*m)}, v200, {W}, s38 offen sc1")
        a("s_waitcnt vmcnt(10)")
        s.bar("y landed")
        s.stamp(11, "y landed")
        for e in range(4): a(f"ds_read_b128 {Q4(YR+4*e)}, v{116+e}")
        YF = T
        a("s_waitcnt vmcnt(4)")
        for n in range(0, 12, 2): a(f"v_pk_add_f32 {P2(MODV+n)}, {P2(MODV+n)}, {P2(208+n)}")
        for hf in (0, 2): a(f"v_pk_fma_f32 {P2(MODV+4+hf)}, {P2(MODV+4+hf)}, {P2(MODV+8+hf)}, {P2(MODV+8+hf)}")
        for hf in (0, 2): a(f"v_pk_mul_f32 {P2(MODV+hf)}, {P2(MODV+hf)}, {P2(MODV+8+hf)}")
        for r in range(8):
            for hf in (0, 2): a(f"v_pk_fma_f32 {P2(XN+4*r+hf)}, {P2(XN+4*r+hf)}, {P2(MODV+4+hf)}, {P2(MODV+hf)}")
        for q in range(4):
            if q == 0: a("s_waitcnt lgkmcnt(0)")
            for e in range(4): s.unpack(YF+e, YF+4+e, YR+4*e+q)
            for rr in range(2):
                for hf in (0, 2): a(f"v_pk_fma_f32 {P2(XF+4*(2*q+rr)+hf)}, {P2(XN+4*(2*q+rr)+hf)}, {P2(YF+4*rr+hf)}, {P2(XF+4*(2*q+rr)+hf)}")
        def x1_pack():
            for r in range(8):
                for hf in range(2): a(f"v_cvt_pk_bf16_f32 v{XR+2*r+hf}, v{XF+4*r+2*hf}, v{XF+4*r+2*hf+1}")
        if o.get("x1early", 1): x1_pack(); s.x1_store()
        partial(XF, 256)
        a(f"s_waitcnt vmcnt({8 if o.get('x1early', 1) else 0})")
        for n in range(12, 20, 2): a(f"v_pk_add_f32 {P2(MODV+n)}, {P2(MODV+n)}, {P2(208+n)}")
        for hf in (0, 2): a(f"v_pk_add_f32 {P2(MODV+16+hf)}, {P2(MODV+16+hf)}, 1.0 op_sel_hi:[1,0]")
        a("s_lshl_b32 s33, s7, 15\nv_lshrrev_b32 v6, 7, v1\n" + slot_v("v6", "v6", "v7") + "\nv_and_b32 v205, 127, v1\nv_lshl_add_u32 v205, v6, 7, v205")
        s.bar("stats2")
        final(256, True)
        for r in range(8):
            a(f"v_mov_b32 v{T+8+2*(r&1)}, s{64+2*r}")
            for hf in (0, 2): a(f"v_pk_fma_f32 {P2(XN+4*r+hf)}, {P2(XF+4*r+hf)}, s[{64+2*r}:{65+2*r}], {P2(T+8+2*(r&1))} op_sel:[0,1,0] op_sel_hi:[1,1,0]")
            for hf in (0, 2): a(f"v_pk_fma_f32 {P2(XN+4*r+hf)}, {P2(XN+4*r+hf)}, {P2(MODV+16+hf)}, {P2(MODV+12+hf)}")
            for hf in range(2): a(f"v_cvt_pk_bf16_f32 v{YR+2*r+hf}, v{XN+4*r+2*hf}, v{XN+4*r+2*hf+1}")
            a(f"s_add_u32 s38, s33, {WS_H2 + AP_*r}\nbuffer_store_dwordx2 {P2(YR+2*r)}, v205, {W}, s38 offen sc1")
        s.stamp(12, "h2 issued")
        a("s_waitcnt vmcnt(0)")
        s.stamp(13, "h2 stored")
        s.bar("h2 stored")
        l = s.only_wave(7); s.set_flag(2, "s7"); a(f"{l}:")
        if o.get("xpre", 0) == 1: preload()
        if not o.get("x1early", 1):
            x1_pack()
            if not o.get("x1late", 0): s.x1_store()
    def x1_store(s):
        for r in range(8):
            if r % 2 == 0: s.a(f"s_add_u32 s31, s32, {WS_X1 + 2048*r}")
            s.a(f"buffer_store_dwordx2 {P2(164+2*r)}, v1, {W}, s31 offen offset:{2048*(r&1)} {s.opt.get('x1fl', 'sc1')}")
        return 8

    RING = {1: dict(MY=128, U=4, LX=3, LY=3, X=lambda k: (k % 4)*32768, Y=lambda k: (k % 4)*32768 + 16384),
            3: dict(MY=64, U=8, LX=7, LY=3, X=lambda k: (k % 8)*16384, Y=lambda k: 131072 + (k % 4)*8192)}
    OPS = {"w_in2": ("X", 1, "s[12:15]", "", 120, lambda g: g*64*F*2 + FH*2, 64*F*2), "w_in1": ("X", 1, "s[24:27]", "sc1", 120, lambda g: (g-16)*64*F*2, 64*F*2),
           "h2": ("Y", 1, W, "sc1", 128, lambda g: SLOT(g % 16)*128, None), "z2": ("X", 1, W, "sc1", 136, lambda g: (g-32)*64*AP_, 64*AP_),
           "w_sp": ("Y", 1, "s[16:19]", "", 144, lambda g: (g-32)*128, 128), "w_spc": ("Y", 1, "s[64:67]", "sc1", 144, lambda g: (g-32)*128, 128),
           "w_out": ("X", 3, "s[20:23]", "sc1", 152, lambda g: g*64*D*2, 64*D*2), "p": ("Y", 3, W, "sc1", 160, lambda g: SLOT(g)*128, None)}
    G_, N_, K_ = 20, 24, 27
    def consumer(s, ring, FR):
        a = s.a; c = s.RING[ring]; MY, NS = c["MY"], c["U"]; NYT = MY//32
        a(f"""s_and_b32 s35, s3, 1
        s_lshr_b32 s36, s3, 1
        v_bfe_u32 v5, v2, 2, 2
        v_and_b32 v6, 3, v2
        v_lshl_add_u32 v7, v4, 3, v5
        v_lshlrev_b32 v7, 8, v7
        v_lshl_add_u32 v7, v6, 3, v7
        v_and_b32 v6, 1, v4
        v_xor_b32 v6, s35, v6
        v_lshl_add_u32 v7, v6, 7, v7""")
        for i in range(4): a(f"v_xor_b32 v6, {i}, v5\nv_lshl_add_u32 v{8+i}, v6, 5, v7")
        a(f"""s_mul_i32 s37, s36, {MY//2*128}
        v_lshrrev_b32 v5, 1, v3
        v_xor_b32 v5, v5, v4
        v_lshlrev_b32 v5, 4, v5
        v_lshl_add_u32 v5, v3, 7, v5
        v_add_u32 v12, s37, v5
        v_add_u32 v12, {c["Y"](0) & ~0xffff}, v12
        v_xor_b32 v13, 64, v12""")
        def reads(k, ks, f):
            o = []; xo, yo = c["X"](k) & 0xffff, c["Y"](k) & 0xffff
            for n in range(4):
                if n < NYT: o.append(f"ds_read_b128 {Q4(f+16+4*n)}, v{12+ks} offset:{yo+2048*n}")
                o.append(f"ds_read_b64_tr_b16 {P2(f+4*n)}, v{8+n} offset:{xo+ks*8192}")
                o.append(f"ds_read_b64_tr_b16 {P2(f+4*n+2)}, v{8+n} offset:{xo+ks*8192+1024}")
            return o
        def mfmas(f, base, first=False):
            return [f"v_mfma_f32_16x16x32_bf16 {Q4(base+4*(x*NYT+ts))}, {Q4(f+4*x)}, {Q4(f+16+4*ts)}, " + ("0" if first else Q4(base+4*(x*NYT+ts)))
                    for x in range(4) for ts in range(NYT)]
        def inter(ms, rs, extra=(), tail=()):
            rs = list(rs); ex = list(extra); n = len(ms); tail = list(tail)
            nr = s.opt.get("nr", 2) if not ex else 1
            for i, m in enumerate(ms):
                a(m); k = 0
                while rs and k < nr: a(rs.pop(0)); k += 1
                if not rs: ex = tail + ex; tail = []
                left = n - i; want = max(2 - k, -(-len(ex)//left) if not rs else 0)
                while ex and want > 0:
                    e = ex.pop(0); a(e); want -= 2 if e.startswith(("v_exp", "v_rcp", "v_permlane")) else 1
            for r in rs + ex: a(r)
        def adv(k):
            o = []
            if (c["X"](k) ^ c["X"](k+1)) >> 16: o += [f"v_xor_b32 v{8+i}, s40, v{8+i}" for i in range(4)]
            if (c["Y"](k) ^ c["Y"](k+1)) >> 16: o += [f"v_xor_b32 v{12+i}, s40, v{12+i}" for i in range(2)]
            return o
        a("s_mov_b32 s40, 0x10000")
        def step(name, accq, accp, first=False, exq=(), exp=(), mid=None, end=None, pre=()):
            k = int(name[1:])
            s.bar(name)
            for r in pre: a(r)
            if len(FR) == 4:
                cur, prv = FR[2*(k & 1):2*(k & 1)+2], FR[2-2*(k & 1):4-2*(k & 1)]
                rs = reads(k, 0, cur[0]) + reads(k, 1, cur[1])
                if accq is None:
                    for r in rs + adv(k): a(r)
                else: inter(mfmas(prv[0], accq, first) + mfmas(prv[1], accq), rs, (), adv(k))
                return
            if accq is None:
                for r in reads(k, 0, FR[0]): a(r)
            else: inter(mfmas(FR[1], accq), reads(k, 0, FR[0]), exq)
            a("s_waitcnt lgkmcnt(0)")
            if mid: mid()
            inter(mfmas(FR[0], accp, first), reads(k, 1, FR[1]), list(exp), adv(k))
            if end: end()
        def loop(label, names, acc):
            u = NS; names = list(names)
            while len(names) % u or (names and s.opt.get("trace")): step(names.pop(0), acc, acc); a("s_waitcnt lgkmcnt(0)")
            if not names: return
            a(f"s_mov_b32 s39, {len(names)//u}\n{label}:")
            nb = len(s.bars)
            for i in range(u):
                step(names[i], acc, acc)
                if i < u-1: a("s_waitcnt lgkmcnt(0)")
            del s.bars[nb:]; s.bars.extend((x, 1) for x in names)
            a(f"s_sub_u32 s39, s39, 1\ns_cmp_lg_u32 s39, 0\ns_waitcnt lgkmcnt(0)\ns_cbranch_scc1 {label}")
        return mfmas, step, loop
    def swap4(s, t):
        s.a(f"""v_permlane32_swap_b32 v{t}, v{t+2}
        v_permlane32_swap_b32 v{t+1}, v{t+3}
        v_permlane16_swap_b32 v{t}, v{t+2}
        v_permlane16_swap_b32 v{t+1}, v{t+3}""")
    def store_rows(s, t0, t1, tmp, voff, srd, soff, pitch, fl):
        a = s.a
        if s.opt.get("halfline"):
            a(f"buffer_store_dwordx4 {Q4(t0)}, v{voff}, {srd}, {soff} offen {fl}\nbuffer_store_dwordx4 {Q4(t1)}, v{voff}, {srd}, {soff} offen offset:64 {fl}")
            a(f"s_add_u32 {soff}, {soff}, {16*pitch}"); return
        for j in range(4): a(f"v_mov_b32_dpp v{tmp+j}, v{t0+j} row_ror:8 row_mask:0xf bank_mask:0xf")
        for j in range(4): a(f"v_mov_b32_dpp v{t0+j}, v{t1+j} row_ror:8 row_mask:0xf bank_mask:0xc")
        a(f"buffer_store_dwordx4 {Q4(t0)}, v{voff}, {srd}, {soff} offen {fl}\ns_add_u32 {soff}, {soff}, {8*pitch}")
        for j in range(4): a(f"v_mov_b32_dpp v{t1+j}, v{tmp+j} quad_perm:[0,1,2,3] row_mask:0xf bank_mask:0x3")
        a(f"buffer_store_dwordx4 {Q4(t1)}, v{voff}, {srd}, {soff} offen {fl}\ns_add_u32 {soff}, {soff}, {8*pitch}")
    def row_voff(s, dst, row0, pitch):
        a = s.a
        if s.opt.get("halfline"): a(f"v_add_u32 v{dst}, {row0}, v3\nv_mul_u32_u24 v{dst}, {pitch}, v{dst}\nv_lshl_add_u32 v{dst}, v4, 4, v{dst}")
        else: a(f"v_and_b32 v{dst}, 7, v2\nv_add_u32 v{dst}, {row0}, v{dst}\nv_mul_u32_u24 v{dst}, {pitch}, v{dst}\nv_lshl_add_u32 v{dst}, v4, 4, v{dst}\nv_bfe_u32 v6, v2, 3, 1\nv_lshl_add_u32 v{dst}, v6, 6, v{dst}")
    def gemm12_A(s):
        a = s.a; AP, AQ, FR, T, SU, ST, BI = 16, 80, [144, 176], 208, 216, 232, 248; RED = MISC + 1024
        mfmas, step, loop = s.consumer(1, FR)
        acc = lambda base, x, ts: base + 4*(4*x + ts)
        w = lambda: a("s_waitcnt lgkmcnt(0)")
        s.srd(44, "bsp", S*2)
        a(f"""s_lshl_b32 s41, s58, 7
        s_lshl_b32 s42, s36, 6
        s_add_u32 s41, s41, s42
        v_add_u32 v6, s41, v3
        v_lshlrev_b32 v7, 1, v6""")
        s.row_voff(1, "s41", AP_)
        a("s_lshl_b32 s34, s59, 1\ns_add_u32 s34, s34, s35\n" + slot_s("s34", "s34", "s41"))
        a(f"""s_lshl_b32 s34, s34, 7
        v_mov_b32 v14, {fbits(-1.5957691216057308*LOG2E)}
        v_mov_b32 v15, v14
        s_mov_b32 s42, {fbits(-0.07135481282636784*LOG2E)}
        s_mov_b32 s43, s42""")
        for ts in range(4): a(f"buffer_load_ushort v{BI+ts}, v7, s[44:47], 0 offen offset:{32*ts}")
        def gelu_pk(cs):
            tt = [(cc+hf, T+4*n+hf) for n, cc in enumerate(cs) for hf in (0, 2)]
            for cc, t in tt: a(f"v_pk_mul_f32 {P2(t)}, {P2(cc)}, {P2(cc)}")
            for cc, t in tt: a(f"v_pk_fma_f32 {P2(t)}, {P2(t)}, s[42:43], v[14:15]")
            for cc, t in tt: a(f"v_pk_mul_f32 {P2(t)}, {P2(t)}, {P2(cc)}")
            for cc, t in tt: a(f"v_exp_f32 v{t}, v{t}\nv_exp_f32 v{t+1}, v{t+1}")
            for cc, t in tt: a(f"v_pk_add_f32 {P2(t)}, {P2(t)}, 1.0 op_sel_hi:[1,0]")
            for cc, t in tt: a(f"v_rcp_f32 v{t}, v{t}\nv_rcp_f32 v{t+1}, v{t+1}")
            for cc, t in tt: a(f"v_pk_mul_f32 {P2(cc)}, {P2(cc)}, {P2(t)}")
        def gelu_sc(cc, t):
            o = []
            for f in (lambda j: f"v_mul_f32 v{t+j}, v{cc+j}, v{cc+j}", lambda j: f"v_fma_f32 v{t+j}, v{t+j}, s42, v14", lambda j: f"v_mul_f32 v{t+j}, v{t+j}, v{cc+j}",
                      lambda j: f"v_exp_f32 v{t+j}, v{t+j}", lambda j: f"v_add_f32 v{t+j}, 1.0, v{t+j}", lambda j: f"v_rcp_f32 v{t+j}, v{t+j}", lambda j: f"v_mul_f32 v{cc+j}, v{cc+j}, v{t+j}"):
                o += [f(j) for j in range(4)]
            return o
        def stats_pk(cc, ts, init):
            if init: a(f"v_pk_add_f32 {P2(SU+2*ts)}, {P2(cc)}, {P2(cc+2)}\nv_pk_mul_f32 {P2(SU+8+2*ts)}, {P2(cc)}, {P2(cc)}")
            else: a(f"v_pk_add_f32 {P2(SU+2*ts)}, {P2(SU+2*ts)}, {P2(cc)}\nv_pk_fma_f32 {P2(SU+8+2*ts)}, {P2(cc)}, {P2(cc)}, {P2(SU+8+2*ts)}\nv_pk_add_f32 {P2(SU+2*ts)}, {P2(SU+2*ts)}, {P2(cc+2)}")
            a(f"v_pk_fma_f32 {P2(SU+8+2*ts)}, {P2(cc+2)}, {P2(cc+2)}, {P2(SU+8+2*ts)}")
        def stats_sc(cc, ts, init):
            o = []
            for j in range(4):
                u = SU+2*ts+(j & 1); q = u + 8
                if init and j < 2: o += [f"v_add_f32 v{u}, v{cc+j}, v{cc+j+2}", f"v_mul_f32 v{q}, v{cc+j}, v{cc+j}"]
                elif init: o += [f"v_fmac_f32 v{q}, v{cc+j}, v{cc+j}"]
                else: o += [f"v_add_f32 v{u}, v{u}, v{cc+j}", f"v_fmac_f32 v{q}, v{cc+j}, v{cc+j}"]
            return o
        s.bar("R1"); s.stamp(14, "g1 released")
        step("B0", None, AP, True); s.stamp(15, "g1 first stage done"); w()
        loop("L_p1loop", [f"B{j}" for j in range(1, 16)], AP)
        s.stamp(16, "pass z2 done")
        def reduce_stats():
            for n in range(8): a(f"v_add_f32 v{SU+2*n}, v{SU+2*n}, v{SU+2*n+1}")
            for st in range(2): a(f"v_permlane32_swap_b32 v{SU+8*st}, v{SU+8*st+2}\nv_permlane32_swap_b32 v{SU+8*st+4}, v{SU+8*st+6}")
            for st in range(2): a(f"v_add_f32 v{SU+8*st}, v{SU+8*st}, v{SU+8*st+2}\nv_add_f32 v{SU+8*st+4}, v{SU+8*st+4}, v{SU+8*st+6}")
            for st in range(2): a(f"v_permlane16_swap_b32 v{SU+8*st}, v{SU+8*st+4}")
            a(f"""v_add_f32 v{T}, v{SU}, v{SU+4}
            v_add_f32 v{T+1}, v{SU+8}, v{SU+12}
            v_and_b32 v5, 1, v4
            v_lshrrev_b32 v6, 1, v4
            v_lshl_or_b32 v5, v5, 1, v6
            v_lshl_add_u32 v5, v5, 4, v3
            s_lshl_b32 s37, s36, 6
            v_add_u32 v5, s37, v5
            v_lshlrev_b32 v5, 4, v5
            s_lshl_b32 s41, s35, 3
            s_add_u32 s41, s41, {RED}
            v_add_u32 v5, s41, v5
            ds_write_b64 v5, {P2(T)}
            v_add_u32 v5, s37, v3
            v_lshlrev_b32 v5, 3, v5
            v_add_u32 v5, {RED+2048}, v5
            s_add_u32 s37, s34, {WS_Z2}""")
        def normalise(tss):
            for ts in tss:
                for ip in range(2):
                    t = ST + 4*((2*ts+ip) & 3)
                    for ii in range(2):
                        cc = acc(AP, 2*ip+ii, ts)
                        for hf in (0, 2): a(f"v_pk_fma_f32 {P2(cc+hf)}, {P2(cc+hf)}, {P2(SU+2*ts)}, {P2(SU+2*ts)} op_sel:[0,0,1] op_sel_hi:[1,0,1]")
                        a(f"v_cvt_pk_bf16_f32 v{t+2*ii}, v{cc}, v{cc+1}\nv_cvt_pk_bf16_f32 v{t+2*ii+1}, v{cc+2}, v{cc+3}")
                    s.swap4(t)
                s.store_rows(ST + 8*(ts & 1), ST + 8*(ts & 1) + 4, T, 1, W, "s37", AP_, "sc1")
        binit = [f"v_lshlrev_b32 v{BI+ts}, 16, v{BI+ts}" for ts in range(4)] + [f"v_mov_b32 v{acc(AP, x, ts)+j}, v{BI+ts}" for x in range(4) for ts in range(4) for j in range(4)]
        ng = s.G_ - 16; ns = s.opt.get('nsplit', 2); assert s.N_ + ns + 1 < 32 and s.K_ > s.N_ + ns
        for g in range(16, 32):
            kw = {}
            if g < s.G_:
                tiles = [(n // 4, n % 4) for n in range(16*(g-16)//ng, 16*(g-15)//ng)]
                (x0, t0), rest = tiles[0], tiles[1:]
                sc = gelu_sc(acc(AP, x0, t0), ST) + stats_sc(acc(AP, x0, t0), t0, x0 == 0)
                h = 0 if g == 16 else len(sc)//2
                def mid(rest=rest):
                    for n in range(0, len(rest), 2): gelu_pk([acc(AP, x, t) for x, t in rest[n:n+2]])
                    for x, t in rest: stats_pk(acc(AP, x, t), t, x == 0)
                kw = dict(exq=sc[:h], exp=sc[h:], mid=mid)
                if g == s.G_-1: kw["end"] = reduce_stats
            elif s.N_ <= g < s.N_ + ns:
                i = g - s.N_; per = 4//ns; tss = list(range(i*per, (i+1)*per))
                kw = dict(mid=lambda tss=tss: normalise(tss[:max(1, per//2)]))
                if per > 1: kw["end"] = lambda tss=tss: normalise(tss[per//2:])
                if i == 0: kw["pre"] = [f"ds_read_b64 {P2(SU+2*ts)}, v5 offset:{128*ts}" for ts in range(4)]
            elif g == s.N_+ns: kw = dict(exq=binit[4:20], exp=binit[20:36], pre=["s_waitcnt vmcnt(8)"] + binit[:4])
            elif g == s.N_+ns+1: kw = dict(exq=binit[36:52], exp=binit[52:])
            step(f"B{g}", AP if g == 16 else AQ, AQ, g == 16, **kw)
            if g == s.K_-1: a("s_waitcnt vmcnt(0)")
            w()
            if g in (s.G_-1, s.N_-1, s.N_, s.K_-1): s.stamp({s.G_-1: 17, s.N_-1: 18, s.N_: 19, s.K_-1: 20}[g], f"before B{g+1}")
        s.stamp(21, "pass z1 done")
        s.bar("R2"); s.stamp(22, "g2 released")
        for m in mfmas(FR[1], AQ): a(m)
        gelu_pk([acc(AQ, 0, 0), acc(AQ, 0, 1)]); gelu_pk([acc(AQ, 0, 2), acc(AQ, 0, 3)])
        for g in range(32, 44):
            n = g - 28; sc = gelu_sc(acc(AQ, n // 4, n % 4), T); h = 0 if g == 32 else 14
            step(f"B{g}", None if g == 32 else AP, AP, exq=sc[:h], exp=sc[h:])
            if g == 32: s.stamp(23, "g2 first stage done")
            w()
        loop("L_g2loop", [f"B{j}" for j in range(44, 64)], AP)
        s.stamp(24, "g2 loop done")
        a(f"s_add_u32 s37, s34, {WS_P}")
        ms = mfmas(FR[1], AP); ms = [ms[4*x+ts] for ts in range(4) for x in range(4)]
        early = [f"v_mul_f32 v{acc(AP, x, ts)+j}, v{acc(AP, x, ts)+j}, v{acc(AQ, x, ts)+j}" for ts in range(1) for x in range(4) for j in range(4)]
        for i, m in enumerate(ms):
            a(m)
            if i >= 8:
                for _ in range(2): a(early.pop(0))
        for ts in range(4):
            for ip in range(2):
                t = ST + 4*((2*ts+ip) & 3)
                for ii in range(2):
                    cc = acc(AP, 2*ip+ii, ts); z = acc(AQ, 2*ip+ii, ts)
                    if ts:
                        for hf in (0, 2): a(f"v_pk_mul_f32 {P2(cc+hf)}, {P2(cc+hf)}, {P2(z+hf)}")
                    a(f"v_cvt_pk_bf16_f32 v{t+2*ii}, v{cc}, v{cc+1}\nv_cvt_pk_bf16_f32 v{t+2*ii+1}, v{cc+2}, v{cc+3}")
                s.swap4(t)
            s.store_rows(ST + 8*(ts & 1), ST + 8*(ts & 1) + 4, T, 1, W, "s37", AP_, "sc1")
        s.stamp(28, "p issued")
        a("s_waitcnt vmcnt(0)")
        s.stamp(29, "p stored")
        s.bar("p stored")
    def gemm3_A(s):
        a = s.a; AC, FR, Z, GB, T, GB2 = 16, [48, 72, 96, 120], 144, 160, 176, 208
        mfmas, step, loop = s.consumer(3, FR)
        acc = lambda x, ts: AC + 4*(2*x + ts)
        s.srd(20, "out", S*D*2)
        a(f"""s_lshl_b32 s41, s56, 6
        s_lshl_b32 s42, s36, 5
        s_add_u32 s41, s41, s42
        v_add_u32 v6, s41, v3
        v_lshlrev_b32 v1, 11, v6
        v_lshl_add_u32 v1, v4, 4, v1""")
        s.row_voff(15, "s41", D*2)
        a(f"""s_lshl_b32 s37, s57, 8
        s_lshl_b32 s41, s35, 7
        s_add_u32 s37, s37, s41
        v_lshlrev_b32 v14, 5, v4
        s_lshl_b32 s41, s37, 1
        s_add_u32 s41, s41, {WS_MOD + 5*4096}""")
        s.bar("R3"); s.stamp(30, "g3 released")
        step("C0", None, AC); a("s_waitcnt lgkmcnt(0)"); s.stamp(31, "g3 first stage done")
        step("C1", AC, AC, True); a("s_waitcnt lgkmcnt(0)")
        e = s.opt.get("ldat", 26)
        loop("L_g3loop", [f"C{j}" for j in range(2, e)], AC)
        ld = [f"buffer_load_dwordx4 {Q4(GB+4*n)}, v14, {W}, s41 offen offset:{128*(n>>1)+16*(n&1)} sc1" for n in range(4)]
        ld.append("s_add_u32 s41, s41, 24576")
        ld += [f"buffer_load_dwordx4 {Q4(GB2+4*n)}, v14, {W}, s41 offen offset:{128*(n>>1)+16*(n&1)} sc1" for n in range(4)]
        for ts in range(2):
            ld.append(f"s_add_u32 s41, s37, {WS_X1 + ts*16*2048}")
            ld += [f"buffer_load_dwordx4 {Q4(Z+8*ts+4*ip)}, v1, {W}, s41 offen offset:{64*ip} sc1" for ip in range(2)]
        for j in range(e, 28): step(f"C{j}", AC, AC, pre=ld if j == e else ()); a("s_waitcnt lgkmcnt(0)")
        s.stamp(32, "g3 loop done")
        for m in mfmas(FR[2], AC) + mfmas(FR[3], AC): a(m)
        a("s_waitcnt vmcnt(4)")
        for n in range(16): a(f"v_add_f32 v{GB+n}, v{GB+n}, v{GB2+n}")
        for ts in range(2):
            for ip in range(2):
                c0 = acc(2*ip, ts); c1 = acc(2*ip+1, ts); n = 2*ts+ip; t = T + 8 + 4*n
                for j in range(4): a(f"v_permlane32_swap_b32 v{c0+j}, v{c1+j}")
                for j in range(4): a(f"v_permlane16_swap_b32 v{c0+j}, v{c1+j}")
                a(f"s_waitcnt vmcnt({[3, 2, 3, 2][n]})")
                for ii, cc in enumerate((c0, c1)):
                    for hf in (0, 2): s.unpack(T+hf, T+hf+1, Z+4*n+2*ii+hf//2)
                    for hf in (0, 2): a(f"v_pk_fma_f32 {P2(cc+hf)}, {P2(cc+hf)}, {P2(GB+8*ip+4*ii+hf)}, {P2(T+hf)}")
                    a(f"v_cvt_pk_bf16_f32 v{t+2*ii}, v{cc}, v{cc+1}\nv_cvt_pk_bf16_f32 v{t+2*ii+1}, v{cc+2}, v{cc+3}")
            s.store_rows(T + 8 + 8*ts, T + 12 + 8*ts, T + 4, 15, "s[20:23]", "s37", D*2, s.opt.get('outfl', 'sc1'))

    def ld_setup(s):
        a = s.a
        a("s_sub_u32 s30, s3, 4\ns_and_b32 s49, s3, 1\nv_lshlrev_b32 v6, 1, v4\nv_xor_b32 v6, v6, v3\ns_lshl_b32 s35, s49, 5\nv_add_u32 v16, s35, v4")
        for reg, ld, sn, base in ((120, F*2, "s59", 0), (152, D*2, "s57", 0)):
            a(f"s_mov_b32 s36, {ld}\nv_mul_lo_u32 v5, v16, s36\ns_lshl_b32 s36, {sn}, 8\ns_add_u32 s36, s36, {base}\nv_add_u32 v5, s36, v5")
            for i in range(8): a(f"v_xor_b32 v7, {8*((i>>1)&1)}, v6\nv_lshl_add_u32 v7, v7, 4, v5\nv_add_u32 v{reg+i}, {i*4*ld}, v7")
        a(f"v_lshlrev_b32 v5, 12, v16\nv_add_u32 v5, {WS_Z2}, v5\ns_lshl_b32 s36, s59, 1")
        for p in range(2):
            a(f"v_xor_b32 v7, {8*p}, v6\nv_lshrrev_b32 v17, 3, v7\nv_add_u32 v17, s36, v17\n" + slot_v("v17", "v17", "v18") + f"\nv_and_b32 v7, 7, v7\nv_lshl_add_u32 v7, v7, 4, v5\nv_lshl_add_u32 v7, v17, 7, v7")
            for i in range(8):
                if (i >> 1) & 1 == p: a(f"v_add_u32 v{136+i}, {i*4*AP_}, v7")
        a("v_and_b32 v6, 7, v2\nv_xor_b32 v6, v6, v4\nv_lshrrev_b32 v16, 3, v2")
        for reg, ld, sm, MY, base in ((128, AP_, "s58", 128, WS_H2), (144, S*2, "s58", 128, 0), (160, AP_, "s56", 64, WS_P)):
            a(f"s_mul_i32 s35, {sm}, {MY}\ns_mul_i32 s36, s49, {MY//2}\ns_add_u32 s35, s35, s36\nv_add_u32 v5, s35, v16\ns_mov_b32 s36, {ld}\nv_mul_lo_u32 v5, v5, s36\nv_add_u32 v5, {base}, v5")
            for i in range(MY//16): a(f"v_xor_b32 v7, {4*(i&1)}, v6\nv_lshl_add_u32 v7, v7, 4, v5\nv_add_u32 v{reg+i}, {i*8*ld}, v7")
    def ld_ops(s, name, g=None):
        a = s.a; kind, ring, srd, fl, reg, soff, _ = s.OPS[name]; c = s.RING[ring]
        n = 8 if kind == "X" else c["MY"]//16; part = 0
        a(f"s_mul_i32 s50, s30, {1024*n}")
        if g is None: a(f"s_add_u32 s50, s50, {'s54' if kind == 'X' else 's55'}"); so = "s52" if kind == "X" else "s53"
        else: a(f"s_mov_b32 s51, {soff(g)}"); part = c[kind](g); so = "s51"
        for i in range(n): a(f"s_add_u32 m0, s50, {part+1024*i}\nbuffer_load_dwordx4 v{reg+i}, {srd}, {so} offen {fl} lds")
        return n
    def ld_run(s, ring, plan, tag):
        a = s.a; c = s.RING[ring]
        cnt = lambda nm: 8 if s.OPS[nm][0] == "X" else c["MY"]//16
        issued = []; rows = []
        for name, ops, wt in plan:
            if name == "B17" and s.opt.get("x1late", 0): issued += [-1]*8
            for nm, g in ops: issued += [g]*cnt(nm)
            wc = None
            if wt is not None: wc = len(issued) - 1 - max(i for i, x in enumerate(issued) if x == wt); assert wc < 64
            rows.append((name, ops, wc))
        i = 0
        while i < len(rows):
            name, ops, wc = rows[i]; j = i + 1
            key = lambda r, d: ([(nm, g-d) for nm, g in r[1]], r[2])
            if len(ops) == 2 and name != "B17":
                while j < len(rows) and rows[j][0] != "B17" and key(rows[j], j-i) == key(rows[i], 0): j += 1
            if j - i >= 3 and not s.opt.get('trace'):
                lab = a.label(f"L_ld{tag}")
                for nm, g in ops:
                    kind = s.OPS[nm][0]
                    a(f"s_mov_b32 {'s52' if kind == 'X' else 's53'}, {s.OPS[nm][5](g)}\ns_mov_b32 {'s54' if kind == 'X' else 's55'}, {c[kind](g)}")
                    if not s.OPS[nm][6]: a(f"s_mov_b32 s47, {g % 16 if ring == 1 else g}")
                a(f"s_mov_b32 s44, {j-i}\n{lab}:")
                s.bar(name); s.bars.pop(); s.bars.extend((r[0], 1) for r in rows[i:j])
                for nm, _ in ops: s.ld_ops(nm)
                for nm, _ in ops:
                    kind = s.OPS[nm][0]; r, q = ('s52', 's54') if kind == 'X' else ('s53', 's55')
                    if s.OPS[nm][6]: a(f"s_add_u32 {r}, {r}, {s.OPS[nm][6]}")
                    else: a("s_add_u32 s47, s47, 1\n" + slot_s(r, "s47", "s51") + f"\ns_lshl_b32 {r}, {r}, 7")
                    lo, st = c[kind](0), c[kind](1) - c[kind](0); hi = max(c[kind](k) for k in range(8)) + st
                    a(f"s_add_u32 {q}, {q}, {st}\ns_cmp_eq_u32 {q}, {hi}\ns_cselect_b32 {q}, {lo}, {q}")
                a(f"s_sub_u32 s44, s44, 1\ns_cmp_lg_u32 s44, 0\ns_waitcnt vmcnt({wc})\ns_cbranch_scc1 {lab}")
                i = j
            else:
                s.bar(name)
                if name == "B17" and s.opt.get("x1late", 0): s.x1_store()
                for nm, g in ops: s.ld_ops(nm, g)
                if wc is not None: a(f"s_waitcnt vmcnt({wc})")
                i += 1
    def copies_srd(s, which):
        a = s.a
        if {"w_in1": "i", "w_out": "o"}[which] not in s.fix: return
        d, sn, off = {"w_in1": (24, "s59", WS_WIC), "w_out": (20, "s57", WS_WOC)}[which]
        l = a.label("L_nofix")
        a(f"s_and_b32 s35, {sn}, 3\ns_cmp_lg_u32 s35, 1\ns_cbranch_scc1 {l}\ns_add_u32 s{d}, s94, {off-256}\ns_addc_u32 s{d+1}, s95, 0\ns_and_b32 s{d+1}, s{d+1}, 0xffff\n{l}:")
    def gemm12_L(s):
        s.copies_srd("w_in1"); s.copies_srd("w_out"); s.a.srd(64, PTR["ws"], S*S*2, WS_WSC - 128)
        ops = lambda g: [] if g > 63 else ([("h2", g)] if g < 4 else [("h2", g), ("w_in2" if g < 16 else "w_in1", g)] if g < 32 else [("w_sp", g)] if g < 35 else [("z2", g), ("w_spc" if g % 8 == 3 and "s" in s.fix else "w_sp", g)])
        plan = [("R1", [("h2", 0), ("h2", 1), ("h2", 2)], 0)]
        for j in range(64):
            o = ops(j+3)
            if s.opt.get("pause"):
                if j == s.N_: o = []
                if j == s.N_+1: o = ops(j+2) + o
            plan.append((f"B{j}", o, j+1 if j not in (31, 63) else None))
            if j == 31: plan.append(("R2", [("z2", 32), ("z2", 33), ("z2", 34)], 32))
        s.ld_run(1, plan, "a")
        n = s.opt.get("wpre", 2)
        for g in range(n): s.ld_ops("w_out", g)
        s.bar("p stored")
        for g in range(n, 8):
            if g == max(n, 6): s.a("s_waitcnt vmcnt(32)")
            s.ld_ops("w_out", g)
    def gemm3_L(s):
        s.a("s_waitcnt vmcnt(40)")
        ops = lambda j: ([("p", j+3)] if j+3 < 28 else []) + ([("w_out", j+7)] if 8 <= j+7 < 28 else [])
        plan = [("R3", [("p", g) for g in range(3)], 0)] + [(f"C{j}", ops(j), j+1 if j < 27 else None) for j in range(28)]
        s.ld_run(3, plan, "c")
    def gemm12_X(s):
        a = s.a; RED = MISC + 1024
        a(f"""s_sub_u32 s35, s3, 6
        s_lshl_b32 s35, s35, 6
        v_add_u32 v5, s35, v2
        v_lshlrev_b32 v6, 4, v5
        v_add_u32 v6, {RED}, v6
        v_lshlrev_b32 v5, 3, v5
        v_add_u32 v7, {RED+2048}, v5
        s_mul_i32 s36, s58, {14*1024}
        s_add_u32 s36, s36, {WS_GRAN}
        s_lshl_b32 s38, s59, 10
        s_add_u32 s38, s38, s36
        s_mov_b32 s55, 0""")
        l = s.only_wave(7); a("s_lshl_b32 s37, s58, 4"); s.poll(2, "s37", 16); a(f"{l}:\ns_waitcnt vmcnt(0)")
        s.bar("R1")
        def gather():
            for n in range(14):
                if n % 4 == 0: a(f"s_add_u32 s37, s36, {1024*n}")
                a(f"buffer_load_dwordx2 {P2(12+2*n)}, v5, {W}, s37 offen offset:{1024*(n&3)} sc1")
        def check(blocking):
            top, fin, out = a.label("L_lnc"), a.label("L_lnf"), a.label("L_lno")
            a(f"s_cmp_lg_u32 s55, 0\ns_cbranch_scc1 {out}\ns_mov_b32 s39, 0\n{top}:\ns_waitcnt vmcnt(0)\nv_max_u32 v8, v13, v15")
            for n in range(2, 14, 2): a(f"v_max3_u32 v8, v8, v{13+2*n}, v{15+2*n}")
            a(f"v_cmp_eq_u32 vcc, -1, v8\ns_add_u32 s39, s39, 1\ns_cmp_gt_u32 s39, 20000\ns_cbranch_scc1 {fin}\ns_cbranch_vccz {fin}")
            gather()
            a(f"s_branch {top if blocking else out}\n{fin}:")
            for n in range(1, 14): a(f"v_add_f32 v12, v12, v{12+2*n}\nv_add_f32 v13, v13, v{13+2*n}")
            a(f"""v_mul_f32 v12, {fbits(1/FH)}, v12
            v_mul_f32 v13, {fbits(1/FH)}, v13
            v_fma_f32 v13, -v12, v12, v13
            v_max_f32 v13, 0, v13
            v_add_f32 v13, {fbits(1e-5)}, v13
            v_rsq_f32 v8, v13
            v_mul_f32 v9, -v12, v8
            ds_write_b64 v7, v[8:9]
            s_mov_b32 s55, 1
            s_waitcnt lgkmcnt(0)
            {out}:""")
        for j in range(64):
            s.bar(f"B{j}")
            late = s.opt.get("x1late", 0)
            if late and j == 17: s.x1_store()
            if late and j == 19: a("s_waitcnt vmcnt(0)")
            if j == (21 if late else 0) and not s.opt.get("x1early", 1):
                l = s.only_wave(7); s.set_flag(5, "s7"); a(f"{l}:")
            if j == s.opt.get("deferat", 11) and s.opt.get("defer", 1):
                l = s.only_wave(7); a(f"s_cmp_lg_u32 s5, 0\ns_cbranch_scc1 {l}"); s.set_flag(6, "s7"); a(f"{l}:")
            if True:
                for sync, j0 in [(sy, j0) for sy, j0, c in ((7, 9, "i"), (8, 24, "s"), (9, 56, "o")) if c in s.fix]:
                    if j == j0: l = s.only_wave(7); s.poll_early(sync); a(f"{l}:")
                    if j == j0+3: l = s.only_wave(7); s.poll_late(sync); a(f"{l}:")
            if j == s.G_:
                a(f"""ds_read_b128 v[8:11], v6
                s_waitcnt lgkmcnt(0)
                v_add_f32 v8, v8, v10
                v_add_f32 v9, v9, v11
                v_cmp_o_f32 vcc, v9, v9
                v_mov_b32 v10, 0x7fc00000
                v_cndmask_b32 v9, v10, v9, vcc
                buffer_store_dwordx2 v[8:9], v5, {W}, s38 offen sc1""")
            elif j == s.N_-1-s.opt.get("lag", 1): gather()
            elif j == s.N_-1:
                check(True)
                if s.diag: a("v_writelane_b32 v255, s39, 40")
                s.stamp(18, None)
            elif j == s.K_:
                l = s.only_wave(7); a("s_lshl_b32 s37, s59, 4\ns_add_u32 s37, s37, s58"); s.set_flag(3, "s37"); a(f"{l}:")
            elif j == 31:
                l = s.only_wave(7); a("s_lshl_b32 s37, s59, 4"); s.stamp(21, None); s.poll(3, "s37", 16); s.stamp(22, None); a(f"{l}:")
                s.bar("R2")
        s.bar("p stored")
        l = s.only_wave(7); a("s_lshl_b32 s37, s58, 4\ns_add_u32 s37, s37, s59"); s.set_flag(4, "s37"); a(f"{l}:")
    def gemm3_X(s):
        a = s.a
        early = s.opt.get("p2", 1)
        l = s.only_wave(7); a("s_lshr_b32 s37, s56, 1\ns_lshl_b32 s37, s37, 4"); s.poll(4, "s37", 2 if early else 14); a(f"{l}:\ns_waitcnt vmcnt(0)")
        s.bar("R3")
        for j in range(28):
            if j == 0 and early: l = s.only_wave(7); s.poll(4, "s37", 14); a(f"{l}:")
            s.bar(f"C{j}")
            if j in (8, 14) and not s.opt.get("x1early", 1):
                l = s.only_wave(7); a("s_lshl_b32 s37, s56, 3"); (s.poll_early if j == 8 else s.poll_late)(5, "s37", 8); a(f"{l}:")

    def code_prefetch(s, wave):
        a = s.a; l = s.only_wave(wave); here = a.label("L_pc")
        a(f"""s_getpc_b64 s[24:25]
        {here}:
        s_sub_u32 s24, s24, {here}-{NAME}
        s_subb_u32 s25, s25, 0
        s_and_b32 s25, s25, 0xffff
        s_mov_b32 s26, L_done-{NAME}
        s_mov_b32 s27, 0x00020000
        v_lshlrev_b32 v5, 12, v2
        s_lshl_b32 s35, s5, 7
        buffer_load_dword v249, v5, s[24:27], s35 offen
        {l}:""")
    NPAD = 24
    def hop(s, lo, hi):
        a = s.a
        if not s.opt.get("pads", 1): return
        out = a.label("L_hopped")
        a("s_mov_b32 s99, 1")
        ks = [k for k in range(lo, hi) if k not in s.jit_pads]; per = -(-len(ks)//4)
        for w in range(4):
            l = s.only_wave(4+w)
            for k in ks[w*per:(w+1)*per]: a(f"s_branch L_pad_{k}\nL_padret_{k}:")
            a(f"s_branch {out}\n{l}:")
        a(f"{out}:\ns_mov_b32 s99, 0")
    def build(s):
        a = s.a
        a.launch(NAME, 256, 512, LDS_BYTES); a.begin(NAME)
        a("s_cmp_ge_u32 s2, 256\ns_cbranch_scc1 L_done")
        if s.diag: a("v_mov_b32 v255, 0")
        if s.opt.get("fixed"): a("s_memrealtime s[100:101]\ns_waitcnt lgkmcnt(0)")
        s.stamp(0, "start")
        if s.opt.get("burn"):
            a(f"s_mov_b32 s20, {s.opt['burn']}\nL_burn:")
            for i in range(64): a(f"v_add_u32 v{1+(i&7)}, v{9+(i&7)}, v0")
            a("s_sub_u32 s20, s20, 1\ns_cmp_lg_u32 s20, 0\ns_cbranch_scc1 L_burn")
        a("""s_load_dwordx16 s[64:79], s[0:1], 0
        s_load_dwordx16 s[80:95], s[0:1], 64
        v_lshrrev_b32 v1, 6, v0
        v_and_b32 v2, 63, v0
        v_readfirstlane_b32 s3, v1
        s_and_b32 s4, s2, 7
        s_lshr_b32 s5, s2, 3
        s_lshl_b32 s7, s4, 5
        s_add_u32 s7, s7, s5
        v_and_b32 v3, 15, v2
        v_lshrrev_b32 v4, 4, v2
        s_mov_b32 s99, 0
""")
        if s.opt.get("rowmap", 0):
            a("""s_cmp_ge_u32 s5, 14
            s_cselect_b32 s35, 1, 0
            s_cselect_b32 s36, 14, 0
            s_sub_u32 s59, s5, s36
            s_lshl_b32 s58, s4, 1
            s_add_u32 s58, s58, s35
            s_lshr_b32 s35, s5, 3
            s_and_b32 s57, s5, 7
            s_lshl_b32 s56, s4, 2
            s_add_u32 s56, s56, s35""")
        else:
            a("""s_lshr_b32 s33, s4, 1
        s_and_b32 s34, s4, 1
        s_mul_i32 s35, s5, 37
        s_lshr_b32 s35, s35, 8
        s_mul_i32 s36, s35, 7
        s_sub_u32 s36, s5, s36
        s_lshl_b32 s58, s33, 2
        s_add_u32 s58, s58, s35
        s_mul_i32 s59, s34, 7
        s_add_u32 s59, s59, s36
        s_lshr_b32 s35, s5, 2
        s_and_b32 s36, s5, 3
        s_lshl_b32 s56, s33, 3
        s_add_u32 s56, s56, s35
        s_lshl_b32 s57, s34, 2
        s_add_u32 s57, s57, s36""")
        s.front()
        def flat(b): return [n for n, k in b for _ in range(k)]
        s.bars = []
        s.conv_A(); front = flat(s.bars); s.bars = []
        o = s.opt; nsb = (0 if o.get("x1early", 1) else 1) + bool(o.get("l2pf", 0)) + bool(o.get("defer", 1)) + len(s.fix) + ("o" in s.fix)
        a("s_cmp_lt_u32 s5, 28\ns_cbranch_scc1 L_A1\n" + "s_barrier\n"*nsb + "s_branch L_A3\nL_A1:")
        s.gemm12_A(); mid = flat(s.bars); s.bars = []
        a("L_A3:"); s.gemm3_A(); last = flat(s.bars); s.bars = []
        a("s_branch L_end\nL_B:")
        if s.opt.get("prio"): a(f"s_setprio {s.opt['prio']}")
        s.row_B(); assert flat(s.bars) == front, (flat(s.bars), front); s.bars = []
        a("s_cmp_ge_u32 s5, 28\ns_cbranch_scc1 L_Bspare\ns_cmp_ge_u32 s3, 6\ns_cbranch_scc1 L_X")
        s.gemm12_L(); assert flat(s.bars) == mid, (flat(s.bars), mid); s.bars = []
        a("L_L3:"); s.gemm3_L(); assert flat(s.bars) == last; s.bars = []
        a("s_branch L_end\nL_X:")
        s.jit_on = True
        s.gemm12_X(); assert flat(s.bars) == mid; s.bars = []
        a("L_X3:"); s.gemm3_X(); assert flat(s.bars) == last; s.bars = []
        s.jit_on = False; assert not s.jit; s.order = mid + last
        a("s_branch L_end\nL_Bspare:")
        if s.opt.get("x1late", 0): s.x1_store()
        if not s.opt.get("x1early", 1):
            a("s_waitcnt vmcnt(0)\ns_barrier")
            l = s.only_wave(7); s.set_flag(5, "s7"); a(f"{l}:")
        a("s_sub_u32 s32, s5, 28\ns_lshl_b32 s32, s32, 3\ns_add_u32 s32, s32, s4\nv_and_b32 v5, 255, v0\nv_lshlrev_b32 v5, 7, v5\ns_mov_b32 s62, 0\ns_mov_b32 s63, -1")
        fix = s.fix; s.nspare_bar = 0
        def sbar(): a("s_barrier"); s.nspare_bar += 1
        def copy(srd, dst, voff, row0, pitch, n, sync):
            a(f"s_mul_i32 s34, s33, {row0}")
            for i in range(n): a(f"buffer_load_dwordx4 {Q4(32+4*i)}, {voff}, {srd}, s34 offen\ns_add_u32 s34, s34, {pitch}")
            a(f"s_mul_i32 s34, s33, {row0}\ns_add_u32 s34, s34, {dst}")
            for i in range(n): a(f"s_waitcnt vmcnt({n-1})\nbuffer_store_dwordx4 {Q4(32+4*i)}, {voff}, {W}, s34 offen sc1\ns_add_u32 s34, s34, {pitch}")
            a("s_waitcnt vmcnt(0)"); sbar()
            l = s.only_wave(7); s.set_flag(sync, "s32"); a(f"{l}:")
        a("s_lshl_b32 s33, s32, 2\ns_add_u32 s33, s33, s30")
        if "i" in fix:
            a("v_lshlrev_b32 v8, 10, v4\nv_lshl_add_u32 v8, v3, 4, v8\nv_add_u32 v8, 256, v8")
            copy("s[12:15]", WS_WIC - 256, "v8", 8*F*2, F*2, 8, 7)
        a("s_mul_i32 s34, s33, 57344\nv_and_b32 v6, 31, v2\nv_min_u32 v6, 27, v6\nv_lshlrev_b32 v6, 7, v6\nv_lshrrev_b32 v7, 5, v2\nv_mul_u32_u24 v7, 7168, v7\nv_add_u32 v6, v6, v7")
        for i in range(4 if s.opt.get("thalf", 1) else 0):
            if s.opt.get("gentle", 0) > 1: a("s_waitcnt vmcnt(0)\ns_mov_b64 exec, 0xffffffff\nbuffer_load_dword v100, v6, s[12:15], s34 offen\ns_waitcnt vmcnt(0)\ns_not_b64 exec, exec\nbuffer_load_dword v100, v6, s[12:15], s34 offen\ns_mov_b64 exec, -1\ns_add_u32 s34, s34, 14336")
            else: a("buffer_load_dword v100, v6, s[12:15], s34 offen\ns_add_u32 s34, s34, 14336")
        if s.opt.get("defer", 1):
            l = s.only_wave(7); a("s_lshl_b32 s37, s4, 5"); s.poll(6, "s37", 1, sleep=8); a(f"{l}:"); sbar()
        if "s" in fix:
            a("v_bfe_u32 v8, v2, 3, 2\nv_lshlrev_b32 v8, 10, v8\nv_and_b32 v7, 7, v2\nv_lshl_add_u32 v8, v7, 4, v8\nv_lshrrev_b32 v7, 5, v2\nv_lshl_add_u32 v8, v7, 12, v8\nv_add_u32 v8, 384, v8")
            copy("s[16:19]", WS_WSC - 128, "v8", 16*S*2, 2*S*2, 8, 8)
        order = [k for k in range(32) if not ("s" in fix and k % 8 == 3)]
        a("v_and_b32 v6, 63, v0\nv_lshlrev_b32 v6, 12, v6\ns_lshl_b32 s35, s32, 18")
        for i in range(len(order)//4):
            for w in range(4): a(f"s_cmp_eq_u32 s30, {w}\ns_cselect_b32 s34, {order[4*i+w]*128}, s34")
            if s.opt.get("gentle"): a("s_waitcnt vmcnt(0)"); a("s_mov_b64 exec, 0xffffffff\ns_add_u32 s34, s34, s35\nbuffer_load_dword v100, v6, s[16:19], s34 offen\ns_waitcnt vmcnt(0)\ns_not_b64 exec, exec\nbuffer_load_dword v100, v6, s[16:19], s34 offen\ns_mov_b64 exec, -1")
            else: a("s_add_u32 s34, s34, s35\nbuffer_load_dword v100, v6, s[16:19], s34 offen")
        if s.NG == 20:
            s.gemv_task(True); s.gemv_issue(); a("s_waitcnt vmcnt(16)"); s.silu(); a("s_waitcnt vmcnt(0)"); s.gemv_store(64, a.label("L_gb"))
            s.srd(16, "wsp", S*S*2); s.srd(20, "wout", FH*D*2)
            a("s_lshl_b32 s33, s32, 2\ns_add_u32 s33, s33, s30")
        if "o" in fix:
            a("v_and_b32 v8, 1, v4\nv_lshlrev_b32 v8, 10, v8\nv_lshl_add_u32 v8, v3, 4, v8\nv_lshrrev_b32 v7, 5, v2\nv_lshl_add_u32 v8, v7, 11, v8\nv_add_u32 v8, 256, v8")
            copy("s[20:23]", WS_WOC - 256, "v8", 14*D*2, 2*D*2, 7, 9)
        a(f"s_mul_i32 s34, s32, {FH*D*2//32}")
        for i in range(4):
            if s.opt.get("gentle"): a("s_waitcnt vmcnt(0)\ns_mov_b64 exec, 0xffffffff\nbuffer_load_dword v100, v5, s[20:23], s34 offen\ns_waitcnt vmcnt(0)\ns_not_b64 exec, exec\nbuffer_load_dword v100, v5, s[20:23], s34 offen\ns_mov_b64 exec, -1\ns_add_u32 s34, s34, 32768")
            else: a("buffer_load_dword v100, v5, s[20:23], s34 offen\ns_add_u32 s34, s34, 32768")
        a.srd(64, PTR["ws"], S*S*2, WS_WSC - 128)
        f0 = s.opt.get("l2pf", 0)
        if f0:
            a(f"""s_sub_u32 s33, s5, 28
            s_lshr_b32 s34, s4, 1
            s_lshl_b32 s34, s34, 2
            s_add_u32 s34, s34, s33
            s_lshl_b32 s34, s34, 7
            v_and_b32 v5, 127, v0
            v_add_u32 v5, s34, v5
            v_lshlrev_b32 v8, 12, v5
            v_and_b32 v5, 255, v0
            v_min_u32 v5, 223, v5
            v_mul_u32_u24 v6, 4682, v5
            v_lshrrev_b32 v6, 16, v6
            v_mul_u32_u24 v7, 14, v6
            v_sub_u32 v7, v5, v7
            s_lshl_b32 s34, s33, 4
            v_add_u32 v6, s34, v6
            v_lshlrev_b32 v6, 12, v6
            s_and_b32 s34, s4, 1
            s_mul_i32 s35, s34, 14
            v_add_u32 v7, s35, v7
            {slot_v("v7", "v7", "v5")}
            v_lshl_add_u32 v9, v7, 7, v6
            s_mul_i32 s37, s34, 112""")
            l = s.only_wave(7); s.poll(3, "s37", 112, sleep=8)
            if "s" in fix: s.poll(8, None, 32)
            a(f"{l}:"); sbar()
            a(f"""s_mov_b32 s33, {f0*128}
            s_mov_b32 s34, {WS_Z2 + f0*64*AP_}
            L_l2:
            buffer_load_dword v100, v9, {W}, s34 offen sc1
            s_cmp_ge_u32 s3, 6
            s_cbranch_scc1 L_l2y
            s_bfe_u32 s35, s33, 0x30007
            s_cmp_eq_u32 s35, {3 if 's' in fix else 8}
            s_cbranch_scc1 L_l2c
            buffer_load_dword v100, v8, s[16:19], s33 offen
            s_branch L_l2y
            L_l2c:
            buffer_load_dword v100, v8, s[64:67], s33 offen
            L_l2y:
            s_add_u32 s33, s33, 128
            s_add_u32 s34, s34, {64*AP_}
            s_cmp_lt_u32 s33, 4096
            s_waitcnt vmcnt(40)
            s_cbranch_scc1 L_l2""")
        if "o" in fix:
            l = s.only_wave(7); s.poll(9, None, 32, sleep=8); a(f"{l}:"); sbar()
        s.copies_srd("w_out")
        a("s_cmp_ge_u32 s3, 6\ns_cbranch_scc1 L_X3\ns_waitcnt vmcnt(0)")
        for k in range(8):
            if k == 6: a("s_waitcnt vmcnt(32)")
            s.ld_ops("w_out", k)
        assert s.nspare_bar + (0 if o.get("x1early", 1) else 1) == nsb
        a("s_branch L_L3")
        a("L_end:")
        if s.opt.get("fixed"):
            a(f"s_add_u32 s100, s100, {s.opt['fixed']*100}\nL_fix:\ns_memrealtime s[96:97]\ns_waitcnt lgkmcnt(0)\ns_sub_u32 s96, s96, s100\ns_cmp_lt_i32 s96, 0\ns_cbranch_scc1 L_fix")
        if s.diag:
            a("s_waitcnt vmcnt(0)"); s.stamp(63, "end")
            if s.opt.get("dbg"):
                sel = s.opt["dbg"]
                a.srd(12, 92, 256)
                a("s_cmp_lg_u32 s2, 37\ns_cbranch_scc1 L_nodbg\ns_cmp_lg_u32 s3, 0\ns_cbranch_scc1 L_nodbg\nv_readlane_b32 s20, v255, 0\nv_mov_b32 v5, 0")
                for j, i in enumerate(sel): a(f"v_readlane_b32 s21, v255, {i}\ns_sub_u32 s21, s21, s20\nv_writelane_b32 v5, s21, {j}")
                a("v_lshlrev_b32 v1, 2, v2\nbuffer_store_dword v5, v1, s[12:15], 0 offen\nL_nodbg:")
            a(f"s_lshl_b32 s92, s2, 11\ns_add_u32 s92, s92, {WS_TS}\nv_lshlrev_b32 v1, 2, v0\nbuffer_store_dword v255, v1, {W}, s92 offen")
        a("L_done:\ns_endpgm")
        info = a.end(NAME, 256, sgpr=102, align=s.opt.get("align"), pads=(s.NPAD, "s99", s.opt.get("padbase", 0xe00)) if s.opt.get("pads", 1) else None)
        if "-v" in sys.argv: print(info, file=sys.stderr)
        return a.text(HEADER)
HEADER = """; adaLN-conditioned H3 long-conv block + gMLP block, one persistent launch of 256 workgroups x 8 waves (text emitted by the author's generator).
; kernarg: q k v shift_k ssm_k ssm_D B_x w_in w_sp b_sp w_out c w_mod out debug ws
;
;  1 kv = shortconv(k)*v per 64-channel x 128-row tile, stored per channel       -> flag, 16 producers per consumer
;  2 long causal conv of 4 channels per workgroup as Toeplitz MFMA products      -> flag, all to all
;  3 x1 = x + gate*LN(x)mod*y, h2 = LN(x1)mod for 8 rows per workgroup           -> flag, 16 producers
;  4 z2 = gelu(h2 w_in[:,1792:]), then z1 likewise while z2's LayerNorm sums are exchanged and z2 is stored -> flag, 16 producers
;  5 p = z1 * (w_sp LN(z2) + b_sp)                                               -> flag, 14 producers
;  6 out = x1 + gate * (p w_out)
; Hand-offs: payload and flag are written through (sc1) and the payload is acknowledged before the flag; a flag holds this launch's tag, which is
; The L_pad_* pairs are landing pads: idle helper waves branch there and back so that a code page is resident before the compute waves reach it.
"""
def build(diag=False, **opt):
    g = G(diag, **opt); t = g.build()
    if opt.get("pads", 1) and opt.get("jithop", 1):
        jit = {}; last = None; inA = False
        for l in t.splitlines():
            if l.startswith("L_A1:"): inA = True
            if l.startswith("L_B:"): break
            if inA and "s_barrier ;" in l: last = l.split(";")[1].strip()
            if inA and l.startswith("L_pad_") and last:
                jit.setdefault(g.order[max(0, g.order.index(last) - opt.get("lead", 2))], []).append(int(l[6:-1]))
        g = G(diag, **dict(opt, jit=jit)); t = g.build()
    import padcheck; assert not padcheck.check(t)
    build.names = g.names; return t
if __name__ == "__main__":
    t = build(diag="--diag" in sys.argv)
    if "--plain" in sys.argv: t = t.replace(f"; @launch kernel={NAME} grid", "; @launch grid")
    open(sys.argv[1], "w").write(t)
```

```python
import re
TRANS = ("v_exp_", "v_log_", "v_rcp_", "v_rsq_", "v_sqrt_", "v_sin_", "v_cos_")
NODST_S = ("s_cmp", "s_waitcnt", "s_branch", "s_barrier", "s_nop", "s_cbranch", "s_setprio", "s_sleep", "s_endpgm", "s_bitcmp", "s_setreg")
def regs(tok):
    tok = tok.strip()
    tok = re.sub(r"^-|^abs\(|^\|", "", tok); tok = re.sub(r"\)$|\|$", "", tok)
    m = re.fullmatch(r"([vas])(\d+)", tok)
    if m: return {(m.group(1), int(m.group(2)))}
    m = re.fullmatch(r"([vas])\[(\d+):(\d+)\]", tok)
    if m: return {(m.group(1), i) for i in range(int(m.group(2)), int(m.group(3))+1)}
    if tok in ("vcc", "vcc_lo", "vcc_hi"): return {("s", "vcc")}
    if tok in ("exec", "exec_lo", "exec_hi"): return {("s", "exec")}
    if tok == "m0": return {("s", "m0")}
    return set()
class I:
    def __init__(self, line):
        self.line = line
        t = line.split(";")[0].strip()
        self.is_label = t.endswith(":"); self.is_dir = t.startswith(".") or t == ""
        self.op = ""; self.d = set(); self.s = set(); self.kind = "none"; self.ws = 0
        if self.is_label: self.label = t[:-1]; return
        if self.is_dir: return
        p = t.split(None, 1); op = self.op = p[0]
        ops = []
        if len(p) > 1:
            parts = [x.strip() for x in re.split(r",(?![^\[]*\])", p[1])]
            last = parts[-1].split(None, 1) if not parts[-1].startswith("hwreg") else [parts[-1]]
            self.mods = last[1] if len(last) > 1 else ""
            parts[-1] = last[0]; ops = parts
        else: self.mods = ""
        self.ops = ops
        R = [regs(o) for o in ops]; U = lambda l: set().union(*l) if l else set()
        self.ws = 1
        if op == "s_nop": self.ws = int(ops[0], 0) + 1
        self.dpp = "_dpp" in op or any(k in self.mods for k in ("quad_perm", "row_", "wave_"))
        if op.startswith(("v_mfma", "v_smfmac")):
            self.kind = "mfma"; self.d = R[0]; self.a = R[1] | R[2]; self.c = R[3]; self.s = self.a | self.c
            self.passes = 8 if "32x32" in op else 4
        elif op.startswith("v_"):
            self.kind = "valu"; self.trans = op.startswith(TRANS)
            if op.startswith("v_nop"): pass
            elif "permlane" in op and "swap" in op: self.d = R[0] | R[1]; self.s = R[0] | R[1]
            elif re.match(r"v_(add|sub|subrev|addc|subb|subbrev)_co_", op) or op.startswith(("v_mad_u64", "v_mad_i64", "v_div_scale")):
                self.d = R[0] | R[1]; self.s = U(R[2:])
            else:
                self.d = R[0]; self.s = U(R[1:])
                if op.startswith(("v_fmac", "v_dot2c", "v_pk_fmac", "v_writelane")) or self.dpp or "d16" in op: self.s |= R[0]
                if op.startswith("v_cmpx"): self.d |= {("s", "exec")}
        elif op.startswith(("buffer_", "global_", "flat_")):
            self.kind = "vmem"; self.lds = bool(re.search(r"\blds\b", self.mods)) or "_lds_" in op
            self.data = set()
            if op.startswith(("buffer_wbl2", "buffer_inv")): pass
            elif "load" in op:
                if self.lds: self.s = U(R) | {("s", "m0")}
                else:
                    self.d = R[0]; self.s = U(R[1:])
                    if "d16" in op: self.s |= R[0]
            else:
                self.s = U(R)
                self.data = R[0] if op.startswith("buffer_") else R[1]
                if "atomic" in op and "sc0" in self.mods:
                    self.d = R[0]
                    if op.startswith("global_"): self.data = R[2]; self.s = U(R[1:])
            self.wide = ("store" in op and ("x3" in op or "x4" in op))
        elif op.startswith("ds_"):
            self.kind = "ds"
            if op.startswith(("ds_read", "ds_bpermute", "ds_permute", "ds_swizzle")) or "_rtn" in op: self.d = R[0]; self.s = U(R[1:])
            else: self.s = U(R)
        elif op.startswith(("s_load", "s_buffer_load", "s_memtime", "s_memrealtime")):
            self.kind = "smem"; self.d = R[0]; self.s = U(R[1:])
        elif op.startswith("s_"):
            self.kind = "salu"
            if op.startswith(NODST_S): self.s = U(R)
            else:
                self.d = R[0]; self.s = U(R[1:])
                if "saveexec" in op: self.d |= {("s", "exec")}
        else: raise ValueError("unknown instr: " + line)
def vg(S): return {r for r in S if r[0] in "va"}
def sg(S): return {r for r in S if r[0] == "s"}
def need(p, c):
    n = 0
    if p.kind == "valu":
        vd = vg(p.d); sd = sg(p.d)
        if c.kind == "mfma" and vd & c.s: n = max(n, 2)
        if c.kind == "mfma" and ("s", "exec") in sd: n = max(n, 4)
        if c.kind == "valu":
            if vd & c.s:
                if c.op.startswith(("v_readlane", "v_readfirstlane")): n = max(n, 1)
                if "permlane" in c.op or c.dpp: n = max(n, 2)
                if p.trans and not c.trans: n = max(n, 1)
                if "_sdwa" in p.op and "dst_sel:DWORD" not in p.mods: n = max(n, 1)
            if sd & c.s: n = max(n, 4 if c.op.startswith(("v_readlane", "v_writelane")) else 2)
        if c.kind == "vmem" and sd & c.s: n = max(n, 5)
        if c.kind in ("salu", "smem") and sd & c.s: n = max(n, 1)
    elif p.kind == "mfma":
        P = p.passes
        if c.kind == "mfma":
            if p.d & c.a: n = max(n, P + 4)
            if p.d & c.c and not (p.d == c.c and c.passes == P): n = max(n, P + 2)
            if p.d & c.d and not (p.d & c.c): n = max(n, P + 2)
        elif c.kind in ("valu", "vmem", "ds"):
            if p.d & (c.s | c.d): n = max(n, P + 4)
            if c.kind == "valu" and p.c & c.d: n = max(n, P - 1)
    elif p.kind == "salu":
        if ("s", "m0") in p.d and c.kind == "vmem" and c.lds: n = max(n, 1)
        if ("s", "m0") in p.d and c.kind == "ds" and "addtid" in c.op: n = max(n, 1)
    elif p.kind == "vmem":
        if p.wide and p.data & c.d: n = max(n, 2 if c.kind == "valu" else 1)
    return n
WIN = 14
def deficit(prev, c):
    dist = 0; worst = 0
    for p in reversed(prev):
        if p.ws == 0: continue
        if dist >= WIN: break
        worst = max(worst, need(p, c) - dist)
        dist += p.ws
    return worst
def pad(lines):
    ins = [I(l) for l in lines]; out = []; npad = 0
    for c in ins:
        if c.ws:
            d = deficit(out[-40:], c)
            if d > 0: out.append(I(f"    s_nop {d-1}")); npad += 1
        out.append(c)
        if c.op in ("s_endpgm", "s_branch"): out.append(I("")); out[-1].ws = WIN
    changed = True
    while changed:
        changed = False
        lab = {x.label: i for i, x in enumerate(out) if x.is_label}
        for i, b in enumerate(out):
            if b.op.startswith(("s_branch", "s_cbranch")):
                t = lab[b.ops[0]]
                prev = out[max(0, i-40):i+1]; worst = 0; seq = list(prev)
                for c in out[t:t+30]:
                    if c.ws == 0: continue
                    if c.line == "": break
                    dist = sum(x.ws for x in seq[len(prev):])
                    if dist >= WIN: break
                    dd = 0; w = 0
                    for p in reversed(prev):
                        if p.ws == 0: continue
                        if dd + dist >= WIN: break
                        w = max(w, need(p, c) - dd - dist); dd += p.ws
                    worst = max(worst, w); seq.append(c)
                if worst > 0:
                    out.insert(i, I(f"    s_nop {worst-1}")); npad += 1; changed = True; break
    return [x.line for x in out if x.line != ""], npad

import subprocess
def sizes(lines, name):
    r = subprocess.run(["llvm-mc", "-triple=amdgcn-amd-amdhsa", "-mcpu=gfx950", "-show-encoding"], input=name + ":\n" + "\n".join(lines) + "\n", capture_output=True, text=True)
    assert r.returncode == 0, r.stderr[:2000]
    return [l.split("encoding: [")[1].count(",") + 1 for l in r.stdout.splitlines() if "encoding: [" in l]
WIDEN = ("v_add_u32", "v_sub_u32", "v_add_f32", "v_sub_f32", "v_mul_f32", "v_max_f32", "v_fmac_f32", "v_mov_b32", "v_lshlrev_b32", "v_lshrrev_b32", "v_and_b32", "v_xor_b32", "v_or_b32",
         "v_exp_f32", "v_rcp_f32", "v_rsq_f32", "v_min_u32", "v_max_u32", "v_mul_u32_u24", "v_permlane32_swap_b32", "v_permlane16_swap_b32")
def align8(lines, name, loop_align=5, minrun=2):
    ins = [I(l) for l in lines]; sz = iter(sizes(lines, name))
    for x in ins: x.size = next(sz) if x.op else 0
    pos = {x.label: i for i, x in enumerate(ins) if x.is_label}
    heads = {x.ops[0] for i, x in enumerate(ins) if x.op.startswith(("s_cbranch", "s_branch")) and pos[x.ops[0]] < i and "loop" in x.ops[0].lower() or x.op.startswith("s_cbranch") and x.ops[0].startswith("L_ld") and pos[x.ops[0]] < i}
    out = []; addr = 0; nw = nn = 0
    def nop():
        n = I("    s_nop 0"); n.size = 4; return n
    for i, x in enumerate(ins):
        if x.is_label and x.label in heads:
            while addr % (1 << loop_align): out.append(nop()); addr += 4
        if x.size == 8 and addr % 8 == 4:
            run = [y.size for y in ins[i:i+12] if y.size][:minrun]
            if all(z == 8 for z in run):
                j = len(out) - 1
                while j >= 0 and out[j].size in (0, 8) and not out[j].is_label: j -= 1
                if j >= 0 and out[j].size == 4 and out[j].op in WIDEN:
                    w = I(out[j].line.replace(out[j].op, out[j].op + "_e64", 1)); w.size = 8; out[j] = w; nw += 1
                else: out.append(nop()); nn += 1
                addr += 4
        out.append(x); addr += x.size
    return [x.line for x in out], (nw, nn)

SCC_USE = ("s_cbranch_scc", "s_cselect", "s_addc", "s_subb", "s_cmov")
SCC_DEF = ("s_cmp", "s_bitcmp", "s_add_", "s_sub_", "s_and_", "s_or_", "s_xor_", "s_andn2", "s_lshl", "s_lshr", "s_min", "s_max", "s_bfe", "s_not")
def add_pads(lines, name, npads, flag, base=0):
    ins = [I(l) for l in lines]; sz = iter(sizes(lines + [f"L_pad_{n}:" for n in range(npads)], name))
    for x in ins: x.size = next(sz) if x.op else 0
    def scc_dead(i):
        for y in ins[i:i+6000]:
            if y.op.startswith(SCC_USE): return False
            if y.op.startswith(SCC_DEF) or y.op == "s_endpgm": return True
            if y.op.startswith(("s_branch", "s_cbranch")): return False
        return False
    out = []; addr = base; page = base >> 12; n = 0; hopping = any(x.is_label and x.label == 'L_padstart' for x in ins); started = not hopping
    for i, x in enumerate(ins):
        if x.is_label and x.label == "L_padstart": started = True; hopping = False
        if x.is_label and x.label == "L_end": started = False; hopping = True
        if started and i and ins[i-1].op == "s_mov_b32" and ins[i-1].ops[0] == flag: hopping = ins[i-1].ops[1] != "0"
        if x.op and not hopping and (addr >> 12) > page and addr % 8 == 0 and n < npads and scc_dead(i) and ins[i-1].op not in ("s_branch", "s_endpgm") and not (ins[i-1].kind == "salu" and ("s", "m0") in ins[i-1].d):
            out += [f"L_pad_{n}:", f"    s_cmp_eq_u32 {flag}, 1", f"    s_cbranch_scc1 L_padret_{n}"]; addr += 8; n += 1; page = addr >> 12
        out.append(x.line); addr += x.size
    rest = []
    for k in range(n, npads): rest += [f"L_pad_{k}:", f"    s_branch L_padret_{k}"]
    return out + rest, n

class Asm:
    def __init__(self):
        self.lines = []; self.launches = []; self.kds = []; self._lbl = 0; self._start = 0
    def __call__(self, s):
        for l in s.strip("\n").split("\n"):
            l = l.strip()
            if l: self.lines.append(l if l.split(";")[0].strip().endswith(":") else "    " + l)
        return self
    def label(self, base="L"):
        self._lbl += 1; return f"{base}_{self._lbl}"
    def launch(self, name, grid, block, lds):
        self.launches.append(f"; @launch kernel={name} grid=({grid},1,1) block=({block},1,1) lds={lds}")
    def begin(self, name):
        self.lines += [".text", f".globl {name}", ".p2align 8", f".type {name},@function", f"{name}:"]
        self._start = len(self.lines)
    def end(self, name, vgpr, sgpr=96, agpr=0, align=None, pads=None):
        body = self.lines[self._start:]
        stub = [f"L_pad_{k}:" for k in range(pads[0])] if pads else []
        body, n = pad(body + stub)
        if align: body, k = align8(body, name, *align); n = (n, k)
        if pads: body, k = add_pads(body[:len(body)-len(stub)], name, *pads); n = (n, k)
        self.lines[self._start:] = body
        mx = {"v": -1, "a": -1, "s": -1}
        for l in body:
            it = I(l)
            for r in it.d | it.s:
                if isinstance(r[1], int): mx[r[0]] = max(mx[r[0]], r[1])
        assert mx["v"] < vgpr and mx["s"] < sgpr and mx["a"] < max(agpr, 0) or (mx["a"] < 0 and mx["v"] < vgpr and mx["s"] < sgpr), (name, mx, vgpr, sgpr, agpr)
        acc = (vgpr + 3)//4*4
        nfv = acc + agpr if agpr else vgpr
        self.kds.append(f""".p2align 6
.amdhsa_kernel {name}
  .amdhsa_next_free_vgpr {nfv}
  .amdhsa_next_free_sgpr {sgpr}
  .amdhsa_accum_offset {acc}
  .amdhsa_group_segment_fixed_size 0
  .amdhsa_kernarg_size 128
  .amdhsa_user_sgpr_count 2
  .amdhsa_user_sgpr_kernarg_segment_ptr 1
  .amdhsa_system_sgpr_workgroup_id_x 1
  .amdhsa_float_denorm_mode_32 3
.end_amdhsa_kernel""")
        return mx, n
    def srd(self, d, b, nbytes, off=0):
        if off:
            self(f"s_add_u32 s{d}, s{b}, {off}\ns_addc_u32 s{d+1}, s{b+1}, 0\ns_and_b32 s{d+1}, s{d+1}, 0xffff")
        else:
            self(f"s_mov_b32 s{d}, s{b}\ns_and_b32 s{d+1}, s{b+1}, 0xffff")
        self(f"s_mov_b32 s{d+2}, {nbytes}\ns_mov_b32 s{d+3}, 0x00020000")
    def text(self, header=""):
        return header + "\n".join(self.launches) + "\n.amdgcn_target \"amdgcn-amd-amdhsa--gfx950\"\n" + "\n".join(self.lines) + "\n.section .rodata,\"a\"\n" + "\n".join(self.kds) + "\n"
```

```python
import sys, struct
from asmgen import Asm
S, D, F, FH = 2048, 1024, 3584, 1792
MB = 1 << 20
WS_MOD, WS_EPOCH, WS_GRAN, WS_FLAG = 0, 0xc000, 0x10000, 0x50000
WS_KV, WS_Y2, WS_X1, WS_H2, WS_Z2, WS_P, WS_WOC, WS_WIC, WS_WSC, WS_TS = 1*MB, 9*MB, 13*MB, 17*MB, 25*MB, 33*MB, 41*MB, 45*MB, 53*MB, 64*MB
AP_ = 4096
SLOT = lambda j: j + (j + 4)//7
def slot_s(d, j, t): return f"s_add_u32 {t}, {j}, 4\ns_mul_i32 {t}, {t}, 37\ns_lshr_b32 {t}, {t}, 8\ns_add_u32 {d}, {j}, {t}"
def slot_v(d, j, t): return f"v_add_u32 {t}, 4, {j}\nv_mul_u32_u24 {t}, 37, {t}\nv_lshrrev_b32 {t}, 8, {t}\nv_add_u32 {d}, {j}, {t}"

PTR = dict(q=64, k=66, v=68, shift=70, ssmk=72, ssmd=74, win=78, wsp=80, bsp=82, wout=84, c=86, wmod=88, out=90, ws=94)
def fbits(x): return "0x%08x" % struct.unpack("<I", struct.pack("<f", x))[0]
LOG2E = 1.4426950408889634
CH_STRIDE, KVE_OFF, KA_OFF, KB_OFF = 17664, 4576, 9216, 13440
HB = 4*CH_STRIDE
YST, MODST = 16384, 131072
MISC = 155648
LDS_BYTES = 163840
W = "s[8:11]"
P2 = lambda b: f"v[{b}:{b+1}]"
Q4 = lambda b: f"v[{b}:{b+3}]"
NAME = "adaLN_cond__ssm_conv_h3__mixer_gmlp__prompt_kernel"

class G:
    def __init__(s, diag=False, **opt):
        s.G_, s.N_, s.K_ = opt.get('G', 20), opt.get('N', 25), opt.get('K', 29); s.a = Asm(); s.diag = diag; s.opt = opt; s.NPAD = opt.get('npad', 32); s.fix = opt.get('fix', 'o'); s.NG = 20 if opt.get('gblate', 1) else 24; assert s.NG == 24 or 'o' in s.fix; s.bars = []; s.names = {}; s.jit = {k: list(v) for k, v in opt.get('jit', {}).items()}; s.jit_on = False; s.jit_pads = {k for v in s.jit.values() for k in v}
    def bar(s, name, n=1):
        tr = s.opt.get("trace")
        if tr and name[0] == tr[0] and name[1:].isdigit() and 0 <= int(name[1:]) - tr[1] < 22: s.stamp(41 + int(name[1:]) - tr[1], "arrive " + name)
        s.a(f"s_barrier ; {name}"); s.bars.append((name, n))
        if s.jit_on:
            for k in s.jit.pop(name, []):
                l = s.only_wave(6); s.a(f"s_mov_b32 s99, 1\ns_branch L_pad_{k}\nL_padret_{k}:\ns_mov_b32 s99, 0\n{l}:")
    def stamp(s, i, name=None):
        if name: s.names[i] = name
        if name and s.opt.get("fixat") == i: s.a("s_memrealtime s[100:101]\ns_waitcnt lgkmcnt(0)")
        if s.diag: s.a(f"s_memrealtime s[96:97]\ns_waitcnt lgkmcnt(0)\nv_writelane_b32 v255, s96, {i}")
        cyc = {5: 33, 6: 34, 15: 35, 16: 36, 23: 37, 24: 38, 31: 39, 32: 25, 21: 26}
        if s.diag and name and i in cyc: s.a(f"s_memtime s[96:97]\ns_waitcnt lgkmcnt(0)\nv_writelane_b32 v255, s96, {cyc[i]}")
    def unpack(s, lo, hi, src):
        s.a(f"v_lshlrev_b32 v{lo}, 16, v{src}\nv_and_b32 v{hi}, 0xffff0000, v{src}")
    def srd(s, d, name, nbytes): s.a.srd(d, PTR[name], nbytes)
    def set_flag(s, sync, idx_sgpr, local=False):
        a = s.a
        a(f"""s_lshl_b32 s60, {idx_sgpr}, 7
        s_add_u32 s60, s60, {WS_FLAG + sync*32768}
        v_mov_b32 v250, s6
        v_mov_b32 v251, 0
        s_mov_b64 exec, 1""")
        if local:
            l, l2 = a.label("L_far"), a.label("L_set")
            a(f"s_cmp_eq_u32 s28, 0\ns_cbranch_scc1 {l}\nbuffer_store_dword v250, v251, {W}, s60 offen\ns_branch {l2}\n{l}:\nbuffer_wbl2 sc1\ns_waitcnt vmcnt(0)")
        a(f"buffer_store_dword v250, v251, {W}, s60 offen sc1")
        if local: a(f"{l2}:")
        a("s_mov_b64 exec, -1")
    def acquire_if_far(s):
        l = s.a.label("L_near"); s.a(f"s_cmp_lg_u32 s28, 0\ns_cbranch_scc1 {l}\nbuffer_inv sc1\ns_waitcnt vmcnt(0)\n{l}:")
    def hello_send(s):
        s.a(f"""s_getreg_b32 s29, hwreg(HW_REG_XCC_ID, 0, 4)
        s_lshl_b32 s60, s7, 7
        s_add_u32 s60, s60, {WS_FLAG + 6*32768}
        v_mov_b32 v250, s6
        v_mov_b32 v251, s29
        v_mov_b32 v252, 0
        s_mov_b64 exec, 1
        buffer_store_dwordx2 v[250:251], v252, {W}, s60 offen sc1
        s_mov_b64 exec, -1""")
    def hello_check(s):
        a = s.a; l = a.label("L_hello"); go = a.label("L_hgo")
        a(f"""s_andn2_b32 s60, s7, 31
        s_lshl_b32 s60, s60, 7
        s_add_u32 s60, s60, {WS_FLAG + 6*32768}
        v_and_b32 v250, 31, v2
        v_lshlrev_b32 v250, 7, v250
        s_mov_b32 s61, 0
        s_mov_b32 s28, 0
        {l}:
        buffer_load_dwordx2 v[252:253], v250, {W}, s60 offen sc1
        s_add_u32 s61, s61, 1
        s_cmp_gt_u32 s61, 30000
        s_cbranch_scc1 {go}
        s_waitcnt vmcnt(0)
        v_cmp_ne_u32 vcc, s6, v252
        s_cbranch_vccnz {l}
        v_cmp_ne_u32 vcc, s29, v253
        s_cbranch_vccnz {go}
        s_mov_b32 s28, {0 if s.opt.get("forcefar") else 1}
        {go}:
        s_waitcnt vmcnt(0)""")
    def poll_early(s, sync, first=None, cnt=32):
        s.a(f"v_min_u32 v248, {cnt-1}, v2\nv_lshlrev_b32 v248, 7, v248")
        s.a(f"s_lshl_b32 s60, {first}, 7\ns_add_u32 s60, s60, {WS_FLAG + sync*32768}" if first else f"s_mov_b32 s60, {WS_FLAG + sync*32768}")
        s.a(f"buffer_load_dword v249, v248, {W}, s60 offen sc1")
    def poll_late(s, sync, first=None, cnt=32):
        l = s.a.label("L_seen")
        s.a(f"s_waitcnt vmcnt(0)\nv_cmp_ne_u32 vcc, s6, v249\ns_cbranch_vccz {l}"); s.poll(sync, first, cnt); s.a(f"{l}:")
    def poll(s, sync, first_sgpr, cnt, sleep=0, fl='sc1'):
        a = s.a; l = a.label("L_poll"); go = a.label("L_go")
        if first_sgpr is None: a(f"s_mov_b32 s60, {WS_FLAG + sync*32768}")
        else: a(f"s_lshl_b32 s60, {first_sgpr}, 7\ns_add_u32 s60, s60, {WS_FLAG + sync*32768}")
        a(f"v_min_u32 v250, {min(cnt, 64)-1}, v2\nv_lshlrev_b32 v250, 7, v250\ns_mov_b32 s61, 0\n{l}:")
        nl = -(-cnt//64)
        if sleep: a(f"s_sleep {sleep}")
        for q in range(nl):
            if q: a(f"s_add_u32 s62, s60, {min(q*64, cnt-64)*128}")
            a(f"buffer_load_dword v{251+q}, v250, {W}, {'s62' if q else 's60'} offen {fl}")
        a(f"s_add_u32 s61, s61, 1\ns_cmp_gt_u32 s61, 30000\ns_cbranch_scc1 {go}\ns_waitcnt vmcnt(0)")
        for q in range(nl): a(f"v_xor_b32 v{251+q}, s6, v{251+q}")
        if nl == 4: a("v_or3_b32 v251, v251, v252, v253\nv_or_b32 v251, v251, v254")
        if nl == 2: a("v_or_b32 v251, v251, v252")
        a(f"v_cmp_ne_u32 vcc, 0, v251\ns_cbranch_vccnz {l}\n{go}:\ns_waitcnt vmcnt(0)")
    def only_wave(s, w):
        l = s.a.label("L_skip"); s.a(f"s_cmp_lg_u32 s3, {w}\ns_cbranch_scc1 {l}"); return l

    XR = 184
    KST, VST = HB, HB + 17408
    def kv_stage(s):
        a = s.a
        s.srd(12, "k", S*D*2); s.srd(16, "v", S*D*2)
        a(f"""s_lshr_b32 s32, s7, 4
        s_and_b32 s33, s7, 15
        s_lshl_b32 s34, s33, 18
        s_lshl_b32 s35, s32, 7
        s_add_u32 s34, s34, s35
        v_lshrrev_b32 v5, 3, v2
        v_and_b32 v6, 7, v2
        v_lshlrev_b32 v6, 4, v6
        v_lshl_add_u32 v7, v5, 11, v6
        v_xor_b32 v8, 2048, v7
        s_lshl_b32 s36, s3, 15
        s_add_u32 s36, s36, s34
        s_add_u32 s37, s36, 16384
        s_lshl_b32 s38, s3, 11
        s_add_u32 m0, s38, {s.KST + 1024}
        s_nop 0
        buffer_load_dwordx4 v8, s[12:15], s36 offen nt lds
        s_add_u32 m0, s38, {s.VST}
        s_nop 0
        buffer_load_dwordx4 v7, s[16:19], s36 offen nt lds
        s_add_u32 m0, s38, {s.KST + 2048}
        s_nop 0
        buffer_load_dwordx4 v7, s[12:15], s37 offen nt lds
        s_add_u32 m0, s38, {s.VST + 1024}
        s_nop 0
        buffer_load_dwordx4 v8, s[16:19], s37 offen nt lds""")
        l = s.only_wave(3)
        a(f"s_sub_u32 s36, s34, 16384\nv_add_u32 v8, s36, v7\ns_mov_b32 m0, {s.KST}\nbuffer_load_dwordx4 v8, s[12:15], 0 offen nt lds\n{l}:")
    def kv_build(s):
        a = s.a
        KR, VR, SH, SF, KF, VF = 20, 44, 64, 72, 88, 136
        s.srd(20, "shift", D*8)
        a(f"""s_lshl_b32 s35, s32, 6
        v_lshl_add_u32 v6, v3, 2, s35 ; ch
        v_lshlrev_b32 v1, 3, v6
        buffer_load_dwordx4 {Q4(SH)}, v1, s[20:23], 0 offen
        buffer_load_dwordx4 {Q4(SH+4)}, v1, s[20:23], 0 offen offset:16""")
        s.load_d()
        a(f"""v_lshrrev_b32 v5, 4, v0
        v_lshlrev_b32 v7, 10, v5
        v_lshl_add_u32 v7, v3, 3, v7
        v_add_u32 v7, {s.KST}, v7
        v_and_b32 v8, 1, v5
        v_lshlrev_b32 v8, 7, v8
        v_add_u32 v12, v7, v8
        v_sub_u32 v13, v7, v8
        v_xor_b32 v8, 128, v8
        v_add_u32 v14, v7, v8
        v_sub_u32 v15, v7, v8
        v_lshlrev_b32 v5, 3, v5
        s_lshl_b32 s36, s33, 7
        v_add_u32 v5, s36, v5         ; s0
        v_sub_u32 v1, 2040, v5
        v_lshlrev_b32 v1, 1, v1
        v_lshl_add_u32 v1, v6, 12, v1
        s_waitcnt vmcnt(0)""")
        s.stamp(1, "kv landed")
        s.bar("kv in")
        for r in range(11):
            rho = r + 5; base = (12 if rho < 8 else 14) + (rho & 1)
            a(f"ds_read_b64 {P2(KR+2*r)}, v{base} offset:{128*rho}")
            if r >= 3: a(f"ds_read_b64 {P2(VR+2*(r-3))}, v{12+((r-3)&1)} offset:{s.VST-s.KST+128*(r-3)}")
            if r == 5:
                for e in range(4):
                    for hf in range(2): s.unpack(SF + (2*hf)*4 + e, SF + (2*hf+1)*4 + e, SH + 2*e + hf)
        cnt = 19
        for r in range(11):
            cnt -= 1 if r < 3 else 2
            a(f"s_waitcnt lgkmcnt({min(cnt, 15)})")
            for hf in range(2): s.unpack(KF + 4*r + 2*hf, KF + 4*r + 2*hf + 1, KR + 2*r + hf)
            if r >= 3:
                o = r - 3
                for hf in range(2): s.unpack(VF + 4*o + 2*hf, VF + 4*o + 2*hf + 1, VR + 2*o + hf)
                for hf in range(2): a(f"v_pk_mul_f32 {P2(8+2*hf)}, {P2(KF+4*(r-3)+2*hf)}, {P2(SF+12+2*hf)}")
                for j in (2, 1, 0):
                    for hf in range(2): a(f"v_pk_fma_f32 {P2(8+2*hf)}, {P2(KF+4*(r-j)+2*hf)}, {P2(SF+4*j+2*hf)}, {P2(8+2*hf)}")
                for hf in range(2): a(f"v_pk_mul_f32 {P2(VF+4*o+2*hf)}, {P2(8+2*hf)}, {P2(VF+4*o+2*hf)}")
        s.stamp(2, "kv computed")
        for e in range(4):
            t = 20 + 4*e
            for d in range(4): a(f"v_cvt_pk_bf16_f32 v{t+d}, v{VF+4*(7-2*d)+e}, v{VF+4*(6-2*d)+e}")
            a(f"s_mov_b32 s30, {WS_KV + e*4096}\nbuffer_store_dwordx4 {Q4(t)}, v1, {W}, s30 offen {'' if s.opt.get('kvlocal', 0) else 'sc1'}")
    def load_d(s):
        s.srd(24, "ssmd", D*2)
        s.a("s_lshl_b32 s37, s7, 2\ns_add_u32 s37, s37, s3\ns_lshl_b32 s37, s37, 1\nv_mov_b32 v1, s37\nbuffer_load_ushort v190, v1, s[24:27], 0 offen")
    def poison(s):
        a = s.a; l = s.only_wave(5)
        a(f"s_cmp_ge_u32 s5, 28\ns_cbranch_scc1 {l}\ns_mul_i32 s37, s58, 14\ns_add_u32 s37, s37, s59\ns_lshl_b32 s37, s37, 10\ns_add_u32 s37, s37, {WS_GRAN}\nv_lshlrev_b32 v1, 4, v2")
        for j in range(4): a(f"v_mov_b32 v{16+j}, -1")
        a(f"buffer_store_dwordx4 v[16:19], v1, {W}, s37 offen sc1\n{l}:")
    def k_load(s):
        a = s.a
        s.srd(12, "ssmk", D*S*2)
        a(f"""s_sub_u32 s30, s3, 4
        s_lshl_b32 s33, s7, 2
        s_add_u32 s33, s33, s30
        s_mul_i32 s34, s30, {CH_STRIDE}
        s_lshl_b32 s36, s33, 12
        v_lshlrev_b32 v5, 4, v2
        v_mov_b32 v6, s36
        buffer_load_dword v8, v6, s[12:15], 0 offen""")
        for i in range(4):
            a(f"s_add_u32 m0, s34, {KA_OFF+64+1024*i}\ns_add_u32 s37, s36, {1024*i}\nbuffer_load_dwordx4 v5, s[12:15], s37 offen nt lds")
            a(f"s_add_u32 m0, s34, {KB_OFF+64+1024*i}\ns_add_u32 s37, s36, {4+1024*i}\nbuffer_load_dwordx4 v5, s[12:15], s37 offen nt lds")
        a(f"""v_and_b32 v10, 31, v2
        v_min_u32 v10, 27, v10
        v_lshlrev_b32 v10, 4, v10
        v_lshrrev_b32 v11, 5, v2
        v_mul_u32_u24 v11, {KVE_OFF}, v11
        v_add3_u32 v10, v10, v11, s34
        v_mov_b32 v12, 0
        v_mov_b32 v13, 0
        v_mov_b32 v14, 0
        v_mov_b32 v15, 0
        ds_write_b128 v10, v[12:15] offset:4096
        v_mov_b32 v10, {MISC+768}
        ds_write_b64 v10, v[12:13]
        v_and_b32 v10, 1, v4
        v_mul_u32_u24 v10, {KB_OFF - KA_OFF}, v10
        v_lshl_add_u32 v10, v3, 2, v10
        v_add_u32 v10, s34, v10
        v_and_b32 v11, 31, v2""")
    def k_patch(s):
        s.a(f"v_cmp_eq_u32 vcc, 31, v11\ns_waitcnt vmcnt(0)\nv_cndmask_b32 v8, 0, v8, vcc\nds_write_b32 v10, v8 offset:{KA_OFF}\ns_waitcnt lgkmcnt(0)")
    def gemv_setup(s):
        a = s.a
        s.srd(16, "wmod", D*6*D*2); s.srd(20, "c", D*2)
        a(f"""s_lshl_b32 s36, s34, 8
        v_lshl_add_u32 v29, v2, 2, s36
        buffer_load_dword v28, v29, s[20:23], 0 offen
        s_mul_i32 s36, s34, {128*12288}
        s_lshl_b32 s37, s35, 7
        s_add_u32 s46, s36, s37
        v_lshrrev_b32 v20, 3, v2
        v_mul_u32_u24 v20, 12288, v20
        v_and_b32 v21, 7, v2
        v_and_b32 v22, 1, v4
        v_lshlrev_b32 v22, 1, v22
        v_xor_b32 v21, v21, v22
        v_lshl_add_u32 v20, v21, 4, v20
        v_xor_b32 v21, 64, v20
        s_lshl_b32 s41, s40, 8
        s_add_u32 s41, s41, {MISC - 1024}
        s_lshl_b32 s40, s40, 14
        s_add_u32 s40, s40, {HB}
        s_mov_b32 s45, s35""")
    def gemv_issue(s):
        for i in range(16):
            s.a(f"s_add_u32 m0, s40, {1024*i}\nbuffer_load_dwordx4 v{20+(i&1)}, s[16:19], s46 offen nt lds\ns_add_u32 s46, s46, {8*12288}")
    GR = 208
    def silu(s):
        a = s.a; CF, AD = s.GR, s.GR+16
        a(f"""v_lshlrev_b32 v22, 16, v28
        v_and_b32 v23, 0xffff0000, v28
        v_mul_f32 v24, {fbits(-LOG2E)}, v22
        v_mul_f32 v25, {fbits(-LOG2E)}, v23
        v_exp_f32 v24, v24
        v_exp_f32 v25, v25
        v_add_f32 v24, 1.0, v24
        v_add_f32 v25, 1.0, v25
        v_rcp_f32 v24, v24
        v_rcp_f32 v25, v25
        v_mul_f32 v22, v22, v24
        v_mul_f32 v23, v23, v25
        v_cvt_pk_bf16_f32 v22, v22, v23
        v_lshl_add_u32 v23, v2, 2, s41
        ds_write_b32 v23, v22
        v_lshl_add_u32 v23, v4, 4, s41
        s_waitcnt lgkmcnt(0)""")
        for kk in range(4): a(f"ds_read_b128 {Q4(CF+4*kk)}, v23 offset:{64*kk}")
        a(f"""v_bfe_u32 v24, v2, 2, 2
        v_and_b32 v25, 3, v2
        v_lshl_add_u32 v26, v4, 3, v24
        v_lshlrev_b32 v26, 7, v26
        v_lshl_add_u32 v26, v25, 3, v26
        v_add_u32 v26, s40, v26
        v_lshrrev_b32 v24, 1, v24
        v_and_b32 v25, 1, v4
        v_lshl_or_b32 v24, v25, 1, v24""")
        for u in range(4): a(f"v_xor_b32 v25, {u}, v24\nv_lshl_add_u32 v{AD+u}, v25, 5, v26")
        a("s_waitcnt lgkmcnt(0)")
    def gemv_finish(s, WF):
        a = s.a; CF, AD, AC = s.GR, s.GR+16, s.GR+20
        for kp in range(2):
            for kk in (2*kp, 2*kp+1):
                for u in range(4):
                    b = WF + 16*(kk & 1) + 4*u
                    a(f"ds_read_b64_tr_b16 {P2(b)}, v{AD+u} offset:{4096*kk}\nds_read_b64_tr_b16 {P2(b+2)}, v{AD+u} offset:{4096*kk+512}")
                if kk & 1 == 0: a("s_waitcnt lgkmcnt(4)")
            a("s_waitcnt lgkmcnt(0)")
            for kk in (2*kp, 2*kp+1):
                for u in range(4): a(f"v_mfma_f32_16x16x32_bf16 {Q4(AC+4*u)}, {Q4(CF+4*kk)}, {Q4(WF+16*(kk&1)+4*u)}, " + (Q4(AC+4*u) if kk else "0"))
        for u in range(1, 4): a(f"v_cmp_eq_u32 vcc, {u}, v4\nv_cndmask_b32 v{AC}, v{AC}, v{AC+4*u}, vcc")
        a(f"v_lshl_add_u32 v23, v2, 2, s41\nds_write_b32 v23, v{AC}\ns_waitcnt lgkmcnt(0)")
    def gemv_store(s, XN, lg):
        a = s.a
        s.gemv_finish(XN)
        s.spin(MISC+772)
        a(f"s_cmp_lg_u32 s3, 4\ns_cbranch_scc1 {lg}\nv_lshl_add_u32 v23, v2, 2, s41")
        for w in range(4): a(f"ds_read_b32 v{24+w}, v23 offset:{256*w}")
        a(f"""s_mul_i32 s37, s47, 24576
        s_lshl_b32 s38, s45, 8
        s_add_u32 s37, s37, s38
        v_lshlrev_b32 v23, 2, v2
        s_waitcnt lgkmcnt(0)
        v_add_f32 v24, v24, v25
        v_add_f32 v26, v26, v27
        v_add_f32 v24, v24, v26
        buffer_store_dword v24, v23, {W}, s37 offen sc1
        {lg}:""")
    def spin(s, off):
        a = s.a; sp, so = a.label("L_spin"), a.label("L_spun")
        a(f"""v_mov_b32 v7, {off}
        v_mov_b32 v6, 1
        s_mov_b64 exec, 1
        ds_add_u32 v7, v6
        s_mov_b64 exec, -1
        s_mov_b32 s39, 0
        {sp}:
        ds_read_b32 v6, v7
        s_add_u32 s39, s39, 1
        s_cmp_gt_u32 s39, 200000
        s_cbranch_scc1 {so}
        s_waitcnt lgkmcnt(0)
        v_cmp_ne_u32 vcc, 4, v6
        s_cbranch_vccnz {sp}
        {so}:""")
    def front(s):
        a = s.a
        a("s_waitcnt lgkmcnt(0)")
        if s.opt.get("st0"): s.stamp(26, "kernarg")
        s.kv_stage()
        if s.opt.get("st0"): s.stamp(27, "kv issued")
        a.srd(8, PTR["ws"], 128*MB)
        a("s_cmp_ge_u32 s3, 4\ns_cbranch_scc1 L_B\nL_padstart:")
    def gemv_task(s, late=False):
        s.a("s_add_u32 s33, s32, 160" if late else f"s_mul_i32 s33, s4, {s.NG}\ns_add_u32 s33, s33, s5")
        s.a("""s_sub_u32 s40, s3, 4
        s_lshr_b32 s35, s33, 1
        s_and_b32 s47, s33, 1
        s_lshl_b32 s34, s47, 2
        s_add_u32 s34, s34, s40""")
        s.gemv_setup()
    def gemv_part(s, lo, hi, wait=None):
        a = s.a; l, l2 = a.label("L_gp"), a.label("L_gp")
        if hi > lo:
            a(f"s_cmp_ge_u32 s5, {s.NG}\ns_cbranch_scc1 {l}\ns_cmp_lt_u32 s3, {4+lo}\ns_cbranch_scc1 {l}\ns_cmp_ge_u32 s3, {4+hi}\ns_cbranch_scc1 {l}")
            s.gemv_issue()
            if wait is not None: wait(); a(f"s_waitcnt vmcnt(16)\ns_branch {l2}")
        a(f"{l}:")
        if wait is not None: wait(); a(f"s_waitcnt vmcnt(0)\n{l2}:")
    def touch(s, srd="s[12:15]"):
        s.a(f"s_sub_u32 s30, s3, 4\ns_mul_i32 s33, s2, 28672\ns_mul_i32 s39, s30, 7168\ns_add_u32 s33, s33, s39\ns_add_u32 s33, s33, {3584 if s.opt.get('thalf', 1) else 0}\nv_min_u32 v7, {27 if s.opt.get('thalf', 1) else 55}, v2\nv_lshlrev_b32 v7, 7, v7\nbuffer_load_dword v204, v7, {srd}, s33 offen")
    def front_B(s):
        a = s.a; kl = s.opt.get("klate", 1); loc = s.opt.get("kvlocal", 0)
        a(f"s_load_dword s6, s[94:95], {WS_EPOCH}")
        if not s.opt.get("nocodepf"): s.code_prefetch(6)
        s.poison()
        s.gemv_task()
        s.hop(0, 4)
        a("s_waitcnt lgkmcnt(0)\ns_add_u32 s6, s6, 1")
        if loc: l = s.only_wave(7); s.hello_send(); a(f"{l}:")
        a("s_waitcnt vmcnt(1)")
        s.bar("kv in")
        if loc: l = s.only_wave(7); s.hello_check(); a(f"{l}:")
        if kl == 2: s.k_load()
        t3 = s.opt.get("touch", 0) == 3
        if t3: s.srd(24, "win", D*F*2); s.touch("s[24:27]")
        s.ld_setup()
        a(f"s_waitcnt vmcnt({(9 if kl == 2 else 0) + t3})")
        s.silu()
        s.stamp(3, None)
        s.bar("kv stored")
        l = s.only_wave(7); s.set_flag(0, "s7", loc); a(f"{l}:")
        if kl == 1: s.k_load()
        if s.opt.get("touch", 0) == 4: s.srd(24, "win", D*F*2); s.touch("s[24:27]")
        l = s.only_wave(7); a("s_andn2_b32 s37, s7, 15"); s.poll(0, "s37", 16, fl=s.opt.get("pollfl", "sc1"))
        if loc: s.acquire_if_far()
        a(f"{l}:")
        s.k_patch()

    def conv_A(s):
        a = s.a
        s.kv_build()
        a(f"""s_mul_i32 s34, s3, {CH_STRIDE}
        v_and_b32 v10, 1, v3
        v_xor_b32 v11, 1, v10
        v_mul_u32_u24 v11, {KVE_OFF}, v11
        v_lshrrev_b32 v16, 1, v3
        v_sub_u32 v16, 7, v16
        v_lshlrev_b32 v16, 6, v16
        v_lshl_add_u32 v16, v4, 4, v16
        v_add3_u32 v16, v16, v11, s34
        v_mul_u32_u24 v11, {KB_OFF - KA_OFF - 4}, v10
        v_sub_u32 v11, {KB_OFF}, v11
        v_lshl_add_u32 v11, v3, 2, v11
        v_lshl_add_u32 v11, v4, 4, v11
        v_add_u32 v17, s34, v11
        v_lshlrev_b32 v10, 2, v4
        v_add_u32 v10, v10, v3
        v_sub_u32 v10, 15, v10
        v_lshlrev_b32 v5, 4, v2
        s_lshl_b32 s35, s7, 2
        s_add_u32 s35, s35, s3
        s_lshl_b32 s35, s35, 12
        s_add_u32 s35, s35, {WS_KV}
        v_mov_b32 v18, s34
        v_mov_b32 v19, 0""")
        for w in range(4): a(f"v_cmp_eq_u32 vcc, {w}, v10\nv_cndmask_b32 v{12+w}, 0, v190, vcc")
        a("s_waitcnt vmcnt(0)")
        s.stamp(3, "kv stored")
        s.bar("kv stored")
        s.bar("sync1")
        s.stamp(4, "sync1 released")
        for i in range(4):
            a(f"s_add_u32 m0, s34, {1024*i}\ns_add_u32 s37, s35, {1024*i}\nbuffer_load_dwordx4 v5, {W}, s37 offen {s.opt.get('kvld', '') if s.opt.get('kvlocal', 0) else 'sc1'} lds")
            if s.opt.get("kvemis"): a(f"s_add_u32 m0, s34, {KVE_OFF+1024*i}\ns_add_u32 s37, s35, {2+1024*i}\nbuffer_load_dwordx4 v5, {W}, s37 offen sc1 lds")
        ACC, SET = 24, [56, 120]
        def reads(st, mu):
            out = []
            for n in range(8):
                b = SET[st] + 32 + 4*n
                out.append(f"ds_read_b128 {Q4(SET[st]+4*n)}, v16 offset:{512*(7-n)+64*mu}")
                out.append(f"ds_read_b64 {P2(b)}, v17 offset:{512*n+64*mu}")
                out.append(f"ds_read_b64 {P2(b+2)}, v17 offset:{512*n+64*mu+8}")
            return out
        if s.opt.get("kvemis"): a(f"s_waitcnt vmcnt(0)\nds_write_b16 v18, v19 offset:{KVE_OFF+4094}")
        else:
            a("v_add_u32 v18, s34, v5")
            for i in range(4): a(f"s_waitcnt vmcnt({3-i})\nds_read_b128 {Q4(24+8*i)}, v18 offset:{1024*i}")
            for i in range(4): a(f"ds_read_b32 v{28+8*i}, v18 offset:{1024*i+16}")
            for i in range(4):
                a(f"s_waitcnt lgkmcnt(3)")
                for j in range(4): a(f"v_alignbit_b32 v{24+8*i+j}, v{25+8*i+j}, v{24+8*i+j}, 16")
                a(f"ds_write_b128 v18, {Q4(24+8*i)} offset:{KVE_OFF+1024*i}")
        s.stamp(5, "kv in lds")
        a(f"s_mul_i32 s37, s3, {CH_STRIDE + 128}\nv_lshlrev_b32 v10, 2, v3\nv_lshl_add_u32 v10, v4, 7, v10\nv_add_u32 v10, s37, v10")
        a(f"""v_bfe_u32 v11, v2, 1, 2
        v_lshrrev_b32 v18, 3, v2
        v_and_b32 v20, 1, v2
        v_mul_u32_u24 v19, {CH_STRIDE + 128}, v11
        v_lshl_add_u32 v19, v18, 5, v19
        v_lshl_add_u32 v19, v20, 4, v19
        s_lshl_b32 s38, s3, 10
        v_add_u32 v19, s38, v19
        s_lshl_b32 s38, s7, 7
        v_and_b32 v11, 7, v2
        v_lshl_add_u32 v11, v11, 4, s38
        v_lshl_add_u32 v11, v18, 15, v11
        s_lshl_b32 s38, s3, 20
        s_add_u32 s38, s38, {WS_Y2}
        """)
        def ystage(t):
            for jp in range(2): a(f"v_cvt_pk_bf16_f32 v{152+2*t+jp}, v{ACC+4*t+2*jp}, v{ACC+4*t+2*jp+1}\nds_write_b32 v10, v{152+2*t+jp} offset:{512*t+64*jp}")
        ystaged = 0
        cm = s.opt.get("cmode", 2)
        if cm:
            KVF, KF = 56, [88, 120]
            kreads = lambda mu: [f"ds_read_b64 {P2(KF[mu & 1]+4*n+2*h)}, v17 offset:{512*n+64*mu+8*h}" for n in range(8) for h in range(2)]
            nl = s.opt.get("klast", 16)
            for r in kreads(0)[:16-nl]: a(r)
            s.bar("kv landed")
            for mu in range(8):
                for n in range(8): a(f"ds_read_b128 {Q4(KVF+4*n)}, v16 offset:{512*(7-n)+64*mu}")
                for r in kreads(mu)[16-nl:]: a(r)
                nxt = kreads(mu+1)[:16-nl] if mu < 7 else []; k = 0
                for i in range(8):
                    a(f"s_waitcnt lgkmcnt({min(15, (0 if cm == 2 else 7 - i) + k)})")
                    for j in range(8-i):
                        t = i+j
                        if mu == 0 and j == 0: a(f"v_mfma_f32_16x16x32_bf16 {Q4(ACC+4*t)}, {Q4(KVF+4*i)}, v[12:15], " + ("0" if i == 0 else Q4(ACC+4*t)))
                        a(f"v_mfma_f32_16x16x32_bf16 {Q4(ACC+4*t)}, {Q4(KVF+4*i)}, {Q4(KF[mu & 1]+4*j)}, " + ("0" if mu == 0 and i == 0 and j else Q4(ACC+4*t)))
                        if i and nxt: a(nxt.pop(0)); k += 1
                        if mu == 7 and cm == 2 and j == min(3, 7-i) and 1 <= i <= 5 and s.opt.get("yearly", 1): ystage(ystaged); ystaged += 1; k += 2
        else:
            for r in reads(0, 0): a(r)
            s.bar("kv landed")
            for mu in range(8):
                st = mu & 1
                nxt = reads(1-st, mu+1) if mu < 7 else []
                a("s_waitcnt lgkmcnt(0)")
                ms = []
                if mu == 0:
                    for t in range(8): ms.append(f"v_mfma_f32_16x16x32_bf16 {Q4(ACC+4*t)}, {Q4(SET[0]+4*t)}, v[12:15], 0")
                for j in range(8):
                    for i in range(8-j):
                        t = i+j
                        ms.append(f"v_mfma_f32_16x16x32_bf16 {Q4(ACC+4*t)}, {Q4(SET[st]+4*i)}, {Q4(SET[st]+32+4*j)}, {Q4(ACC+4*t)}")
                for n, m in enumerate(ms):
                    a(m)
                    if n < len(nxt): a(nxt[n])
                    cs = s.opt.get("cslow")
                    if cs and (mu < cs[0] if cs[0] > 0 else mu >= -cs[0]) and n % cs[1] == 0: a(f"s_nop {cs[2]}")
        if s.opt.get("wlate"): s.a("s_barrier")
        s.stamp(6, "conv mfma done")
        for t in range(ystaged, 8): ystage(t)
        a("s_waitcnt lgkmcnt(0)")
        if s.opt.get("aspin", 1): s.spin(MISC+768)
        else: s.bar("y staged")
        s.stamp(7, "y staged")
        for q in range(4): a(f"ds_read_b128 {Q4(72+4*q)}, v19 offset:{256*q}")
        for q in range(4):
            a(f"s_waitcnt lgkmcnt({3-q})\nbuffer_store_dwordx4 {Q4(72+4*q)}, v11, {W}, s38 offen sc1\ns_add_u32 s38, s38, {16*16384}")
        a("s_waitcnt vmcnt(0)")
        s.stamp(8, "y stored")
        apre = s.opt.get("xpre", 0) in (3, 4)
        if apre:
            s.srd(12, "win", D*F*2)
            a(f"""s_and_b32 s30, s3, 1
            v_lshlrev_b32 v6, 1, v4
            v_xor_b32 v6, v6, v3
            s_lshl_b32 s35, s30, 5
            v_add_u32 v16, s35, v4
            v_mul_u32_u24 v5, {F*2}, v16
            s_lshl_b32 s36, s59, 8
            v_add_u32 v5, s36, v5""")
            for i in range(8): a(f"v_xor_b32 v7, {8*((i>>1)&1)}, v6\nv_lshl_add_u32 v7, v7, 4, v5\nv_add_u32 v{120+i}, {i*4*F*2}, v7")
            a(f"s_mul_i32 s33, s2, 21504\ns_mul_i32 s39, s3, 7168\ns_add_u32 s33, s33, s39\ns_add_u32 s33, s33, {256*7168 + 3584}\nv_min_u32 v7, 27, v2\nv_lshlrev_b32 v7, 7, v7")
        seq = ["y stored", "stats1", "sync2", "y landed", "stats2", "h2 stored"]; cut = 1 if s.opt.get("xpre", 0) == 4 else 4
        for b in seq[:cut]: s.bar(b)
        if apre:
            l, l2 = a.label("L_apre"), a.label("L_apre")
            a(f"s_cmp_ge_u32 s5, 28\ns_cbranch_scc1 {l}\ns_cmp_ge_u32 s3, 2\ns_cbranch_scc1 {l}")
            for k in range(4): s.ld_ops("w_in2", k)
            a(f"{l}:\ns_cmp_eq_u32 s3, 3\ns_cbranch_scc1 {l2}\nbuffer_load_dword v8, v7, s[12:15], s33 offen\n{l2}:")
        for b in seq[cut:]: s.bar(b)
        if apre: a("s_waitcnt vmcnt(0)")

    def row_B(s):
        a = s.a; o = s.opt
        XR, YR, MODV, XF, XN, T = 164, 8, 180, 32, 64, 96
        s.front_B()
        s.stamp(4, None)
        s.bar("sync1")
        s.bar("kv landed")
        if o.get("wlate"): s.a("s_barrier")
        if not o.get("xfirst", 0): s.gemv_part(o.get("e1", 0) + o.get("e2", 0), 4)
        s.srd(24, "q", S*D*2)
        a("v_and_b32 v6, 255, v0\nv_lshlrev_b32 v1, 3, v6\ns_lshl_b32 s32, s7, 14")
        for r in range(8):
            if r % 2 == 0: a(f"s_add_u32 s38, s32, {2048*r}")
            a(f"buffer_load_dwordx2 {P2(XR+2*r)}, v1, s[24:27], s38 offen offset:{2048*(r&1)} nt")
        if o.get("xfirst", 0): s.gemv_part(o.get("e1", 0) + o.get("e2", 0), 4)
        s.srd(12, "win", D*F*2)
        touch = s.touch
        if o.get("touch", 0) == 0: touch()
        if o.get("touch", 0) == 5:
            l = a.label("L_not")
            a(f"""s_cmp_lt_u32 s5, {s.NG}
            s_cbranch_scc1 {l}
            s_mul_i32 s33, s4, {32-s.NG}
            s_add_u32 s33, s33, s5
            s_sub_u32 s33, s33, {s.NG}
            s_lshl_b32 s33, s33, 2
            s_add_u32 s33, s33, s30
            s_mul_i32 s33, s33, {3*F*2}
            s_add_u32 s33, s33, {FH*2}
            v_and_b32 v7, 31, v2
            v_min_u32 v7, 27, v7
            v_lshlrev_b32 v7, 7, v7
            v_lshrrev_b32 v5, 5, v2
            v_mul_u32_u24 v5, {F*2}, v5
            v_add_u32 v5, v5, v7
            buffer_load_dword v204, v5, s[12:15], s33 offen
            s_add_u32 s33, s33, {2*F*2}
            buffer_load_dword v204, v7, s[12:15], s33 offen
            {l}:""")
        a(f"""v_lshlrev_b32 v200, 4, v6
        v_bfe_u32 v201, v6, 2, 2
        v_lshlrev_b32 v6, 6, v6
        v_add_u32 v6, {YST}, v6""")
        for e in range(4): a(f"v_xor_b32 v7, {e}, v201\nv_lshl_add_u32 v{116+e}, v7, 4, v6")
        a(f"""s_lshl_b32 s37, s30, 2
        s_add_u32 s37, s37, {MISC}
        v_and_b32 v202, 1, v4
        v_lshrrev_b32 v203, 1, v4
        v_lshl_or_b32 v202, v202, 1, v203
        v_lshl_add_u32 v202, v202, 5, s37
        v_and_b32 v203, 7, v2
        v_lshlrev_b32 v203, 5, v203
        v_add_u32 v203, {MISC}, v203
        v_xor_b32 v201, v2, v4
        v_lshlrev_b32 v201, 5, v201""")
        def partial(src, off, pk=True):
            for r in range(8):
                x = src + 4*r
                if pk:
                    a(f"""v_pk_add_f32 {P2(T+16)}, {P2(x)}, {P2(x+2)}
                    v_pk_mul_f32 {P2(T+18)}, {P2(x)}, {P2(x)}
                    v_pk_fma_f32 {P2(T+18)}, {P2(x+2)}, {P2(x+2)}, {P2(T+18)}
                    v_add_f32 v{T+r}, v{T+16}, v{T+17}
                    v_add_f32 v{T+8+r}, v{T+18}, v{T+19}""")
                else:
                    a(f"v_add_f32 v{T+r}, v{x}, v{x+1}\nv_mul_f32 v{T+8+r}, v{x}, v{x}\nv_add_f32 v{T+16}, v{x+2}, v{x+3}")
                    for j in (1, 2, 3): a(f"v_fmac_f32 v{T+8+r}, v{x+j}, v{x+j}")
                    a(f"v_add_f32 v{T+r}, v{T+r}, v{T+16}")
            for p in range(8): a(f"v_permlane32_swap_b32 v{T+2*p}, v{T+2*p+1}")
            for p in range(8): a(f"v_add_f32 v{T+2*p}, v{T+2*p}, v{T+2*p+1}")
            for p in range(4): a(f"v_permlane16_swap_b32 v{T+4*p}, v{T+4*p+2}")
            for p in range(4): a(f"v_add_f32 v{T+4*p}, v{T+4*p}, v{T+4*p+2}")
            for sh in (8, 4, 2, 1):
                for p in range(4): a(f"v_add_f32_dpp v{T+4*p}, v{T+4*p}, v{T+4*p} row_ror:{sh} row_mask:0xf bank_mask:0xf")
            for p in range(4): a(f"ds_write_b32 v202, v{T+4*p} offset:{off + (p&1)*128 + (p>>1)*16}")
            a("s_waitcnt lgkmcnt(0)")
        def final(off, prod=False):
            a(f"""ds_read_b128 {Q4(T)}, v203 offset:{off}
            ds_read_b128 {Q4(T+4)}, v203 offset:{off+16}
            s_waitcnt lgkmcnt(0)
            v_add_f32 v{T}, v{T}, v{T+1}
            v_add_f32 v{T+2}, v{T+2}, v{T+3}
            v_add_f32 v{T+4}, v{T+4}, v{T+5}
            v_add_f32 v{T+6}, v{T+6}, v{T+7}
            v_add_f32 v{T}, v{T}, v{T+2}
            v_add_f32 v{T+4}, v{T+4}, v{T+6}
            v_mul_f32 v{T}, {fbits(-1/1024)}, v{T}
            v_mul_f32 v{T+4}, {fbits(1/1024)}, v{T+4}
            v_fma_f32 v{T+4}, -v{T}, v{T}, v{T+4}
            v_max_f32 v{T+4}, 0, v{T+4}
            v_add_f32 v{T+4}, {fbits(1e-5)}, v{T+4}
            v_rsq_f32 v{T+4}, v{T+4}""")
            if prod: a(f"v_mul_f32 v{T}, v{T}, v{T+4}")
            for r in range(8): a(f"v_readlane_b32 s{64+2*r}, v{T}, {r}\nv_readlane_b32 s{65+2*r}, v{T+4}, {r}")
        if o.get("touch", 0) == 1: touch()
        s.hop(4, s.NPAD)
        s.stamp(5, None)
        lg = a.label("L_nogemv"); a(f"s_cmp_ge_u32 s5, {s.NG}\ns_cbranch_scc1 {lg}\ns_waitcnt vmcnt({(1 if o.get('touch', 0) < 2 else 0) + (0 if o.get('xfirst', 0) else 8)})")
        s.gemv_store(XN, lg)
        s.srd(16, "wsp", S*S*2); s.srd(24, "win", D*F*2); s.srd(20, "wout", FH*D*2)
        s.stamp(6, None)
        if not s.opt.get("aspin", 1): s.bar("y staged")
        a("s_waitcnt vmcnt(0)")
        s.stamp(8, None)
        s.bar("y stored")
        l = s.only_wave(7); s.set_flag(1, "s2"); a(f"{l}:")
        if o.get("touch", 0) == 2 and o.get("xpre", 0) not in (3, 4): touch()
        def preload():
            l = a.label("L_nopre")
            a(f"s_cmp_ge_u32 s3, 6\ns_cbranch_scc1 {l}\ns_cmp_ge_u32 s5, 28\ns_cbranch_scc1 {l}")
            for g in range(4): s.ld_ops("w_in2", g)
            a(f"{l}:")
        if o.get("xpre", 0) == 0: preload()
        for r in range(8):
            for hf in range(2): s.unpack(XF+4*r+2*hf, XF+4*r+2*hf+1, XR+2*r+hf)
        partial(XF, 0)
        s.bar("stats1")
        final(0)
        def normalise():
            for r in range(8):
                for hf in (0, 2): a(f"v_pk_add_f32 {P2(XN+4*r+hf)}, {P2(XF+4*r+hf)}, s[{64+2*r}:{65+2*r}] op_sel_hi:[1,0]")
                for hf in (0, 2): a(f"v_pk_mul_f32 {P2(XN+4*r+hf)}, {P2(XN+4*r+hf)}, s[{64+2*r}:{65+2*r}] op_sel:[0,1] op_sel_hi:[1,1]")
        normalise()
        s.stamp(9, "ln1 done")
        if o.get("xpre", 0) == 2: preload()
        l = s.only_wave(7); s.poll(1, None, 256)
        a(f"s_cmp_lg_u32 s2, 0\ns_cbranch_scc1 {l}\nv_mov_b32 v250, s6\nv_mov_b32 v251, {WS_EPOCH}\ns_mov_b64 exec, 1\nbuffer_store_dword v250, v251, {W}, 0 offen sc1\ns_mov_b64 exec, -1\n{l}:")
        a(f"s_lshl_b32 s33, s30, 12\ns_add_u32 s48, s33, {YST}\ns_lshl_b32 s33, s30, 13\ns_lshr_b32 s38, s7, 1\ns_lshl_b32 s38, s38, 15\ns_add_u32 s33, s33, s38\ns_and_b32 s38, s7, 1\ns_lshl_b32 s38, s38, 4\ns_add_u32 s33, s33, s38\ns_add_u32 s33, s33, {WS_Y2}")
        s.bar("sync2")
        s.stamp(10, "sync2 released")
        for i in range(4): a(f"s_add_u32 m0, s48, {1024*i}\ns_add_u32 s38, s33, {2048*i}\nbuffer_load_dwordx4 v201, {W}, s38 offen sc1 lds")
        for ms in ((0, 1, 2), (3, 4)):
            for m in ms:
                for hf, base in enumerate((MODV, 208)): a(f"s_mov_b32 s38, {WS_MOD + 24576*hf + 4096*m}\nbuffer_load_dwordx4 {Q4(base+4*m)}, v200, {W}, s38 offen sc1")
        a("s_waitcnt vmcnt(10)")
        s.bar("y landed")
        s.stamp(11, "y landed")
        for e in range(4): a(f"ds_read_b128 {Q4(YR+4*e)}, v{116+e}")
        YF = T
        a("s_waitcnt vmcnt(4)")
        for n in range(0, 12, 2): a(f"v_pk_add_f32 {P2(MODV+n)}, {P2(MODV+n)}, {P2(208+n)}")
        for hf in (0, 2): a(f"v_pk_fma_f32 {P2(MODV+4+hf)}, {P2(MODV+4+hf)}, {P2(MODV+8+hf)}, {P2(MODV+8+hf)}")
        for hf in (0, 2): a(f"v_pk_mul_f32 {P2(MODV+hf)}, {P2(MODV+hf)}, {P2(MODV+8+hf)}")
        for r in range(8):
            for hf in (0, 2): a(f"v_pk_fma_f32 {P2(XN+4*r+hf)}, {P2(XN+4*r+hf)}, {P2(MODV+4+hf)}, {P2(MODV+hf)}")
        for q in range(4):
            if q == 0: a("s_waitcnt lgkmcnt(0)")
            for e in range(4): s.unpack(YF+e, YF+4+e, YR+4*e+q)
            for rr in range(2):
                for hf in (0, 2): a(f"v_pk_fma_f32 {P2(XF+4*(2*q+rr)+hf)}, {P2(XN+4*(2*q+rr)+hf)}, {P2(YF+4*rr+hf)}, {P2(XF+4*(2*q+rr)+hf)}")
        def x1_pack():
            for r in range(8):
                for hf in range(2): a(f"v_cvt_pk_bf16_f32 v{XR+2*r+hf}, v{XF+4*r+2*hf}, v{XF+4*r+2*hf+1}")
        if o.get("x1early", 1): x1_pack(); s.x1_store()
        partial(XF, 256)
        a(f"s_waitcnt vmcnt({8 if o.get('x1early', 1) else 0})")
        for n in range(12, 20, 2): a(f"v_pk_add_f32 {P2(MODV+n)}, {P2(MODV+n)}, {P2(208+n)}")
        for hf in (0, 2): a(f"v_pk_add_f32 {P2(MODV+16+hf)}, {P2(MODV+16+hf)}, 1.0 op_sel_hi:[1,0]")
        a("s_lshl_b32 s33, s7, 15\nv_lshrrev_b32 v6, 7, v1\n" + slot_v("v6", "v6", "v7") + "\nv_and_b32 v205, 127, v1\nv_lshl_add_u32 v205, v6, 7, v205")
        s.bar("stats2")
        final(256, True)
        for r in range(8):
            a(f"v_mov_b32 v{T+8+2*(r&1)}, s{64+2*r}")
            for hf in (0, 2): a(f"v_pk_fma_f32 {P2(XN+4*r+hf)}, {P2(XF+4*r+hf)}, s[{64+2*r}:{65+2*r}], {P2(T+8+2*(r&1))} op_sel:[0,1,0] op_sel_hi:[1,1,0]")
            for hf in (0, 2): a(f"v_pk_fma_f32 {P2(XN+4*r+hf)}, {P2(XN+4*r+hf)}, {P2(MODV+16+hf)}, {P2(MODV+12+hf)}")
            for hf in range(2): a(f"v_cvt_pk_bf16_f32 v{YR+2*r+hf}, v{XN+4*r+2*hf}, v{XN+4*r+2*hf+1}")
            a(f"s_add_u32 s38, s33, {WS_H2 + AP_*r}\nbuffer_store_dwordx2 {P2(YR+2*r)}, v205, {W}, s38 offen sc1")
        s.stamp(12, "h2 issued")
        a("s_waitcnt vmcnt(0)")
        s.stamp(13, "h2 stored")
        s.bar("h2 stored")
        l = s.only_wave(7); s.set_flag(2, "s7"); a(f"{l}:")
        if o.get("xpre", 0) == 1: preload()
        if not o.get("x1early", 1):
            x1_pack()
            if not o.get("x1late", 0): s.x1_store()
    def x1_store(s):
        for r in range(8):
            if r % 2 == 0: s.a(f"s_add_u32 s31, s32, {WS_X1 + 2048*r}")
            s.a(f"buffer_store_dwordx2 {P2(164+2*r)}, v1, {W}, s31 offen offset:{2048*(r&1)} {s.opt.get('x1fl', 'sc1')}")
        return 8

    RING = {1: dict(MY=128, U=4, LX=3, LY=3, X=lambda k: (k % 4)*32768, Y=lambda k: (k % 4)*32768 + 16384),
            3: dict(MY=64, U=8, LX=7, LY=3, X=lambda k: (k % 8)*16384, Y=lambda k: 131072 + (k % 4)*8192)}
    OPS = {"w_in2": ("X", 1, "s[12:15]", "", 120, lambda g: g*64*F*2 + FH*2, 64*F*2), "w_in1": ("X", 1, "s[24:27]", "sc1", 120, lambda g: (g-16)*64*F*2, 64*F*2),
           "h2": ("Y", 1, W, "sc1", 128, lambda g: SLOT(g % 16)*128, None), "z2": ("X", 1, W, "sc1", 136, lambda g: (g-32)*64*AP_, 64*AP_),
           "w_sp": ("Y", 1, "s[16:19]", "", 144, lambda g: (g-32)*128, 128), "w_spc": ("Y", 1, "s[64:67]", "sc1", 144, lambda g: (g-32)*128, 128),
           "w_out": ("X", 3, "s[20:23]", "sc1", 152, lambda g: g*64*D*2, 64*D*2), "p": ("Y", 3, W, "sc1", 160, lambda g: SLOT(g)*128, None)}
    G_, N_, K_ = 20, 24, 27
    def consumer(s, ring, FR):
        a = s.a; c = s.RING[ring]; MY, NS = c["MY"], c["U"]; NYT = MY//32; perm = ring == 3 and s.opt.get("pperm", 1)
        a(f"""s_and_b32 s35, s3, 1
        s_lshr_b32 s36, s3, 1
        v_bfe_u32 v5, v2, 2, 2
        v_and_b32 v6, 3, v2
        v_lshl_add_u32 v7, v4, {2 if perm else 3}, v5
        v_lshlrev_b32 v7, 8, v7
        v_lshl_add_u32 v7, v6, 3, v7
        v_and_b32 v6, 1, v4
        v_xor_b32 v6, s35, v6
        v_lshl_add_u32 v7, v6, 7, v7""")
        for i in range(4): a(f"v_xor_b32 v6, {i}, v5\nv_lshl_add_u32 v{8+i}, v6, 5, v7")
        a(f"""s_mul_i32 s37, s36, {MY//2*128}
        v_lshrrev_b32 v5, 1, v3
        v_xor_b32 v5, v5, v4
        v_lshlrev_b32 v5, 4, v5
        v_lshl_add_u32 v5, v3, 7, v5
        v_add_u32 v12, s37, v5
        v_add_u32 v12, {c["Y"](0) & ~0xffff}, v12
        v_xor_b32 v13, 64, v12""")
        def reads(k, ks, f):
            o = []; xo, yo = c["X"](k) & 0xffff, c["Y"](k) & 0xffff
            for n in range(4):
                if n < NYT: o.append(f"ds_read_b128 {Q4(f+16+4*n)}, v{12+ks} offset:{yo+2048*n}")
                o.append(f"ds_read_b64_tr_b16 {P2(f+4*n)}, v{8+n} offset:{xo+ks*8192}")
                o.append(f"ds_read_b64_tr_b16 {P2(f+4*n+2)}, v{8+n} offset:{xo+ks*8192+(4096 if perm else 1024)}")
            return o
        def mfmas(f, base, first=False):
            return [f"v_mfma_f32_16x16x32_bf16 {Q4(base+4*(x*NYT+ts))}, {Q4(f+4*x)}, {Q4(f+16+4*ts)}, " + ("0" if first else Q4(base+4*(x*NYT+ts)))
                    for x in range(4) for ts in range(NYT)]
        def inter(ms, rs, extra=(), tail=()):
            rs = list(rs); ex = list(extra); n = len(ms); tail = list(tail)
            nr = s.opt.get("nr", 2) if not ex else 1
            for i, m in enumerate(ms):
                a(m); k = 0
                while rs and k < nr: a(rs.pop(0)); k += 1
                if not rs: ex = tail + ex; tail = []
                left = n - i; want = max(2 - k, -(-len(ex)//left) if not rs else 0)
                while ex and want > 0:
                    e = ex.pop(0); a(e); want -= 2 if e.startswith(("v_exp", "v_rcp", "v_permlane")) else 1
            for r in rs + ex: a(r)
        def adv(k):
            o = []
            if (c["X"](k) ^ c["X"](k+1)) >> 16: o += [f"v_xor_b32 v{8+i}, s40, v{8+i}" for i in range(4)]
            if (c["Y"](k) ^ c["Y"](k+1)) >> 16: o += [f"v_xor_b32 v{12+i}, s40, v{12+i}" for i in range(2)]
            return o
        a("s_mov_b32 s40, 0x10000")
        def step(name, accq, accp, first=False, exq=(), exp=(), mid=None, end=None, pre=()):
            k = int(name[1:])
            s.bar(name)
            for r in pre: a(r)
            if len(FR) == 4:
                cur, prv = FR[2*(k & 1):2*(k & 1)+2], FR[2-2*(k & 1):4-2*(k & 1)]
                rs = reads(k, 0, cur[0]) + reads(k, 1, cur[1])
                if accq is None:
                    for r in rs + adv(k): a(r)
                else: inter(mfmas(prv[0], accq, first) + mfmas(prv[1], accq), rs, (), adv(k))
                return
            if accq is None:
                for r in reads(k, 0, FR[0]): a(r)
            else: inter(mfmas(FR[1], accq), reads(k, 0, FR[0]), exq)
            a("s_waitcnt lgkmcnt(0)")
            if mid: mid()
            inter(mfmas(FR[0], accp, first), reads(k, 1, FR[1]), list(exp), adv(k))
            if end: end()
        def loop(label, names, acc):
            u = NS; names = list(names)
            while len(names) % u or (names and s.opt.get("trace")): step(names.pop(0), acc, acc); a("s_waitcnt lgkmcnt(0)")
            if not names: return
            a(f"s_mov_b32 s39, {len(names)//u}\n{label}:")
            nb = len(s.bars)
            for i in range(u):
                step(names[i], acc, acc)
                if i < u-1: a("s_waitcnt lgkmcnt(0)")
            del s.bars[nb:]; s.bars.extend((x, 1) for x in names)
            a(f"s_sub_u32 s39, s39, 1\ns_cmp_lg_u32 s39, 0\ns_waitcnt lgkmcnt(0)\ns_cbranch_scc1 {label}")
        return mfmas, step, loop
    def swap4(s, t):
        s.a(f"""v_permlane32_swap_b32 v{t}, v{t+2}
        v_permlane32_swap_b32 v{t+1}, v{t+3}
        v_permlane16_swap_b32 v{t}, v{t+2}
        v_permlane16_swap_b32 v{t+1}, v{t+3}""")
    def store_rows(s, t0, t1, tmp, voff, srd, soff, pitch, fl):
        a = s.a
        if s.opt.get("halfline"):
            a(f"buffer_store_dwordx4 {Q4(t0)}, v{voff}, {srd}, {soff} offen {fl}\nbuffer_store_dwordx4 {Q4(t1)}, v{voff}, {srd}, {soff} offen offset:64 {fl}")
            a(f"s_add_u32 {soff}, {soff}, {16*pitch}"); return
        for j in range(4): a(f"v_mov_b32_dpp v{tmp+j}, v{t0+j} row_ror:8 row_mask:0xf bank_mask:0xf")
        for j in range(4): a(f"v_mov_b32_dpp v{t0+j}, v{t1+j} row_ror:8 row_mask:0xf bank_mask:0xc")
        a(f"buffer_store_dwordx4 {Q4(t0)}, v{voff}, {srd}, {soff} offen {fl}\ns_add_u32 {soff}, {soff}, {8*pitch}")
        for j in range(4): a(f"v_mov_b32_dpp v{t1+j}, v{tmp+j} quad_perm:[0,1,2,3] row_mask:0xf bank_mask:0x3")
        a(f"buffer_store_dwordx4 {Q4(t1)}, v{voff}, {srd}, {soff} offen {fl}\ns_add_u32 {soff}, {soff}, {8*pitch}")
    def row_voff(s, dst, row0, pitch):
        a = s.a
        if s.opt.get("halfline"): a(f"v_add_u32 v{dst}, {row0}, v3\nv_mul_u32_u24 v{dst}, {pitch}, v{dst}\nv_lshl_add_u32 v{dst}, v4, 4, v{dst}")
        else: a(f"v_and_b32 v{dst}, 7, v2\nv_add_u32 v{dst}, {row0}, v{dst}\nv_mul_u32_u24 v{dst}, {pitch}, v{dst}\nv_lshl_add_u32 v{dst}, v4, 4, v{dst}\nv_bfe_u32 v6, v2, 3, 1\nv_lshl_add_u32 v{dst}, v6, 6, v{dst}")
    def gemm12_A(s):
        a = s.a; AP, AQ, FR, T, SU, ST, BI = 16, 80, [144, 176], 208, 216, 232, 248; RED = MISC + 1024
        mfmas, step, loop = s.consumer(1, FR)
        acc = lambda base, x, ts: base + 4*(4*x + ts)
        w = lambda: a("s_waitcnt lgkmcnt(0)")
        s.srd(44, "bsp", S*2)
        a(f"""s_lshl_b32 s41, s58, 7
        s_lshl_b32 s42, s36, 6
        s_add_u32 s41, s41, s42
        v_add_u32 v6, s41, v3
        v_lshlrev_b32 v7, 1, v6""")
        s.row_voff(1, "s41", AP_)
        a("s_lshl_b32 s34, s59, 1\ns_add_u32 s34, s34, s35\n" + slot_s("s34", "s34", "s41"))
        a(f"""s_lshl_b32 s34, s34, 7
        v_mov_b32 v14, {fbits(-1.5957691216057308*LOG2E)}
        v_mov_b32 v15, v14
        s_mov_b32 s42, {fbits(-0.07135481282636784*LOG2E)}
        s_mov_b32 s43, s42""")
        for ts in range(4): a(f"buffer_load_ushort v{BI+ts}, v7, s[44:47], 0 offen offset:{32*ts}")
        def gelu_pk(cs):
            tt = [(cc+hf, T+4*n+hf) for n, cc in enumerate(cs) for hf in (0, 2)]
            for cc, t in tt: a(f"v_pk_mul_f32 {P2(t)}, {P2(cc)}, {P2(cc)}")
            for cc, t in tt: a(f"v_pk_fma_f32 {P2(t)}, {P2(t)}, s[42:43], v[14:15]")
            for cc, t in tt: a(f"v_pk_mul_f32 {P2(t)}, {P2(t)}, {P2(cc)}")
            for cc, t in tt: a(f"v_exp_f32 v{t}, v{t}\nv_exp_f32 v{t+1}, v{t+1}")
            for cc, t in tt: a(f"v_pk_add_f32 {P2(t)}, {P2(t)}, 1.0 op_sel_hi:[1,0]")
            for cc, t in tt: a(f"v_rcp_f32 v{t}, v{t}\nv_rcp_f32 v{t+1}, v{t+1}")
            for cc, t in tt: a(f"v_pk_mul_f32 {P2(cc)}, {P2(cc)}, {P2(t)}")
        def gelu_sc(cc, t):
            o = []
            for f in (lambda j: f"v_mul_f32 v{t+j}, v{cc+j}, v{cc+j}", lambda j: f"v_fma_f32 v{t+j}, v{t+j}, s42, v14", lambda j: f"v_mul_f32 v{t+j}, v{t+j}, v{cc+j}",
                      lambda j: f"v_exp_f32 v{t+j}, v{t+j}", lambda j: f"v_add_f32 v{t+j}, 1.0, v{t+j}", lambda j: f"v_rcp_f32 v{t+j}, v{t+j}", lambda j: f"v_mul_f32 v{cc+j}, v{cc+j}, v{t+j}"):
                o += [f(j) for j in range(4)]
            return o
        def stats_pk(cc, ts, init):
            if init: a(f"v_pk_add_f32 {P2(SU+2*ts)}, {P2(cc)}, {P2(cc+2)}\nv_pk_mul_f32 {P2(SU+8+2*ts)}, {P2(cc)}, {P2(cc)}")
            else: a(f"v_pk_add_f32 {P2(SU+2*ts)}, {P2(SU+2*ts)}, {P2(cc)}\nv_pk_fma_f32 {P2(SU+8+2*ts)}, {P2(cc)}, {P2(cc)}, {P2(SU+8+2*ts)}\nv_pk_add_f32 {P2(SU+2*ts)}, {P2(SU+2*ts)}, {P2(cc+2)}")
            a(f"v_pk_fma_f32 {P2(SU+8+2*ts)}, {P2(cc+2)}, {P2(cc+2)}, {P2(SU+8+2*ts)}")
        def stats_sc(cc, ts, init):
            o = []
            for j in range(4):
                u = SU+2*ts+(j & 1); q = u + 8
                if init and j < 2: o += [f"v_add_f32 v{u}, v{cc+j}, v{cc+j+2}", f"v_mul_f32 v{q}, v{cc+j}, v{cc+j}"]
                elif init: o += [f"v_fmac_f32 v{q}, v{cc+j}, v{cc+j}"]
                else: o += [f"v_add_f32 v{u}, v{u}, v{cc+j}", f"v_fmac_f32 v{q}, v{cc+j}, v{cc+j}"]
            return o
        if s.G_ != 20:
            for n in range(16): a(f"v_mov_b32 v{SU+n}, 0")
        s.bar("R1"); s.stamp(14, "g1 released")
        step("B0", None, AP, True); s.stamp(15, "g1 first stage done"); w()
        loop("L_p1loop", [f"B{j}" for j in range(1, 16)], AP)
        s.stamp(16, "pass z2 done")
        def reduce_stats():
            for n in range(8): a(f"v_add_f32 v{SU+2*n}, v{SU+2*n}, v{SU+2*n+1}")
            for st in range(2): a(f"v_permlane32_swap_b32 v{SU+8*st}, v{SU+8*st+2}\nv_permlane32_swap_b32 v{SU+8*st+4}, v{SU+8*st+6}")
            for st in range(2): a(f"v_add_f32 v{SU+8*st}, v{SU+8*st}, v{SU+8*st+2}\nv_add_f32 v{SU+8*st+4}, v{SU+8*st+4}, v{SU+8*st+6}")
            for st in range(2): a(f"v_permlane16_swap_b32 v{SU+8*st}, v{SU+8*st+4}")
            a(f"""v_add_f32 v{T}, v{SU}, v{SU+4}
            v_add_f32 v{T+1}, v{SU+8}, v{SU+12}
            v_and_b32 v5, 1, v4
            v_lshrrev_b32 v6, 1, v4
            v_lshl_or_b32 v5, v5, 1, v6
            v_lshl_add_u32 v5, v5, 4, v3
            s_lshl_b32 s37, s36, 6
            v_add_u32 v5, s37, v5
            v_lshlrev_b32 v5, 4, v5
            s_lshl_b32 s41, s35, 3
            s_add_u32 s41, s41, {RED}
            v_add_u32 v5, s41, v5
            ds_write_b64 v5, {P2(T)}
            v_add_u32 v5, s37, v3
            v_lshlrev_b32 v5, 3, v5
            v_add_u32 v5, {RED+2048}, v5
            s_add_u32 s37, s34, {WS_Z2}""")
        def normalise(tss):
            for ts in tss:
                for ip in range(2):
                    t = ST + 4*((2*ts+ip) & 3)
                    for ii in range(2):
                        cc = acc(AP, 2*ip+ii, ts)
                        for hf in (0, 2): a(f"v_pk_fma_f32 {P2(cc+hf)}, {P2(cc+hf)}, {P2(SU+2*ts)}, {P2(SU+2*ts)} op_sel:[0,0,1] op_sel_hi:[1,0,1]")
                        a(f"v_cvt_pk_bf16_f32 v{t+2*ii}, v{cc}, v{cc+1}\nv_cvt_pk_bf16_f32 v{t+2*ii+1}, v{cc+2}, v{cc+3}")
                    s.swap4(t)
                s.store_rows(ST + 8*(ts & 1), ST + 8*(ts & 1) + 4, T, 1, W, "s37", AP_, "sc1")
        binit = [f"v_lshlrev_b32 v{BI+ts}, 16, v{BI+ts}" for ts in range(4)] + [f"v_mov_b32 v{acc(AP, x, ts)+j}, v{BI+ts}" for x in range(4) for ts in range(4) for j in range(4)]
        ng = s.G_ - 16; ns = s.opt.get('nsplit', 2); assert s.N_ + ns + 1 < 32 and s.K_ > s.N_ + ns
        for g in range(16, 32):
            kw = {}
            if g < s.G_:
                tiles = [(n // 4, n % 4) for n in range(16*(g-16)//ng, 16*(g-15)//ng)]
                (x0, t0), rest = tiles[0], tiles[1:]
                sc = gelu_sc(acc(AP, x0, t0), ST) + stats_sc(acc(AP, x0, t0), t0, x0 == 0 and ng == 4)
                h = 0 if g == 16 else len(sc)//2
                def mid(rest=rest):
                    for n in range(0, len(rest), 2): gelu_pk([acc(AP, x, t) for x, t in rest[n:n+2]])
                    for x, t in rest: stats_pk(acc(AP, x, t), t, x == 0 and ng == 4)
                kw = dict(exq=sc[:h], exp=sc[h:], mid=mid)
                if g == s.G_-1: kw["end"] = reduce_stats
            elif s.N_ <= g < s.N_ + ns:
                i = g - s.N_; per = 4//ns; tss = list(range(i*per, (i+1)*per))
                kw = dict(mid=lambda tss=tss: normalise(tss[:max(1, per//2)]))
                if per > 1: kw["end"] = lambda tss=tss: normalise(tss[per//2:])
                if i == 0: kw["pre"] = [f"ds_read_b64 {P2(SU+2*ts)}, v5 offset:{128*ts}" for ts in range(4)]
            elif g == s.N_+ns: kw = dict(exq=binit[4:20], exp=binit[20:36], pre=["s_waitcnt vmcnt(8)"] + binit[:4])
            elif g == s.N_+ns+1: kw = dict(exq=binit[36:52], exp=binit[52:])
            step(f"B{g}", AP if g == 16 else AQ, AQ, g == 16, **kw)
            if g == s.K_-1: a("s_waitcnt vmcnt(0)")
            w()
            if g in (s.G_-1, s.N_-1, s.N_, s.K_-1): s.stamp({s.G_-1: 17, s.N_-1: 18, s.N_: 19, s.K_-1: 20}[g], f"before B{g+1}")
        s.stamp(21, "pass z1 done")
        s.bar("R2"); s.stamp(22, "g2 released")
        for m in mfmas(FR[1], AQ): a(m)
        gelu_pk([acc(AQ, 0, 0), acc(AQ, 0, 1)]); gelu_pk([acc(AQ, 0, 2), acc(AQ, 0, 3)])
        for g in range(32, 44):
            n = g - 28; sc = gelu_sc(acc(AQ, n // 4, n % 4), T); h = 0 if g == 32 else 14
            step(f"B{g}", None if g == 32 else AP, AP, exq=sc[:h], exp=sc[h:])
            if g == 32: s.stamp(23, "g2 first stage done")
            w()
        loop("L_g2loop", [f"B{j}" for j in range(44, 64)], AP)
        s.stamp(24, "g2 loop done")
        a(f"s_add_u32 s37, s34, {WS_P}")
        ms = mfmas(FR[1], AP); ms = [ms[4*x+ts] for ts in range(4) for x in range(4)]
        early = [f"v_mul_f32 v{acc(AP, x, ts)+j}, v{acc(AP, x, ts)+j}, v{acc(AQ, x, ts)+j}" for ts in range(1) for x in range(4) for j in range(4)]
        for i, m in enumerate(ms):
            a(m)
            if i >= 8:
                for _ in range(2): a(early.pop(0))
        for ts in range(4):
            for ip in range(2):
                t = ST + 4*((2*ts+ip) & 3)
                for ii in range(2):
                    cc = acc(AP, 2*ip+ii, ts); z = acc(AQ, 2*ip+ii, ts)
                    if ts:
                        for hf in (0, 2): a(f"v_pk_mul_f32 {P2(cc+hf)}, {P2(cc+hf)}, {P2(z+hf)}")
                    a(f"v_cvt_pk_bf16_f32 v{t+2*ii}, v{cc}, v{cc+1}\nv_cvt_pk_bf16_f32 v{t+2*ii+1}, v{cc+2}, v{cc+3}")
                if not s.opt.get("pperm", 1): s.swap4(t)
            s.store_rows(ST + 8*(ts & 1), ST + 8*(ts & 1) + 4, T, 1, W, "s37", AP_, "sc1")
        s.stamp(28, "p issued")
        a("s_waitcnt vmcnt(0)")
        s.stamp(29, "p stored")
        s.bar("p stored")
    def gemm3_A(s):
        a = s.a; AC, FR, Z, GB, T, GB2 = 16, [48, 72, 96, 120], 144, 160, 176, 208
        mfmas, step, loop = s.consumer(3, FR)
        acc = lambda x, ts: AC + 4*(2*x + ts)
        s.srd(20, "out", S*D*2)
        a(f"""s_lshl_b32 s41, s56, 6
        s_lshl_b32 s42, s36, 5
        s_add_u32 s41, s41, s42
        v_add_u32 v6, s41, v3
        v_lshlrev_b32 v1, 11, v6
        v_lshl_add_u32 v1, v4, 4, v1""")
        s.row_voff(15, "s41", D*2)
        a(f"""s_lshl_b32 s37, s57, 8
        s_lshl_b32 s41, s35, 7
        s_add_u32 s37, s37, s41
        v_lshlrev_b32 v14, 5, v4
        s_lshl_b32 s41, s37, 1
        s_add_u32 s41, s41, {WS_MOD + 5*4096}""")
        s.bar("R3"); s.stamp(30, "g3 released")
        step("C0", None, AC); a("s_waitcnt lgkmcnt(0)"); s.stamp(31, "g3 first stage done")
        step("C1", AC, AC, True); a("s_waitcnt lgkmcnt(0)")
        e = s.opt.get("ldat", 26)
        loop("L_g3loop", [f"C{j}" for j in range(2, e)], AC)
        ld = [f"buffer_load_dwordx4 {Q4(GB+4*n)}, v14, {W}, s41 offen offset:{128*(n>>1)+16*(n&1)} sc1" for n in range(4)]
        ld.append("s_add_u32 s41, s41, 24576")
        ld += [f"buffer_load_dwordx4 {Q4(GB2+4*n)}, v14, {W}, s41 offen offset:{128*(n>>1)+16*(n&1)} sc1" for n in range(4)]
        for ts in range(2):
            ld.append(f"s_add_u32 s41, s37, {WS_X1 + ts*16*2048}")
            ld += [f"buffer_load_dwordx4 {Q4(Z+8*ts+4*ip)}, v1, {W}, s41 offen offset:{64*ip} sc1" for ip in range(2)]
        for j in range(e, 28): step(f"C{j}", AC, AC, pre=ld if j == e else ()); a("s_waitcnt lgkmcnt(0)")
        s.stamp(32, "g3 loop done")
        for m in mfmas(FR[2], AC) + mfmas(FR[3], AC): a(m)
        a("s_waitcnt vmcnt(4)")
        for n in range(16): a(f"v_add_f32 v{GB+n}, v{GB+n}, v{GB2+n}")
        for ts in range(2):
            for ip in range(2):
                c0 = acc(2*ip, ts); c1 = acc(2*ip+1, ts); n = 2*ts+ip; t = T + 8 + 4*n
                for j in range(4): a(f"v_permlane32_swap_b32 v{c0+j}, v{c1+j}")
                for j in range(4): a(f"v_permlane16_swap_b32 v{c0+j}, v{c1+j}")
                a(f"s_waitcnt vmcnt({[3, 2, 3, 2][n]})")
                for ii, cc in enumerate((c0, c1)):
                    for hf in (0, 2): s.unpack(T+hf, T+hf+1, Z+4*n+2*ii+hf//2)
                    for hf in (0, 2): a(f"v_pk_fma_f32 {P2(cc+hf)}, {P2(cc+hf)}, {P2(GB+8*ip+4*ii+hf)}, {P2(T+hf)}")
                    a(f"v_cvt_pk_bf16_f32 v{t+2*ii}, v{cc}, v{cc+1}\nv_cvt_pk_bf16_f32 v{t+2*ii+1}, v{cc+2}, v{cc+3}")
            s.store_rows(T + 8 + 8*ts, T + 12 + 8*ts, T + 4, 15, "s[20:23]", "s37", D*2, s.opt.get('outfl', 'sc1'))

    def ld_setup(s):
        a = s.a
        a("s_sub_u32 s30, s3, 4\ns_and_b32 s49, s3, 1\nv_lshlrev_b32 v6, 1, v4\nv_xor_b32 v6, v6, v3\ns_lshl_b32 s35, s49, 5\nv_add_u32 v16, s35, v4")
        for reg, ld, sn, base in ((120, F*2, "s59", 0), (152, D*2, "s57", 0)):
            a(f"s_mov_b32 s36, {ld}\nv_mul_lo_u32 v5, v16, s36\ns_lshl_b32 s36, {sn}, 8\ns_add_u32 s36, s36, {base}\nv_add_u32 v5, s36, v5")
            sh = 0 if reg == 152 and s.opt.get("pperm", 1) else 1
            for i in range(8): a(f"v_xor_b32 v7, {8*((i>>sh)&1)}, v6\nv_lshl_add_u32 v7, v7, 4, v5\nv_add_u32 v{reg+i}, {i*4*ld}, v7")
        a(f"v_lshlrev_b32 v5, 12, v16\nv_add_u32 v5, {WS_Z2}, v5\ns_lshl_b32 s36, s59, 1")
        for p in range(2):
            a(f"v_xor_b32 v7, {8*p}, v6\nv_lshrrev_b32 v17, 3, v7\nv_add_u32 v17, s36, v17\n" + slot_v("v17", "v17", "v18") + f"\nv_and_b32 v7, 7, v7\nv_lshl_add_u32 v7, v7, 4, v5\nv_lshl_add_u32 v7, v17, 7, v7")
            for i in range(8):
                if (i >> 1) & 1 == p: a(f"v_add_u32 v{136+i}, {i*4*AP_}, v7")
        a("v_and_b32 v6, 7, v2\nv_xor_b32 v6, v6, v4\nv_lshrrev_b32 v16, 3, v2")
        for reg, ld, sm, MY, base in ((128, AP_, "s58", 128, WS_H2), (144, S*2, "s58", 128, 0), (160, AP_, "s56", 64, WS_P)):
            a(f"s_mul_i32 s35, {sm}, {MY}\ns_mul_i32 s36, s49, {MY//2}\ns_add_u32 s35, s35, s36\nv_add_u32 v5, s35, v16\ns_mov_b32 s36, {ld}\nv_mul_lo_u32 v5, v5, s36\nv_add_u32 v5, {base}, v5")
            for i in range(MY//16): a(f"v_xor_b32 v7, {4*(i&1)}, v6\nv_lshl_add_u32 v7, v7, 4, v5\nv_add_u32 v{reg+i}, {i*8*ld}, v7")
    def ld_ops(s, name, g=None):
        a = s.a; kind, ring, srd, fl, reg, soff, _ = s.OPS[name]; c = s.RING[ring]
        n = 8 if kind == "X" else c["MY"]//16; part = 0
        a(f"s_mul_i32 s50, s30, {1024*n}")
        if g is None: a(f"s_add_u32 s50, s50, {'s54' if kind == 'X' else 's55'}"); so = "s52" if kind == "X" else "s53"
        else: a(f"s_mov_b32 s51, {soff(g)}"); part = c[kind](g); so = "s51"
        for i in range(n): a(f"s_add_u32 m0, s50, {part+1024*i}\nbuffer_load_dwordx4 v{reg+i}, {srd}, {so} offen {fl} lds")
        return n
    def ld_run(s, ring, plan, tag):
        a = s.a; c = s.RING[ring]
        cnt = lambda nm: 8 if s.OPS[nm][0] == "X" else c["MY"]//16
        issued = []; rows = []
        for name, ops, wt in plan:
            if name == "B17" and s.opt.get("x1late", 0): issued += [-1]*8
            for nm, g in ops: issued += [g]*cnt(nm)
            wc = None
            if wt is not None: wc = len(issued) - 1 - max(i for i, x in enumerate(issued) if x == wt); assert wc < 64
            rows.append((name, ops, wc))
        i = 0
        while i < len(rows):
            name, ops, wc = rows[i]; j = i + 1
            key = lambda r, d: ([(nm, g-d) for nm, g in r[1]], r[2])
            if len(ops) == 2 and name != "B17":
                while j < len(rows) and rows[j][0] != "B17" and key(rows[j], j-i) == key(rows[i], 0): j += 1
            if j - i >= 3 and not s.opt.get('trace'):
                lab = a.label(f"L_ld{tag}")
                for nm, g in ops:
                    kind = s.OPS[nm][0]
                    a(f"s_mov_b32 {'s52' if kind == 'X' else 's53'}, {s.OPS[nm][5](g)}\ns_mov_b32 {'s54' if kind == 'X' else 's55'}, {c[kind](g)}")
                    if not s.OPS[nm][6]: a(f"s_mov_b32 s47, {g % 16 if ring == 1 else g}")
                a(f"s_mov_b32 s44, {j-i}\n{lab}:")
                s.bar(name); s.bars.pop(); s.bars.extend((r[0], 1) for r in rows[i:j])
                for nm, _ in ops: s.ld_ops(nm)
                for nm, _ in ops:
                    kind = s.OPS[nm][0]; r, q = ('s52', 's54') if kind == 'X' else ('s53', 's55')
                    if s.OPS[nm][6]: a(f"s_add_u32 {r}, {r}, {s.OPS[nm][6]}")
                    else: a("s_add_u32 s47, s47, 1\n" + slot_s(r, "s47", "s51") + f"\ns_lshl_b32 {r}, {r}, 7")
                    lo, st = c[kind](0), c[kind](1) - c[kind](0); hi = max(c[kind](k) for k in range(8)) + st
                    a(f"s_add_u32 {q}, {q}, {st}\ns_cmp_eq_u32 {q}, {hi}\ns_cselect_b32 {q}, {lo}, {q}")
                a(f"s_sub_u32 s44, s44, 1\ns_cmp_lg_u32 s44, 0\ns_waitcnt vmcnt({wc})\ns_cbranch_scc1 {lab}")
                i = j
            else:
                s.bar(name)
                if name == "B17" and s.opt.get("x1late", 0): s.x1_store()
                for nm, g in ops: s.ld_ops(nm, g)
                if wc is not None: a(f"s_waitcnt vmcnt({wc})")
                i += 1
    def copies_srd(s, which):
        a = s.a
        if {"w_in1": "i", "w_out": "o"}[which] not in s.fix: return
        d, sn, off = {"w_in1": (24, "s59", WS_WIC), "w_out": (20, "s57", WS_WOC)}[which]
        l = a.label("L_nofix")
        a(f"s_and_b32 s35, {sn}, 3\ns_cmp_lg_u32 s35, 1\ns_cbranch_scc1 {l}\ns_add_u32 s{d}, s94, {off-256}\ns_addc_u32 s{d+1}, s95, 0\ns_and_b32 s{d+1}, s{d+1}, 0xffff\n{l}:")
    def gemm12_L(s):
        s.copies_srd("w_in1"); s.copies_srd("w_out"); s.a.srd(64, PTR["ws"], S*S*2, WS_WSC - 128)
        ops = lambda g: [] if g > 63 else ([("h2", g)] if g < 4 else [("h2", g), ("w_in2" if g < 16 else "w_in1", g)] if g < 32 else [("w_sp", g)] if g < 35 else [("z2", g), ("w_spc" if g % 8 == 3 and "s" in s.fix else "w_sp", g)])
        plan = [("R1", [("h2", 0), ("h2", 1), ("h2", 2)], 0)]
        for j in range(64):
            o = ops(j+3)
            if s.opt.get("pause"):
                if j == s.N_: o = []
                if j == s.N_+1: o = ops(j+2) + o
            plan.append((f"B{j}", o, j+1 if j not in (31, 63) else None))
            if j == 31: plan.append(("R2", [("z2", 32), ("z2", 33), ("z2", 34)], 32))
        s.ld_run(1, plan, "a")
        n = s.opt.get("wpre", 2)
        for g in range(n): s.ld_ops("w_out", g)
        s.bar("p stored")
        for g in range(n, 8):
            if g == max(n, 6): s.a("s_waitcnt vmcnt(32)")
            s.ld_ops("w_out", g)
    def gemm3_L(s):
        s.a("s_waitcnt vmcnt(40)")
        ops = lambda j: ([("p", j+3)] if j+3 < 28 else []) + ([("w_out", j+7)] if 8 <= j+7 < 28 else [])
        plan = [("R3", [("p", g) for g in range(3)], 0)] + [(f"C{j}", ops(j), j+1 if j < 27 else None) for j in range(28)]
        s.ld_run(3, plan, "c")
    def gemm12_X(s):
        a = s.a; RED = MISC + 1024
        a(f"""s_sub_u32 s35, s3, 6
        s_lshl_b32 s35, s35, 6
        v_add_u32 v5, s35, v2
        v_lshlrev_b32 v6, 4, v5
        v_add_u32 v6, {RED}, v6
        v_lshlrev_b32 v5, 3, v5
        v_add_u32 v7, {RED+2048}, v5
        s_mul_i32 s36, s58, {14*1024}
        s_add_u32 s36, s36, {WS_GRAN}
        s_lshl_b32 s38, s59, 10
        s_add_u32 s38, s38, s36
        s_mov_b32 s55, 0""")
        l = s.only_wave(7); a("s_lshl_b32 s37, s58, 4"); s.poll(2, "s37", 16); a(f"{l}:\ns_waitcnt vmcnt(0)")
        s.bar("R1")
        def gather():
            for n in range(14):
                if n % 4 == 0: a(f"s_add_u32 s37, s36, {1024*n}")
                a(f"buffer_load_dwordx2 {P2(12+2*n)}, v5, {W}, s37 offen offset:{1024*(n&3)} sc1")
        def check(blocking):
            top, fin, out = a.label("L_lnc"), a.label("L_lnf"), a.label("L_lno")
            a(f"s_cmp_lg_u32 s55, 0\ns_cbranch_scc1 {out}\ns_mov_b32 s39, 0\n{top}:\ns_waitcnt vmcnt(0)\nv_max_u32 v8, v13, v15")
            for n in range(2, 14, 2): a(f"v_max3_u32 v8, v8, v{13+2*n}, v{15+2*n}")
            a(f"v_cmp_eq_u32 vcc, -1, v8\ns_add_u32 s39, s39, 1\ns_cmp_gt_u32 s39, 20000\ns_cbranch_scc1 {fin}\ns_cbranch_vccz {fin}")
            gather()
            a(f"s_branch {top if blocking else out}\n{fin}:")
            for n in range(1, 14): a(f"v_add_f32 v12, v12, v{12+2*n}\nv_add_f32 v13, v13, v{13+2*n}")
            a(f"""v_mul_f32 v12, {fbits(1/FH)}, v12
            v_mul_f32 v13, {fbits(1/FH)}, v13
            v_fma_f32 v13, -v12, v12, v13
            v_max_f32 v13, 0, v13
            v_add_f32 v13, {fbits(1e-5)}, v13
            v_rsq_f32 v8, v13
            v_mul_f32 v9, -v12, v8
            ds_write_b64 v7, v[8:9]
            s_mov_b32 s55, 1
            s_waitcnt lgkmcnt(0)
            {out}:""")
        for j in range(64):
            s.bar(f"B{j}")
            if s.opt.get("probe"):
                l = s.only_wave(6)
                a(f"s_lshl_b32 s86, s7, 14\ns_add_u32 s86, s86, {WS_KV + 128*j}\ns_memrealtime s[88:89]\ns_waitcnt lgkmcnt(0)\ns_buffer_load_dword s87, {W}, s86 glc\ns_waitcnt lgkmcnt(0)\ns_memrealtime s[90:91]\ns_waitcnt lgkmcnt(0)\ns_sub_u32 s90, s90, s88\nv_writelane_b32 v247, s90, {j}\nv_writelane_b32 v246, s88, {j}\n{l}:")
            if j in s.opt.get("recode", ()): s.code_prefetch(6, 28, 68)
            late = s.opt.get("x1late", 0)
            if late and j == 17: s.x1_store()
            if late and j == 19: a("s_waitcnt vmcnt(0)")
            if j == (21 if late else 0) and not s.opt.get("x1early", 1):
                l = s.only_wave(7); s.set_flag(5, "s7"); a(f"{l}:")
            if j == s.opt.get("deferat", 11) and s.opt.get("defer", 1):
                l = s.only_wave(7); a(f"s_cmp_lg_u32 s5, 0\ns_cbranch_scc1 {l}"); s.set_flag(6, "s7"); a(f"{l}:")
            if True:
                for sync, j0 in [(sy, j0) for sy, j0, c in ((7, 9, "i"), (8, 24, "s"), (9, 56, "o")) if c in s.fix]:
                    if j == j0: l = s.only_wave(7); s.poll_early(sync); a(f"{l}:")
                    if j == j0+3: l = s.only_wave(7); s.poll_late(sync); a(f"{l}:")
            if j == s.G_:
                a(f"""ds_read_b128 v[8:11], v6
                s_waitcnt lgkmcnt(0)
                v_add_f32 v8, v8, v10
                v_add_f32 v9, v9, v11
                v_cmp_o_f32 vcc, v9, v9
                v_mov_b32 v10, 0x7fc00000
                v_cndmask_b32 v9, v10, v9, vcc
                buffer_store_dwordx2 v[8:9], v5, {W}, s38 offen sc1""")
            elif j == s.N_-1-s.opt.get("lag", 1): gather()
            elif j == s.N_-1:
                check(True)
                if s.diag: a("v_writelane_b32 v255, s39, 40")
                s.stamp(18, None)
            elif j == s.K_:
                l = s.only_wave(7); a("s_lshl_b32 s37, s59, 4\ns_add_u32 s37, s37, s58"); s.set_flag(3, "s37"); a(f"{l}:")
            elif j == 31:
                l = s.only_wave(7); a("s_lshl_b32 s37, s59, 4"); s.stamp(21, None); s.poll(3, "s37", 16); s.stamp(22, None); a(f"{l}:")
                s.bar("R2")
        s.bar("p stored")
        l = s.only_wave(7); a("s_lshl_b32 s37, s58, 4\ns_add_u32 s37, s37, s59"); s.set_flag(4, "s37"); a(f"{l}:")
    def gemm3_X(s):
        a = s.a
        early = s.opt.get("p2", 1)
        l = s.only_wave(7); a("s_lshr_b32 s37, s56, 1\ns_lshl_b32 s37, s37, 4"); s.poll(4, "s37", 2 if early else 14); a(f"{l}:\ns_waitcnt vmcnt(0)")
        s.bar("R3")
        for j in range(28):
            if j == 0 and early: l = s.only_wave(7); s.poll(4, "s37", 14); a(f"{l}:")
            s.bar(f"C{j}")
            if j in (8, 14) and not s.opt.get("x1early", 1):
                l = s.only_wave(7); a("s_lshl_b32 s37, s56, 3"); (s.poll_early if j == 8 else s.poll_late)(5, "s37", 8); a(f"{l}:")

    def code_prefetch(s, wave, n=32, d=24):
        a = s.a; l = s.only_wave(wave); here = a.label("L_pc")
        a(f"""s_getpc_b64 s[{d}:{d+1}]
        {here}:
        s_sub_u32 s{d}, s{d}, {here}-{NAME}
        s_subb_u32 s{d+1}, s{d+1}, 0
        s_and_b32 s{d+1}, s{d+1}, 0xffff
        s_mov_b32 s{d+2}, L_done-{NAME}
        s_mov_b32 s{d+3}, 0x00020000
        v_mul_u32_u24 v248, {128*n}, v2
        s_lshl_b32 s35, s5, 7
        buffer_load_dword v249, v248, s[{d}:{d+3}], s35 offen
        {l}:""")
    def hop(s, lo, hi):
        a = s.a
        if not s.opt.get("pads", 1): return
        out = a.label("L_hopped")
        a("s_mov_b32 s99, 1")
        ks = [k for k in range(lo, hi) if k not in s.jit_pads]; per = -(-len(ks)//4)
        for w in range(4):
            l = s.only_wave(4+w)
            for k in ks[w*per:(w+1)*per]: a(f"s_branch L_pad_{k}\nL_padret_{k}:")
            a(f"s_branch {out}\n{l}:")
        a(f"{out}:\ns_mov_b32 s99, 0")
    def build(s):
        a = s.a
        a.launch(NAME, 256, 512, LDS_BYTES); a.begin(NAME)
        a("s_cmp_ge_u32 s2, 256\ns_cbranch_scc1 L_done")
        if s.diag: a("v_mov_b32 v255, 0\nv_mov_b32 v247, 0\nv_mov_b32 v246, 0")
        if s.opt.get("fixed"): a("s_memrealtime s[100:101]\ns_waitcnt lgkmcnt(0)")
        s.stamp(0, "start")
        if s.opt.get("burn"):
            a(f"s_mov_b32 s20, {s.opt['burn']}\nL_burn:")
            for i in range(64): a(f"v_add_u32 v{1+(i&7)}, v{9+(i&7)}, v0")
            a("s_sub_u32 s20, s20, 1\ns_cmp_lg_u32 s20, 0\ns_cbranch_scc1 L_burn")
        a("""s_load_dwordx16 s[64:79], s[0:1], 0
        s_load_dwordx16 s[80:95], s[0:1], 64
        v_lshrrev_b32 v1, 6, v0
        v_and_b32 v2, 63, v0
        v_readfirstlane_b32 s3, v1
        s_and_b32 s4, s2, 7
        s_lshr_b32 s5, s2, 3
        s_lshl_b32 s7, s4, 5
        s_add_u32 s7, s7, s5
        v_and_b32 v3, 15, v2
        v_lshrrev_b32 v4, 4, v2
        s_mov_b32 s99, 0
""")
        if s.opt.get("rowmap", 0):
            a("""s_cmp_ge_u32 s5, 14
            s_cselect_b32 s35, 1, 0
            s_cselect_b32 s36, 14, 0
            s_sub_u32 s59, s5, s36
            s_lshl_b32 s58, s4, 1
            s_add_u32 s58, s58, s35
            s_lshr_b32 s35, s5, 3
            s_and_b32 s57, s5, 7
            s_lshl_b32 s56, s4, 2
            s_add_u32 s56, s56, s35""")
        else:
            a("""s_lshr_b32 s33, s4, 1
        s_and_b32 s34, s4, 1
        s_mul_i32 s35, s5, 37
        s_lshr_b32 s35, s35, 8
        s_mul_i32 s36, s35, 7
        s_sub_u32 s36, s5, s36
        s_lshl_b32 s58, s33, 2
        s_add_u32 s58, s58, s35
        s_mul_i32 s59, s34, 7
        s_add_u32 s59, s59, s36
        s_lshr_b32 s35, s5, 2
        s_and_b32 s36, s5, 3
        s_lshl_b32 s56, s33, 3
        s_add_u32 s56, s56, s35
        s_lshl_b32 s57, s34, 2
        s_add_u32 s57, s57, s36""")
        s.front()
        def flat(b): return [n for n, k in b for _ in range(k)]
        s.bars = []
        s.conv_A(); front = flat(s.bars); s.bars = []
        o = s.opt; nsb = (0 if o.get("x1early", 1) else 1) + bool(o.get("l2pf", 0)) + bool(o.get("defer", 1)) + len(s.fix) + ("o" in s.fix)
        a("s_cmp_lt_u32 s5, 28\ns_cbranch_scc1 L_A1\n" + "s_barrier\n"*nsb + "s_branch L_A3\nL_A1:")
        s.gemm12_A(); mid = flat(s.bars); s.bars = []
        a("L_A3:"); s.gemm3_A(); last = flat(s.bars); s.bars = []
        a("s_branch L_end\nL_B:")
        if s.opt.get("prio"): a(f"s_setprio {s.opt['prio']}")
        s.row_B(); assert flat(s.bars) == front, (flat(s.bars), front); s.bars = []
        a("s_cmp_ge_u32 s5, 28\ns_cbranch_scc1 L_Bspare\ns_cmp_ge_u32 s3, 6\ns_cbranch_scc1 L_X")
        s.gemm12_L(); assert flat(s.bars) == mid, (flat(s.bars), mid); s.bars = []
        a("L_L3:"); s.gemm3_L(); assert flat(s.bars) == last; s.bars = []
        a("s_branch L_end\nL_X:")
        s.jit_on = True
        s.gemm12_X(); assert flat(s.bars) == mid; s.bars = []
        a("L_X3:"); s.gemm3_X(); assert flat(s.bars) == last; s.bars = []
        s.jit_on = False; assert not s.jit; s.order = mid + last
        a("s_branch L_end\nL_Bspare:")
        if s.opt.get("x1late", 0): s.x1_store()
        if not s.opt.get("x1early", 1):
            a("s_waitcnt vmcnt(0)\ns_barrier")
            l = s.only_wave(7); s.set_flag(5, "s7"); a(f"{l}:")
        a("s_sub_u32 s32, s5, 28\ns_lshl_b32 s32, s32, 3\ns_add_u32 s32, s32, s4\nv_and_b32 v5, 255, v0\nv_lshlrev_b32 v5, 7, v5\ns_mov_b32 s62, 0\ns_mov_b32 s63, -1")
        fix = s.fix; s.nspare_bar = 0
        def sbar(): a("s_barrier"); s.nspare_bar += 1
        def copy(srd, dst, voff, row0, pitch, n, sync):
            a(f"s_mul_i32 s34, s33, {row0}")
            for i in range(n): a(f"buffer_load_dwordx4 {Q4(32+4*i)}, {voff}, {srd}, s34 offen\ns_add_u32 s34, s34, {pitch}")
            a(f"s_mul_i32 s34, s33, {row0}\ns_add_u32 s34, s34, {dst}")
            for i in range(n): a(f"s_waitcnt vmcnt({n-1})\nbuffer_store_dwordx4 {Q4(32+4*i)}, {voff}, {W}, s34 offen sc1\ns_add_u32 s34, s34, {pitch}")
            a("s_waitcnt vmcnt(0)"); sbar()
            l = s.only_wave(7); s.set_flag(sync, "s32"); a(f"{l}:")
        a("s_lshl_b32 s33, s32, 2\ns_add_u32 s33, s33, s30")
        if "i" in fix:
            a("v_lshlrev_b32 v8, 10, v4\nv_lshl_add_u32 v8, v3, 4, v8\nv_add_u32 v8, 256, v8")
            copy("s[12:15]", WS_WIC - 256, "v8", 8*F*2, F*2, 8, 7)
        a("s_mul_i32 s34, s33, 57344\nv_and_b32 v6, 31, v2\nv_min_u32 v6, 27, v6\nv_lshlrev_b32 v6, 7, v6\nv_lshrrev_b32 v7, 5, v2\nv_mul_u32_u24 v7, 7168, v7\nv_add_u32 v6, v6, v7")
        for i in range(4 if s.opt.get("thalf", 1) else 0):
            if s.opt.get("gentle", 0) > 1: a("s_waitcnt vmcnt(0)\ns_mov_b64 exec, 0xffffffff\nbuffer_load_dword v100, v6, s[12:15], s34 offen\ns_waitcnt vmcnt(0)\ns_not_b64 exec, exec\nbuffer_load_dword v100, v6, s[12:15], s34 offen\ns_mov_b64 exec, -1\ns_add_u32 s34, s34, 14336")
            else: a("buffer_load_dword v100, v6, s[12:15], s34 offen\ns_add_u32 s34, s34, 14336")
        if s.opt.get("defer", 1):
            l = s.only_wave(7); a("s_lshl_b32 s37, s4, 5"); s.poll(6, "s37", 1, sleep=8); a(f"{l}:"); sbar()
        if "s" in fix:
            a("v_bfe_u32 v8, v2, 3, 2\nv_lshlrev_b32 v8, 10, v8\nv_and_b32 v7, 7, v2\nv_lshl_add_u32 v8, v7, 4, v8\nv_lshrrev_b32 v7, 5, v2\nv_lshl_add_u32 v8, v7, 12, v8\nv_add_u32 v8, 384, v8")
            copy("s[16:19]", WS_WSC - 128, "v8", 16*S*2, 2*S*2, 8, 8)
        order = [k for k in range(32) if not ("s" in fix and k % 8 == 3)]
        a("v_and_b32 v6, 63, v0\nv_lshlrev_b32 v6, 12, v6\ns_lshl_b32 s35, s32, 18")
        for i in range(len(order)//4):
            for w in range(4): a(f"s_cmp_eq_u32 s30, {w}\ns_cselect_b32 s34, {order[4*i+w]*128}, s34")
            if s.opt.get("gentle") and i >= s.opt.get("gfrom", 0): a("s_waitcnt vmcnt(0)"); a("s_mov_b64 exec, 0xffffffff\ns_add_u32 s34, s34, s35\nbuffer_load_dword v100, v6, s[16:19], s34 offen\ns_waitcnt vmcnt(0)\ns_not_b64 exec, exec\nbuffer_load_dword v100, v6, s[16:19], s34 offen\ns_mov_b64 exec, -1")
            else: a("s_add_u32 s34, s34, s35\nbuffer_load_dword v100, v6, s[16:19], s34 offen")
        if s.NG == 20:
            s.gemv_task(True); s.gemv_issue(); a("s_waitcnt vmcnt(16)"); s.silu(); a("s_waitcnt vmcnt(0)"); s.gemv_store(64, a.label("L_gb"))
            s.srd(16, "wsp", S*S*2); s.srd(20, "wout", FH*D*2)
            a("s_lshl_b32 s33, s32, 2\ns_add_u32 s33, s33, s30")
        if "o" in fix:
            a("v_and_b32 v8, 1, v4\nv_lshlrev_b32 v8, 10, v8\nv_lshl_add_u32 v8, v3, 4, v8\nv_lshrrev_b32 v7, 5, v2\nv_lshl_add_u32 v8, v7, 11, v8\nv_add_u32 v8, 256, v8")
            copy("s[20:23]", WS_WOC - 256, "v8", 14*D*2, 2*D*2, 7, 9)
        a(f"s_mul_i32 s34, s32, {FH*D*2//32}")
        for i in range(4):
            if s.opt.get("gentle"): a("s_waitcnt vmcnt(0)\ns_mov_b64 exec, 0xffffffff\nbuffer_load_dword v100, v5, s[20:23], s34 offen\ns_waitcnt vmcnt(0)\ns_not_b64 exec, exec\nbuffer_load_dword v100, v5, s[20:23], s34 offen\ns_mov_b64 exec, -1\ns_add_u32 s34, s34, 32768")
            else: a("buffer_load_dword v100, v5, s[20:23], s34 offen\ns_add_u32 s34, s34, 32768")
        a.srd(64, PTR["ws"], S*S*2, WS_WSC - 128)
        f0 = s.opt.get("l2pf", 0)
        if f0:
            a(f"""s_sub_u32 s33, s5, 28
            s_lshr_b32 s34, s4, 1
            s_lshl_b32 s34, s34, 2
            s_add_u32 s34, s34, s33
            s_lshl_b32 s34, s34, 7
            v_and_b32 v5, 127, v0
            v_add_u32 v5, s34, v5
            v_lshlrev_b32 v8, 12, v5
            v_and_b32 v5, 255, v0
            v_min_u32 v5, 223, v5
            v_mul_u32_u24 v6, 4682, v5
            v_lshrrev_b32 v6, 16, v6
            v_mul_u32_u24 v7, 14, v6
            v_sub_u32 v7, v5, v7
            s_lshl_b32 s34, s33, 4
            v_add_u32 v6, s34, v6
            v_lshlrev_b32 v6, 12, v6
            s_and_b32 s34, s4, 1
            s_mul_i32 s35, s34, 14
            v_add_u32 v7, s35, v7
            {slot_v("v7", "v7", "v5")}
            v_lshl_add_u32 v9, v7, 7, v6
            s_mul_i32 s37, s34, 112""")
            l = s.only_wave(7); s.poll(3, "s37", 112, sleep=8)
            if "s" in fix: s.poll(8, None, 32)
            a(f"{l}:"); sbar()
            a(f"""s_mov_b32 s33, {f0*128}
            s_mov_b32 s34, {WS_Z2 + f0*64*AP_}
            L_l2:
            buffer_load_dword v100, v9, {W}, s34 offen sc1
            s_cmp_ge_u32 s3, 6
            s_cbranch_scc1 L_l2y
            s_bfe_u32 s35, s33, 0x30007
            s_cmp_eq_u32 s35, {3 if 's' in fix else 8}
            s_cbranch_scc1 L_l2c
            buffer_load_dword v100, v8, s[16:19], s33 offen
            s_branch L_l2y
            L_l2c:
            buffer_load_dword v100, v8, s[64:67], s33 offen
            L_l2y:
            s_add_u32 s33, s33, 128
            s_add_u32 s34, s34, {64*AP_}
            s_cmp_lt_u32 s33, 4096
            s_waitcnt vmcnt(40)
            s_cbranch_scc1 L_l2""")
        if "o" in fix:
            l = s.only_wave(7); s.poll(9, None, 32, sleep=8); a(f"{l}:"); sbar()
        s.copies_srd("w_out")
        a("s_cmp_ge_u32 s3, 6\ns_cbranch_scc1 L_X3\ns_waitcnt vmcnt(0)")
        for k in range(8):
            if k == 6: a("s_waitcnt vmcnt(32)")
            s.ld_ops("w_out", k)
        assert s.nspare_bar + (0 if o.get("x1early", 1) else 1) == nsb
        a("s_branch L_L3")
        a("L_end:")
        if s.opt.get("fixed"):
            a(f"s_add_u32 s100, s100, {s.opt['fixed']*100}\nL_fix:\ns_memrealtime s[96:97]\ns_waitcnt lgkmcnt(0)\ns_sub_u32 s96, s96, s100\ns_cmp_lt_i32 s96, 0\ns_cbranch_scc1 L_fix")
        if s.diag:
            a("s_waitcnt vmcnt(0)"); s.stamp(63, "end")
            if s.opt.get("dbg"):
                sel = s.opt["dbg"]
                a.srd(12, 92, 256)
                a("s_cmp_lg_u32 s2, 37\ns_cbranch_scc1 L_nodbg\ns_cmp_lg_u32 s3, 0\ns_cbranch_scc1 L_nodbg\nv_readlane_b32 s20, v255, 0\nv_mov_b32 v5, 0")
                for j, i in enumerate(sel): a(f"v_readlane_b32 s21, v255, {i}\ns_sub_u32 s21, s21, s20\nv_writelane_b32 v5, s21, {j}")
                a("v_lshlrev_b32 v1, 2, v2\nbuffer_store_dword v5, v1, s[12:15], 0 offen\nL_nodbg:")
            if s.opt.get("probe"): a(f"s_lshl_b32 s92, s2, 11\ns_add_u32 s92, s92, {WS_TS + MB}\nv_lshlrev_b32 v1, 2, v0\nbuffer_store_dword v247, v1, {W}, s92 offen\ns_add_u32 s92, s92, {MB}\nbuffer_store_dword v246, v1, {W}, s92 offen")
            a(f"s_lshl_b32 s92, s2, 11\ns_add_u32 s92, s92, {WS_TS}\nv_lshlrev_b32 v1, 2, v0\nbuffer_store_dword v255, v1, {W}, s92 offen")
        a("L_done:\ns_endpgm")
        info = a.end(NAME, 256, sgpr=102, align=s.opt.get("align"), pads=(s.NPAD, "s99", s.opt.get("padbase", 0xe00)) if s.opt.get("pads", 1) else None)
        if "-v" in sys.argv: print(info, file=sys.stderr)
        return a.text(HEADER)
HEADER = """; adaLN-conditioned H3 long-conv block + gMLP block, one persistent launch of 256 workgroups x 8 waves (text emitted by the author's generator).
; kernarg: q k v shift_k ssm_k ssm_D B_x w_in w_sp b_sp w_out c w_mod out debug ws
;
;  1 kv = shortconv(k)*v per 64-channel x 128-row tile, stored per channel       -> flag, 16 producers per consumer
;  2 long causal conv of 4 channels per workgroup as Toeplitz MFMA products      -> flag, all to all
;  3 x1 = x + gate*LN(x)mod*y, h2 = LN(x1)mod for 8 rows per workgroup           -> flag, 16 producers
;  4 z2 = gelu(h2 w_in[:,1792:]), then z1 likewise while z2's LayerNorm sums are exchanged and z2 is stored -> flag, 16 producers
;  5 p = z1 * (w_sp LN(z2) + b_sp)                                               -> flag, 14 producers
;  6 out = x1 + gate * (p w_out)
; Hand-offs: payload and flag are written through (sc1) and the payload is acknowledged before the flag; a flag holds this launch's tag, which is
; The L_pad_* pairs are landing pads: idle helper waves branch there and back so that a code page is resident before the compute waves reach it.
"""
def build(diag=False, **opt):
    g = G(diag, **opt); t = g.build()
    if opt.get("pads", 1) and opt.get("jithop", 1):
        jit = {}; last = None; inA = False
        for l in t.splitlines():
            if l.startswith("L_A1:"): inA = True
            if l.startswith("L_B:"): break
            if inA and "s_barrier ;" in l: last = l.split(";")[1].strip()
            if inA and l.startswith("L_pad_") and last:
                jit.setdefault(g.order[max(0, g.order.index(last) - opt.get("lead", 3))], []).append(int(l[6:-1]))
        used = t.count('s_cbranch_scc1 L_padret_')
        g = G(diag, **dict(opt, jit=jit, npad=used+1)); t = g.build()
    import padcheck; assert not padcheck.check(t)
    build.names = g.names; return t
if __name__ == "__main__":
    t = build(diag="--diag" in sys.argv)
    if "--plain" in sys.argv: t = t.replace(f"; @launch kernel={NAME} grid", "; @launch grid")
    open(sys.argv[1], "w").write(t)
```

```python
import sys, struct
from asmgen import Asm
S, D, F, FH = 2048, 1024, 3584, 1792
MB = 1 << 20
WS_MOD, WS_EPOCH, WS_GRAN, WS_FLAG = 0, 0xc000, 0x10000, 0x50000
WS_KV, WS_Y2, WS_X1, WS_H2, WS_Z2, WS_P, WS_WOC, WS_WIC, WS_WSC, WS_TS = 1*MB, 9*MB, 13*MB, 17*MB, 25*MB, 33*MB, 41*MB, 45*MB, 53*MB, 64*MB
AP_ = 4096
SLOT = lambda j: j + (j + 4)//7
def slot_s(d, j, t): return f"s_add_u32 {t}, {j}, 4\ns_mul_i32 {t}, {t}, 37\ns_lshr_b32 {t}, {t}, 8\ns_add_u32 {d}, {j}, {t}"
def slot_v(d, j, t): return f"v_add_u32 {t}, 4, {j}\nv_mul_u32_u24 {t}, 37, {t}\nv_lshrrev_b32 {t}, 8, {t}\nv_add_u32 {d}, {j}, {t}"

PTR = dict(q=64, k=66, v=68, shift=70, ssmk=72, ssmd=74, win=78, wsp=80, bsp=82, wout=84, c=86, wmod=88, out=90, ws=94)
def fbits(x): return "0x%08x" % struct.unpack("<I", struct.pack("<f", x))[0]
LOG2E = 1.4426950408889634
CH_STRIDE, KVE_OFF, KA_OFF, KB_OFF = 17664, 4576, 9216, 13440
HB = 4*CH_STRIDE
YST, MODST = 16384, 131072
MISC = 155648
LDS_BYTES = 163840
W = "s[8:11]"
P2 = lambda b: f"v[{b}:{b+1}]"
Q4 = lambda b: f"v[{b}:{b+3}]"
NAME = "adaLN_cond__ssm_conv_h3__mixer_gmlp__prompt_kernel"

class G:
    def __init__(s, diag=False, **opt):
        s.G_, s.N_, s.K_ = opt.get('G', 20), opt.get('N', 25), opt.get('K', 29); s.a = Asm(); s.diag = diag; s.opt = opt; s.NPAD = opt.get('npad', 32); s.fix = opt.get('fix', 'o'); s.NG = 20 if opt.get('gblate', 1) else 24; assert s.NG == 24 or 'o' in s.fix; s.bars = []; s.names = {}; s.jit = {k: list(v) for k, v in opt.get('jit', {}).items()}; s.jit_on = False; s.jit_pads = {k for v in s.jit.values() for k in v}
    def bar(s, name, n=1):
        tr = s.opt.get("trace")
        if tr and name[0] == tr[0] and name[1:].isdigit() and 0 <= int(name[1:]) - tr[1] < 22: s.stamp(41 + int(name[1:]) - tr[1], "arrive " + name)
        s.a(f"s_barrier ; {name}"); s.bars.append((name, n))
        if s.jit_on:
            for k in s.jit.pop(name, []):
                l = s.only_wave(6); s.a(f"s_mov_b32 s99, 1\ns_branch L_pad_{k}\nL_padret_{k}:\ns_mov_b32 s99, 0\n{l}:")
    def stamp(s, i, name=None):
        if name: s.names[i] = name
        if name and s.opt.get("fixat") == i: s.a("s_memrealtime s[100:101]\ns_waitcnt lgkmcnt(0)")
        if s.diag: s.a(f"s_memrealtime s[96:97]\ns_waitcnt lgkmcnt(0)\nv_writelane_b32 v255, s96, {i}")
        cyc = {5: 33, 6: 34, 15: 35, 16: 36, 23: 37, 24: 38, 31: 39, 32: 25, 21: 26}
        if s.diag and name and i in cyc: s.a(f"s_memtime s[96:97]\ns_waitcnt lgkmcnt(0)\nv_writelane_b32 v255, s96, {cyc[i]}")
    def unpack(s, lo, hi, src):
        s.a(f"v_lshlrev_b32 v{lo}, 16, v{src}\nv_and_b32 v{hi}, 0xffff0000, v{src}")
    def srd(s, d, name, nbytes): s.a.srd(d, PTR[name], nbytes)
    def set_flag(s, sync, idx_sgpr, local=False):
        a = s.a
        a(f"""s_lshl_b32 s60, {idx_sgpr}, 7
        s_add_u32 s60, s60, {WS_FLAG + sync*32768}
        v_mov_b32 v250, s6
        v_mov_b32 v251, 0
        s_mov_b64 exec, 1""")
        if local:
            l, l2 = a.label("L_far"), a.label("L_set")
            a(f"s_cmp_eq_u32 s28, 0\ns_cbranch_scc1 {l}\nbuffer_store_dword v250, v251, {W}, s60 offen\ns_branch {l2}\n{l}:\nbuffer_wbl2 sc1\ns_waitcnt vmcnt(0)")
        a(f"buffer_store_dword v250, v251, {W}, s60 offen sc1")
        if local: a(f"{l2}:")
        a("s_mov_b64 exec, -1")
    def acquire_if_far(s):
        l = s.a.label("L_near"); s.a(f"s_cmp_lg_u32 s28, 0\ns_cbranch_scc1 {l}\nbuffer_inv sc1\ns_waitcnt vmcnt(0)\n{l}:")
    def hello_send(s):
        s.a(f"""s_getreg_b32 s29, hwreg(HW_REG_XCC_ID, 0, 4)
        s_lshl_b32 s60, s7, 7
        s_add_u32 s60, s60, {WS_FLAG + 6*32768}
        v_mov_b32 v250, s6
        v_mov_b32 v251, s29
        v_mov_b32 v252, 0
        s_mov_b64 exec, 1
        buffer_store_dwordx2 v[250:251], v252, {W}, s60 offen sc1
        s_mov_b64 exec, -1""")
    def hello_check(s):
        a = s.a; l = a.label("L_hello"); go = a.label("L_hgo")
        a(f"""s_andn2_b32 s60, s7, 31
        s_lshl_b32 s60, s60, 7
        s_add_u32 s60, s60, {WS_FLAG + 6*32768}
        v_and_b32 v250, 31, v2
        v_lshlrev_b32 v250, 7, v250
        s_mov_b32 s61, 0
        s_mov_b32 s28, 0
        {l}:
        buffer_load_dwordx2 v[252:253], v250, {W}, s60 offen sc1
        s_add_u32 s61, s61, 1
        s_cmp_gt_u32 s61, 30000
        s_cbranch_scc1 {go}
        s_waitcnt vmcnt(0)
        v_cmp_ne_u32 vcc, s6, v252
        s_cbranch_vccnz {l}
        v_cmp_ne_u32 vcc, s29, v253
        s_cbranch_vccnz {go}
        s_mov_b32 s28, {0 if s.opt.get("forcefar") else 1}
        {go}:
        s_waitcnt vmcnt(0)""")
    def poll_early(s, sync, first=None, cnt=32):
        s.a(f"v_min_u32 v248, {cnt-1}, v2\nv_lshlrev_b32 v248, 7, v248")
        s.a(f"s_lshl_b32 s60, {first}, 7\ns_add_u32 s60, s60, {WS_FLAG + sync*32768}" if first else f"s_mov_b32 s60, {WS_FLAG + sync*32768}")
        s.a(f"buffer_load_dword v249, v248, {W}, s60 offen sc1")
    def poll_late(s, sync, first=None, cnt=32):
        l = s.a.label("L_seen")
        s.a(f"s_waitcnt vmcnt(0)\nv_cmp_ne_u32 vcc, s6, v249\ns_cbranch_vccz {l}"); s.poll(sync, first, cnt); s.a(f"{l}:")
    def poll(s, sync, first_sgpr, cnt, sleep=0, fl='sc1'):
        a = s.a; l = a.label("L_poll"); go = a.label("L_go")
        if first_sgpr is None: a(f"s_mov_b32 s60, {WS_FLAG + sync*32768}")
        else: a(f"s_lshl_b32 s60, {first_sgpr}, 7\ns_add_u32 s60, s60, {WS_FLAG + sync*32768}")
        a(f"v_min_u32 v250, {min(cnt, 64)-1}, v2\nv_lshlrev_b32 v250, 7, v250\ns_mov_b32 s61, 0\n{l}:")
        nl = -(-cnt//64)
        if sleep: a(f"s_sleep {sleep}")
        for q in range(nl):
            if q: a(f"s_add_u32 s62, s60, {min(q*64, cnt-64)*128}")
            a(f"buffer_load_dword v{251+q}, v250, {W}, {'s62' if q else 's60'} offen {fl}")
        a(f"s_add_u32 s61, s61, 1\ns_cmp_gt_u32 s61, 30000\ns_cbranch_scc1 {go}\ns_waitcnt vmcnt(0)")
        for q in range(nl): a(f"v_xor_b32 v{251+q}, s6, v{251+q}")
        if nl == 4: a("v_or3_b32 v251, v251, v252, v253\nv_or_b32 v251, v251, v254")
        if nl == 2: a("v_or_b32 v251, v251, v252")
        a(f"v_cmp_ne_u32 vcc, 0, v251\ns_cbranch_vccnz {l}\n{go}:\ns_waitcnt vmcnt(0)")
    def only_wave(s, w):
        l = s.a.label("L_skip"); s.a(f"s_cmp_lg_u32 s3, {w}\ns_cbranch_scc1 {l}"); return l

    XR = 184
    KST, VST = HB, HB + 17408
    def kv_stage(s):
        a = s.a
        s.srd(12, "k", S*D*2); s.srd(16, "v", S*D*2)
        a(f"""s_lshr_b32 s32, s7, 4
        s_and_b32 s33, s7, 15
        s_lshl_b32 s34, s33, 18
        s_lshl_b32 s35, s32, 7
        s_add_u32 s34, s34, s35
        v_lshrrev_b32 v5, 3, v2
        v_and_b32 v6, 7, v2
        v_lshlrev_b32 v6, 4, v6
        v_lshl_add_u32 v7, v5, 11, v6
        v_xor_b32 v8, 2048, v7
        s_lshl_b32 s36, s3, 15
        s_add_u32 s36, s36, s34
        s_add_u32 s37, s36, 16384
        s_lshl_b32 s38, s3, 11
        s_add_u32 m0, s38, {s.KST + 1024}
        s_nop 0
        buffer_load_dwordx4 v8, s[12:15], s36 offen nt lds
        s_add_u32 m0, s38, {s.VST}
        s_nop 0
        buffer_load_dwordx4 v7, s[16:19], s36 offen nt lds
        s_add_u32 m0, s38, {s.KST + 2048}
        s_nop 0
        buffer_load_dwordx4 v7, s[12:15], s37 offen nt lds
        s_add_u32 m0, s38, {s.VST + 1024}
        s_nop 0
        buffer_load_dwordx4 v8, s[16:19], s37 offen nt lds""")
        l = s.only_wave(3)
        a(f"s_sub_u32 s36, s34, 16384\nv_add_u32 v8, s36, v7\ns_mov_b32 m0, {s.KST}\nbuffer_load_dwordx4 v8, s[12:15], 0 offen nt lds\n{l}:")
    def kv_build(s):
        a = s.a
        KR, VR, SH, SF, KF, VF = 20, 44, 64, 72, 88, 136
        s.srd(20, "shift", D*8)
        a(f"""s_lshl_b32 s35, s32, 6
        v_lshl_add_u32 v6, v3, 2, s35 ; ch
        v_lshlrev_b32 v1, 3, v6
        buffer_load_dwordx4 {Q4(SH)}, v1, s[20:23], 0 offen
        buffer_load_dwordx4 {Q4(SH+4)}, v1, s[20:23], 0 offen offset:16""")
        s.load_d()
        a(f"""v_lshrrev_b32 v5, 4, v0
        v_lshlrev_b32 v7, 10, v5
        v_lshl_add_u32 v7, v3, 3, v7
        v_add_u32 v7, {s.KST}, v7
        v_and_b32 v8, 1, v5
        v_lshlrev_b32 v8, 7, v8
        v_add_u32 v12, v7, v8
        v_sub_u32 v13, v7, v8
        v_xor_b32 v8, 128, v8
        v_add_u32 v14, v7, v8
        v_sub_u32 v15, v7, v8
        v_lshlrev_b32 v5, 3, v5
        s_lshl_b32 s36, s33, 7
        v_add_u32 v5, s36, v5         ; s0
        v_sub_u32 v1, 2040, v5
        v_lshlrev_b32 v1, 1, v1
        v_lshl_add_u32 v1, v6, 12, v1
        s_waitcnt vmcnt(0)""")
        s.stamp(1, "kv landed")
        s.bar("kv in")
        for r in range(11):
            rho = r + 5; base = (12 if rho < 8 else 14) + (rho & 1)
            a(f"ds_read_b64 {P2(KR+2*r)}, v{base} offset:{128*rho}")
            if r >= 3: a(f"ds_read_b64 {P2(VR+2*(r-3))}, v{12+((r-3)&1)} offset:{s.VST-s.KST+128*(r-3)}")
            if r == 5:
                for e in range(4):
                    for hf in range(2): s.unpack(SF + (2*hf)*4 + e, SF + (2*hf+1)*4 + e, SH + 2*e + hf)
        cnt = 19
        for r in range(11):
            cnt -= 1 if r < 3 else 2
            a(f"s_waitcnt lgkmcnt({min(cnt, 15)})")
            for hf in range(2): s.unpack(KF + 4*r + 2*hf, KF + 4*r + 2*hf + 1, KR + 2*r + hf)
            if r >= 3:
                o = r - 3
                for hf in range(2): s.unpack(VF + 4*o + 2*hf, VF + 4*o + 2*hf + 1, VR + 2*o + hf)
                for hf in range(2): a(f"v_pk_mul_f32 {P2(8+2*hf)}, {P2(KF+4*(r-3)+2*hf)}, {P2(SF+12+2*hf)}")
                for j in (2, 1, 0):
                    for hf in range(2): a(f"v_pk_fma_f32 {P2(8+2*hf)}, {P2(KF+4*(r-j)+2*hf)}, {P2(SF+4*j+2*hf)}, {P2(8+2*hf)}")
                for hf in range(2): a(f"v_pk_mul_f32 {P2(VF+4*o+2*hf)}, {P2(8+2*hf)}, {P2(VF+4*o+2*hf)}")
        s.stamp(2, "kv computed")
        for e in range(4):
            t = 20 + 4*e
            for d in range(4): a(f"v_cvt_pk_bf16_f32 v{t+d}, v{VF+4*(7-2*d)+e}, v{VF+4*(6-2*d)+e}")
            a(f"s_mov_b32 s30, {WS_KV + e*4096}\nbuffer_store_dwordx4 {Q4(t)}, v1, {W}, s30 offen {'' if s.opt.get('kvlocal', 0) else 'sc1'}")
    def load_d(s):
        s.srd(24, "ssmd", D*2)
        s.a("s_lshl_b32 s37, s7, 2\ns_add_u32 s37, s37, s3\ns_lshl_b32 s37, s37, 1\nv_mov_b32 v1, s37\nbuffer_load_ushort v190, v1, s[24:27], 0 offen")
    def poison(s):
        a = s.a; l = s.only_wave(5)
        a(f"s_cmp_ge_u32 s5, 28\ns_cbranch_scc1 {l}\ns_mul_i32 s37, s58, 14\ns_add_u32 s37, s37, s59\ns_lshl_b32 s37, s37, 10\ns_add_u32 s37, s37, {WS_GRAN}\nv_lshlrev_b32 v1, 4, v2")
        for j in range(4): a(f"v_mov_b32 v{16+j}, -1")
        a(f"buffer_store_dwordx4 v[16:19], v1, {W}, s37 offen sc1\n{l}:")
    def k_load(s):
        a = s.a
        s.srd(12, "ssmk", D*S*2)
        a(f"""s_sub_u32 s30, s3, 4
        s_lshl_b32 s33, s7, 2
        s_add_u32 s33, s33, s30
        s_mul_i32 s34, s30, {CH_STRIDE}
        s_lshl_b32 s36, s33, 12
        v_lshlrev_b32 v5, 4, v2
        v_mov_b32 v6, s36
        buffer_load_dword v8, v6, s[12:15], 0 offen""")
        for i in range(4):
            a(f"s_add_u32 m0, s34, {KA_OFF+64+1024*i}\ns_add_u32 s37, s36, {1024*i}\nbuffer_load_dwordx4 v5, s[12:15], s37 offen nt lds")
            a(f"s_add_u32 m0, s34, {KB_OFF+64+1024*i}\ns_add_u32 s37, s36, {4+1024*i}\nbuffer_load_dwordx4 v5, s[12:15], s37 offen nt lds")
        a(f"""v_and_b32 v10, 31, v2
        v_min_u32 v10, 27, v10
        v_lshlrev_b32 v10, 4, v10
        v_lshrrev_b32 v11, 5, v2
        v_mul_u32_u24 v11, {KVE_OFF}, v11
        v_add3_u32 v10, v10, v11, s34
        v_mov_b32 v12, 0
        v_mov_b32 v13, 0
        v_mov_b32 v14, 0
        v_mov_b32 v15, 0
        ds_write_b128 v10, v[12:15] offset:4096
        v_mov_b32 v10, {MISC+768}
        ds_write_b64 v10, v[12:13]
        v_and_b32 v10, 1, v4
        v_mul_u32_u24 v10, {KB_OFF - KA_OFF}, v10
        v_lshl_add_u32 v10, v3, 2, v10
        v_add_u32 v10, s34, v10
        v_and_b32 v11, 31, v2""")
    def k_patch(s):
        s.a(f"v_cmp_eq_u32 vcc, 31, v11\ns_waitcnt vmcnt(0)\nv_cndmask_b32 v8, 0, v8, vcc\nds_write_b32 v10, v8 offset:{KA_OFF}\ns_waitcnt lgkmcnt(0)")
    def gemv_setup(s):
        a = s.a
        s.srd(16, "wmod", D*6*D*2); s.srd(20, "c", D*2)
        a(f"""s_lshl_b32 s36, s34, 8
        v_lshl_add_u32 v29, v2, 2, s36
        buffer_load_dword v28, v29, s[20:23], 0 offen
        s_mul_i32 s36, s34, {128*12288}
        s_lshl_b32 s37, s35, 7
        s_add_u32 s46, s36, s37
        v_lshrrev_b32 v20, 3, v2
        v_mul_u32_u24 v20, 12288, v20
        v_and_b32 v21, 7, v2
        v_and_b32 v22, 1, v4
        v_lshlrev_b32 v22, 1, v22
        v_xor_b32 v21, v21, v22
        v_lshl_add_u32 v20, v21, 4, v20
        v_xor_b32 v21, 64, v20
        s_lshl_b32 s41, s40, 8
        s_add_u32 s41, s41, {MISC - 1024}
        s_lshl_b32 s40, s40, 14
        s_add_u32 s40, s40, {HB}
        s_mov_b32 s45, s35""")
    def gemv_issue(s):
        for i in range(16):
            s.a(f"s_add_u32 m0, s40, {1024*i}\nbuffer_load_dwordx4 v{20+(i&1)}, s[16:19], s46 offen nt lds\ns_add_u32 s46, s46, {8*12288}")
    GR = 208
    def silu(s):
        a = s.a; CF, AD = s.GR, s.GR+16
        a(f"""v_lshlrev_b32 v22, 16, v28
        v_and_b32 v23, 0xffff0000, v28
        v_mul_f32 v24, {fbits(-LOG2E)}, v22
        v_mul_f32 v25, {fbits(-LOG2E)}, v23
        v_exp_f32 v24, v24
        v_exp_f32 v25, v25
        v_add_f32 v24, 1.0, v24
        v_add_f32 v25, 1.0, v25
        v_rcp_f32 v24, v24
        v_rcp_f32 v25, v25
        v_mul_f32 v22, v22, v24
        v_mul_f32 v23, v23, v25
        v_cvt_pk_bf16_f32 v22, v22, v23
        v_lshl_add_u32 v23, v2, 2, s41
        ds_write_b32 v23, v22
        v_lshl_add_u32 v23, v4, 4, s41
        s_waitcnt lgkmcnt(0)""")
        for kk in range(4): a(f"ds_read_b128 {Q4(CF+4*kk)}, v23 offset:{64*kk}")
        a(f"""v_bfe_u32 v24, v2, 2, 2
        v_and_b32 v25, 3, v2
        v_lshl_add_u32 v26, v4, 3, v24
        v_lshlrev_b32 v26, 7, v26
        v_lshl_add_u32 v26, v25, 3, v26
        v_add_u32 v26, s40, v26
        v_lshrrev_b32 v24, 1, v24
        v_and_b32 v25, 1, v4
        v_lshl_or_b32 v24, v25, 1, v24""")
        for u in range(4): a(f"v_xor_b32 v25, {u}, v24\nv_lshl_add_u32 v{AD+u}, v25, 5, v26")
        a("s_waitcnt lgkmcnt(0)")
    def gemv_finish(s, WF):
        a = s.a; CF, AD, AC = s.GR, s.GR+16, s.GR+20
        for kp in range(2):
            for kk in (2*kp, 2*kp+1):
                for u in range(4):
                    b = WF + 16*(kk & 1) + 4*u
                    a(f"ds_read_b64_tr_b16 {P2(b)}, v{AD+u} offset:{4096*kk}\nds_read_b64_tr_b16 {P2(b+2)}, v{AD+u} offset:{4096*kk+512}")
                if kk & 1 == 0: a("s_waitcnt lgkmcnt(4)")
            a("s_waitcnt lgkmcnt(0)")
            for kk in (2*kp, 2*kp+1):
                for u in range(4): a(f"v_mfma_f32_16x16x32_bf16 {Q4(AC+4*u)}, {Q4(CF+4*kk)}, {Q4(WF+16*(kk&1)+4*u)}, " + (Q4(AC+4*u) if kk else "0"))
        for u in range(1, 4): a(f"v_cmp_eq_u32 vcc, {u}, v4\nv_cndmask_b32 v{AC}, v{AC}, v{AC+4*u}, vcc")
        a(f"v_lshl_add_u32 v23, v2, 2, s41\nds_write_b32 v23, v{AC}\ns_waitcnt lgkmcnt(0)")
    def gemv_store(s, XN, lg):
        a = s.a
        s.gemv_finish(XN)
        s.spin(MISC+772)
        a(f"s_cmp_lg_u32 s3, 4\ns_cbranch_scc1 {lg}\nv_lshl_add_u32 v23, v2, 2, s41")
        for w in range(4): a(f"ds_read_b32 v{24+w}, v23 offset:{256*w}")
        a(f"""s_mul_i32 s37, s47, 24576
        s_lshl_b32 s38, s45, 8
        s_add_u32 s37, s37, s38
        v_lshlrev_b32 v23, 2, v2
        s_waitcnt lgkmcnt(0)
        v_add_f32 v24, v24, v25
        v_add_f32 v26, v26, v27
        v_add_f32 v24, v24, v26
        buffer_store_dword v24, v23, {W}, s37 offen sc1
        {lg}:""")
    def spin(s, off):
        a = s.a; sp, so = a.label("L_spin"), a.label("L_spun")
        a(f"""v_mov_b32 v7, {off}
        v_mov_b32 v6, 1
        s_mov_b64 exec, 1
        ds_add_u32 v7, v6
        s_mov_b64 exec, -1
        s_mov_b32 s39, 0
        {sp}:
        ds_read_b32 v6, v7
        s_add_u32 s39, s39, 1
        s_cmp_gt_u32 s39, 200000
        s_cbranch_scc1 {so}
        s_waitcnt lgkmcnt(0)
        v_cmp_ne_u32 vcc, 4, v6
        s_cbranch_vccnz {sp}
        {so}:""")
    def front(s):
        a = s.a
        a("s_waitcnt lgkmcnt(0)")
        if s.opt.get("st0"): s.stamp(26, "kernarg")
        s.kv_stage()
        if s.opt.get("st0"): s.stamp(27, "kv issued")
        a.srd(8, PTR["ws"], 128*MB)
        a("s_cmp_ge_u32 s3, 4\ns_cbranch_scc1 L_B\nL_padstart:")
    def gemv_task(s, late=False):
        s.a("s_add_u32 s33, s32, 160" if late else f"s_mul_i32 s33, s4, {s.NG}\ns_add_u32 s33, s33, s5")
        s.a("""s_sub_u32 s40, s3, 4
        s_lshr_b32 s35, s33, 1
        s_and_b32 s47, s33, 1
        s_lshl_b32 s34, s47, 2
        s_add_u32 s34, s34, s40""")
        s.gemv_setup()
    def gemv_part(s, lo, hi, wait=None):
        a = s.a; l, l2 = a.label("L_gp"), a.label("L_gp")
        if hi > lo:
            a(f"s_cmp_ge_u32 s5, {s.NG}\ns_cbranch_scc1 {l}\ns_cmp_lt_u32 s3, {4+lo}\ns_cbranch_scc1 {l}\ns_cmp_ge_u32 s3, {4+hi}\ns_cbranch_scc1 {l}")
            s.gemv_issue()
            if wait is not None: wait(); a(f"s_waitcnt vmcnt(16)\ns_branch {l2}")
        a(f"{l}:")
        if wait is not None: wait(); a(f"s_waitcnt vmcnt(0)\n{l2}:")
    def touch(s, srd="s[12:15]"):
        s.a(f"s_sub_u32 s30, s3, 4\ns_mul_i32 s33, s2, 28672\ns_mul_i32 s39, s30, 7168\ns_add_u32 s33, s33, s39\ns_add_u32 s33, s33, {3584 if s.opt.get('thalf', 1) else 0}\nv_min_u32 v7, {27 if s.opt.get('thalf', 1) else 55}, v2\nv_lshlrev_b32 v7, 7, v7\nbuffer_load_dword v204, v7, {srd}, s33 offen")
    def front_B(s):
        a = s.a; kl = s.opt.get("klate", 1); loc = s.opt.get("kvlocal", 0)
        a(f"s_load_dword s6, s[94:95], {WS_EPOCH}")
        if not s.opt.get("nocodepf"): s.code_prefetch(6)
        s.poison()
        s.gemv_task()
        s.hop(0, 4)
        a("s_waitcnt lgkmcnt(0)\ns_add_u32 s6, s6, 1")
        if loc: l = s.only_wave(7); s.hello_send(); a(f"{l}:")
        a("s_waitcnt vmcnt(1)")
        s.bar("kv in")
        if loc: l = s.only_wave(7); s.hello_check(); a(f"{l}:")
        if kl == 2: s.k_load()
        t3 = s.opt.get("touch", 0) == 3
        if t3: s.srd(24, "win", D*F*2); s.touch("s[24:27]")
        s.ld_setup()
        a(f"s_waitcnt vmcnt({(9 if kl == 2 else 0) + t3})")
        s.silu()
        s.stamp(3, None)
        s.bar("kv stored")
        l = s.only_wave(7); s.set_flag(0, "s7", loc); a(f"{l}:")
        if kl == 1: s.k_load()
        if s.opt.get("touch", 0) == 4: s.srd(24, "win", D*F*2); s.touch("s[24:27]")
        l = s.only_wave(7); a("s_andn2_b32 s37, s7, 15"); s.poll(0, "s37", 16, sleep=s.opt.get("sl1", 0), fl=s.opt.get("pollfl", "sc1"))
        if loc: s.acquire_if_far()
        a(f"{l}:")
        s.k_patch()

    def conv_A(s):
        a = s.a
        s.kv_build()
        a(f"""s_mul_i32 s34, s3, {CH_STRIDE}
        v_and_b32 v10, 1, v3
        v_xor_b32 v11, 1, v10
        v_mul_u32_u24 v11, {KVE_OFF}, v11
        v_lshrrev_b32 v16, 1, v3
        v_sub_u32 v16, 7, v16
        v_lshlrev_b32 v16, 6, v16
        v_lshl_add_u32 v16, v4, 4, v16
        v_add3_u32 v16, v16, v11, s34
        v_mul_u32_u24 v11, {KB_OFF - KA_OFF - 4}, v10
        v_sub_u32 v11, {KB_OFF}, v11
        v_lshl_add_u32 v11, v3, 2, v11
        v_lshl_add_u32 v11, v4, 4, v11
        v_add_u32 v17, s34, v11
        v_lshlrev_b32 v10, 2, v4
        v_add_u32 v10, v10, v3
        v_sub_u32 v10, 15, v10
        v_lshlrev_b32 v5, 4, v2
        s_lshl_b32 s35, s7, 2
        s_add_u32 s35, s35, s3
        s_lshl_b32 s35, s35, 12
        s_add_u32 s35, s35, {WS_KV}
        v_mov_b32 v18, s34
        v_mov_b32 v19, 0""")
        for w in range(4): a(f"v_cmp_eq_u32 vcc, {w}, v10\nv_cndmask_b32 v{12+w}, 0, v190, vcc")
        a("s_waitcnt vmcnt(0)")
        s.stamp(3, "kv stored")
        s.bar("kv stored")
        s.bar("sync1")
        s.stamp(4, "sync1 released")
        for i in range(4):
            a(f"s_add_u32 m0, s34, {1024*i}\ns_add_u32 s37, s35, {1024*i}\nbuffer_load_dwordx4 v5, {W}, s37 offen {s.opt.get('kvld', '') if s.opt.get('kvlocal', 0) else 'sc1'} lds")
            if s.opt.get("kvemis"): a(f"s_add_u32 m0, s34, {KVE_OFF+1024*i}\ns_add_u32 s37, s35, {2+1024*i}\nbuffer_load_dwordx4 v5, {W}, s37 offen sc1 lds")
        ACC, SET = 24, [56, 120]
        def reads(st, mu):
            out = []
            for n in range(8):
                b = SET[st] + 32 + 4*n
                out.append(f"ds_read_b128 {Q4(SET[st]+4*n)}, v16 offset:{512*(7-n)+64*mu}")
                out.append(f"ds_read_b64 {P2(b)}, v17 offset:{512*n+64*mu}")
                out.append(f"ds_read_b64 {P2(b+2)}, v17 offset:{512*n+64*mu+8}")
            return out
        if s.opt.get("kvemis"): a(f"s_waitcnt vmcnt(0)\nds_write_b16 v18, v19 offset:{KVE_OFF+4094}")
        else:
            a("v_add_u32 v18, s34, v5")
            for i in range(4): a(f"s_waitcnt vmcnt({3-i})\nds_read_b128 {Q4(24+8*i)}, v18 offset:{1024*i}")
            for i in range(4): a(f"ds_read_b32 v{28+8*i}, v18 offset:{1024*i+16}")
            for i in range(4):
                a(f"s_waitcnt lgkmcnt(3)")
                for j in range(4): a(f"v_alignbit_b32 v{24+8*i+j}, v{25+8*i+j}, v{24+8*i+j}, 16")
                a(f"ds_write_b128 v18, {Q4(24+8*i)} offset:{KVE_OFF+1024*i}")
        s.stamp(5, "kv in lds")
        a(f"s_mul_i32 s37, s3, {CH_STRIDE + 128}\nv_lshlrev_b32 v10, 2, v3\nv_lshl_add_u32 v10, v4, 7, v10\nv_add_u32 v10, s37, v10")
        a(f"""v_bfe_u32 v11, v2, 1, 2
        v_lshrrev_b32 v18, 3, v2
        v_and_b32 v20, 1, v2
        v_mul_u32_u24 v19, {CH_STRIDE + 128}, v11
        v_lshl_add_u32 v19, v18, 5, v19
        v_lshl_add_u32 v19, v20, 4, v19
        s_lshl_b32 s38, s3, 10
        v_add_u32 v19, s38, v19
        s_lshl_b32 s38, s7, 7
        v_and_b32 v11, 7, v2
        v_lshl_add_u32 v11, v11, 4, s38
        v_lshl_add_u32 v11, v18, 15, v11
        s_lshl_b32 s38, s3, 20
        s_add_u32 s38, s38, {WS_Y2}
        """)
        def ystage(t):
            for jp in range(2): a(f"v_cvt_pk_bf16_f32 v{152+2*t+jp}, v{ACC+4*t+2*jp}, v{ACC+4*t+2*jp+1}\nds_write_b32 v10, v{152+2*t+jp} offset:{512*t+64*jp}")
        ystaged = 0
        cm = s.opt.get("cmode", 2)
        if cm:
            KVF, KF = 56, [88, 120]
            kreads = lambda mu: [f"ds_read_b64 {P2(KF[mu & 1]+4*n+2*h)}, v17 offset:{512*n+64*mu+8*h}" for n in range(8) for h in range(2)]
            nl = s.opt.get("klast", 16)
            for r in kreads(0)[:16-nl]: a(r)
            s.bar("kv landed")
            for mu in range(8):
                for n in range(8): a(f"ds_read_b128 {Q4(KVF+4*n)}, v16 offset:{512*(7-n)+64*mu}")
                for r in kreads(mu)[16-nl:]: a(r)
                nxt = kreads(mu+1)[:16-nl] if mu < 7 else []; k = 0
                for i in range(8):
                    a(f"s_waitcnt lgkmcnt({min(15, (0 if cm == 2 else 7 - i) + k)})")
                    for j in range(8-i):
                        t = i+j
                        if mu == 0 and j == 0: a(f"v_mfma_f32_16x16x32_bf16 {Q4(ACC+4*t)}, {Q4(KVF+4*i)}, v[12:15], " + ("0" if i == 0 else Q4(ACC+4*t)))
                        a(f"v_mfma_f32_16x16x32_bf16 {Q4(ACC+4*t)}, {Q4(KVF+4*i)}, {Q4(KF[mu & 1]+4*j)}, " + ("0" if mu == 0 and i == 0 and j else Q4(ACC+4*t)))
                        if i and nxt: a(nxt.pop(0)); k += 1
                        if mu == 7 and cm == 2 and j == min(3, 7-i) and 1 <= i <= 5 and s.opt.get("yearly", 1): ystage(ystaged); ystaged += 1; k += 2
        else:
            for r in reads(0, 0): a(r)
            s.bar("kv landed")
            for mu in range(8):
                st = mu & 1
                nxt = reads(1-st, mu+1) if mu < 7 else []
                a("s_waitcnt lgkmcnt(0)")
                ms = []
                if mu == 0:
                    for t in range(8): ms.append(f"v_mfma_f32_16x16x32_bf16 {Q4(ACC+4*t)}, {Q4(SET[0]+4*t)}, v[12:15], 0")
                for j in range(8):
                    for i in range(8-j):
                        t = i+j
                        ms.append(f"v_mfma_f32_16x16x32_bf16 {Q4(ACC+4*t)}, {Q4(SET[st]+4*i)}, {Q4(SET[st]+32+4*j)}, {Q4(ACC+4*t)}")
                for n, m in enumerate(ms):
                    a(m)
                    if n < len(nxt): a(nxt[n])
                    cs = s.opt.get("cslow")
                    if cs and (mu < cs[0] if cs[0] > 0 else mu >= -cs[0]) and n % cs[1] == 0: a(f"s_nop {cs[2]}")
        if s.opt.get("wlate"): s.a("s_barrier")
        s.stamp(6, "conv mfma done")
        for t in range(ystaged, 8): ystage(t)
        a("s_waitcnt lgkmcnt(0)")
        if s.opt.get("aspin", 1): s.spin(MISC+768)
        else: s.bar("y staged")
        s.stamp(7, "y staged")
        for q in range(4): a(f"ds_read_b128 {Q4(72+4*q)}, v19 offset:{256*q}")
        for q in range(4):
            a(f"s_waitcnt lgkmcnt({3-q})\nbuffer_store_dwordx4 {Q4(72+4*q)}, v11, {W}, s38 offen sc1\ns_add_u32 s38, s38, {16*16384}")
        a("s_waitcnt vmcnt(0)")
        s.stamp(8, "y stored")
        apre = s.opt.get("xpre", 0) in (3, 4)
        if apre:
            s.srd(12, "win", D*F*2)
            a(f"""s_and_b32 s30, s3, 1
            v_lshlrev_b32 v6, 1, v4
            v_xor_b32 v6, v6, v3
            s_lshl_b32 s35, s30, 5
            v_add_u32 v16, s35, v4
            v_mul_u32_u24 v5, {F*2}, v16
            s_lshl_b32 s36, s59, 8
            v_add_u32 v5, s36, v5""")
            for i in range(8): a(f"v_xor_b32 v7, {8*((i>>1)&1)}, v6\nv_lshl_add_u32 v7, v7, 4, v5\nv_add_u32 v{120+i}, {i*4*F*2}, v7")
            a(f"s_mul_i32 s33, s2, 21504\ns_mul_i32 s39, s3, 7168\ns_add_u32 s33, s33, s39\ns_add_u32 s33, s33, {256*7168 + 3584}\nv_min_u32 v7, 27, v2\nv_lshlrev_b32 v7, 7, v7")
        seq = ["y stored", "stats1", "sync2", "y landed", "stats2", "h2 stored"]; cut = 1 if s.opt.get("xpre", 0) == 4 else 4
        for b in seq[:cut]: s.bar(b)
        if apre:
            l, l2 = a.label("L_apre"), a.label("L_apre")
            a(f"s_cmp_ge_u32 s5, 28\ns_cbranch_scc1 {l}\ns_cmp_ge_u32 s3, 2\ns_cbranch_scc1 {l}")
            for k in range(4): s.ld_ops("w_in2", k)
            a(f"{l}:\ns_cmp_eq_u32 s3, 3\ns_cbranch_scc1 {l2}\nbuffer_load_dword v8, v7, s[12:15], s33 offen\n{l2}:")
        for b in seq[cut:]: s.bar(b)
        if apre: a("s_waitcnt vmcnt(0)")

    def row_B(s):
        a = s.a; o = s.opt
        XR, YR, MODV, XF, XN, T = 164, 8, 180, 32, 64, 96
        s.front_B()
        s.stamp(4, None)
        s.bar("sync1")
        s.bar("kv landed")
        if o.get("wlate"): s.a("s_barrier")
        if not o.get("xfirst", 0): s.gemv_part(o.get("e1", 0) + o.get("e2", 0), 4)
        s.srd(24, "q", S*D*2)
        a("v_and_b32 v6, 255, v0\nv_lshlrev_b32 v1, 3, v6\ns_lshl_b32 s32, s7, 14")
        for r in range(8):
            if r % 2 == 0: a(f"s_add_u32 s38, s32, {2048*r}")
            a(f"buffer_load_dwordx2 {P2(XR+2*r)}, v1, s[24:27], s38 offen offset:{2048*(r&1)} nt")
        if o.get("xfirst", 0): s.gemv_part(o.get("e1", 0) + o.get("e2", 0), 4)
        s.srd(12, "win", D*F*2)
        touch = s.touch
        if o.get("touch", 0) == 0: touch()
        if o.get("touch", 0) == 5:
            l = a.label("L_not")
            a(f"""s_cmp_lt_u32 s5, {s.NG}
            s_cbranch_scc1 {l}
            s_mul_i32 s33, s4, {32-s.NG}
            s_add_u32 s33, s33, s5
            s_sub_u32 s33, s33, {s.NG}
            s_lshl_b32 s33, s33, 2
            s_add_u32 s33, s33, s30
            s_mul_i32 s33, s33, {3*F*2}
            s_add_u32 s33, s33, {FH*2}
            v_and_b32 v7, 31, v2
            v_min_u32 v7, 27, v7
            v_lshlrev_b32 v7, 7, v7
            v_lshrrev_b32 v5, 5, v2
            v_mul_u32_u24 v5, {F*2}, v5
            v_add_u32 v5, v5, v7
            buffer_load_dword v204, v5, s[12:15], s33 offen
            s_add_u32 s33, s33, {2*F*2}
            buffer_load_dword v204, v7, s[12:15], s33 offen
            {l}:""")
        a(f"""v_lshlrev_b32 v200, 4, v6
        v_bfe_u32 v201, v6, 2, 2
        v_lshlrev_b32 v6, 6, v6
        v_add_u32 v6, {YST}, v6""")
        for e in range(4): a(f"v_xor_b32 v7, {e}, v201\nv_lshl_add_u32 v{116+e}, v7, 4, v6")
        a(f"""s_lshl_b32 s37, s30, 2
        s_add_u32 s37, s37, {MISC}
        v_and_b32 v202, 1, v4
        v_lshrrev_b32 v203, 1, v4
        v_lshl_or_b32 v202, v202, 1, v203
        v_lshl_add_u32 v202, v202, 5, s37
        v_and_b32 v203, 7, v2
        v_lshlrev_b32 v203, 5, v203
        v_add_u32 v203, {MISC}, v203
        v_xor_b32 v201, v2, v4
        v_lshlrev_b32 v201, 5, v201""")
        def partial(src, off, pk=True):
            for r in range(8):
                x = src + 4*r
                if pk:
                    a(f"""v_pk_add_f32 {P2(T+16)}, {P2(x)}, {P2(x+2)}
                    v_pk_mul_f32 {P2(T+18)}, {P2(x)}, {P2(x)}
                    v_pk_fma_f32 {P2(T+18)}, {P2(x+2)}, {P2(x+2)}, {P2(T+18)}
                    v_add_f32 v{T+r}, v{T+16}, v{T+17}
                    v_add_f32 v{T+8+r}, v{T+18}, v{T+19}""")
                else:
                    a(f"v_add_f32 v{T+r}, v{x}, v{x+1}\nv_mul_f32 v{T+8+r}, v{x}, v{x}\nv_add_f32 v{T+16}, v{x+2}, v{x+3}")
                    for j in (1, 2, 3): a(f"v_fmac_f32 v{T+8+r}, v{x+j}, v{x+j}")
                    a(f"v_add_f32 v{T+r}, v{T+r}, v{T+16}")
            for p in range(8): a(f"v_permlane32_swap_b32 v{T+2*p}, v{T+2*p+1}")
            for p in range(8): a(f"v_add_f32 v{T+2*p}, v{T+2*p}, v{T+2*p+1}")
            for p in range(4): a(f"v_permlane16_swap_b32 v{T+4*p}, v{T+4*p+2}")
            for p in range(4): a(f"v_add_f32 v{T+4*p}, v{T+4*p}, v{T+4*p+2}")
            for sh in (8, 4, 2, 1):
                for p in range(4): a(f"v_add_f32_dpp v{T+4*p}, v{T+4*p}, v{T+4*p} row_ror:{sh} row_mask:0xf bank_mask:0xf")
            for p in range(4): a(f"ds_write_b32 v202, v{T+4*p} offset:{off + (p&1)*128 + (p>>1)*16}")
            a("s_waitcnt lgkmcnt(0)")
        def final(off, prod=False):
            a(f"""ds_read_b128 {Q4(T)}, v203 offset:{off}
            ds_read_b128 {Q4(T+4)}, v203 offset:{off+16}
            s_waitcnt lgkmcnt(0)
            v_add_f32 v{T}, v{T}, v{T+1}
            v_add_f32 v{T+2}, v{T+2}, v{T+3}
            v_add_f32 v{T+4}, v{T+4}, v{T+5}
            v_add_f32 v{T+6}, v{T+6}, v{T+7}
            v_add_f32 v{T}, v{T}, v{T+2}
            v_add_f32 v{T+4}, v{T+4}, v{T+6}
            v_mul_f32 v{T}, {fbits(-1/1024)}, v{T}
            v_mul_f32 v{T+4}, {fbits(1/1024)}, v{T+4}
            v_fma_f32 v{T+4}, -v{T}, v{T}, v{T+4}
            v_max_f32 v{T+4}, 0, v{T+4}
            v_add_f32 v{T+4}, {fbits(1e-5)}, v{T+4}
            v_rsq_f32 v{T+4}, v{T+4}""")
            if prod: a(f"v_mul_f32 v{T}, v{T}, v{T+4}")
            for r in range(8): a(f"v_readlane_b32 s{64+2*r}, v{T}, {r}\nv_readlane_b32 s{65+2*r}, v{T+4}, {r}")
        if o.get("touch", 0) == 1: touch()
        s.hop(4, s.NPAD)
        s.stamp(5, None)
        lg = a.label("L_nogemv"); a(f"s_cmp_ge_u32 s5, {s.NG}\ns_cbranch_scc1 {lg}\ns_waitcnt vmcnt({(1 if o.get('touch', 0) < 2 else 0) + (0 if o.get('xfirst', 0) else 8)})")
        s.gemv_store(XN, lg)
        s.srd(16, "wsp", S*S*2); s.srd(24, "win", D*F*2); s.srd(20, "wout", FH*D*2)
        s.stamp(6, None)
        if not s.opt.get("aspin", 1): s.bar("y staged")
        a("s_waitcnt vmcnt(0)")
        s.stamp(8, None)
        s.bar("y stored")
        l = s.only_wave(7); s.set_flag(1, "s2"); a(f"{l}:")
        if o.get("touch", 0) == 2 and o.get("xpre", 0) not in (3, 4): touch()
        def preload():
            l = a.label("L_nopre")
            a(f"s_cmp_ge_u32 s3, 6\ns_cbranch_scc1 {l}\ns_cmp_ge_u32 s5, 28\ns_cbranch_scc1 {l}")
            for g in range(4): s.ld_ops("w_in2", g)
            a(f"{l}:")
        if o.get("xpre", 0) == 0: preload()
        for r in range(8):
            for hf in range(2): s.unpack(XF+4*r+2*hf, XF+4*r+2*hf+1, XR+2*r+hf)
        partial(XF, 0)
        s.bar("stats1")
        final(0)
        def normalise():
            for r in range(8):
                for hf in (0, 2): a(f"v_pk_add_f32 {P2(XN+4*r+hf)}, {P2(XF+4*r+hf)}, s[{64+2*r}:{65+2*r}] op_sel_hi:[1,0]")
                for hf in (0, 2): a(f"v_pk_mul_f32 {P2(XN+4*r+hf)}, {P2(XN+4*r+hf)}, s[{64+2*r}:{65+2*r}] op_sel:[0,1] op_sel_hi:[1,1]")
        normalise()
        s.stamp(9, "ln1 done")
        if o.get("xpre", 0) == 2: preload()
        l = s.only_wave(7); s.poll(1, None, 256, sleep=o.get("sl2", 0))
        a(f"s_cmp_lg_u32 s2, 0\ns_cbranch_scc1 {l}\nv_mov_b32 v250, s6\nv_mov_b32 v251, {WS_EPOCH}\ns_mov_b64 exec, 1\nbuffer_store_dword v250, v251, {W}, 0 offen sc1\ns_mov_b64 exec, -1\n{l}:")
        a(f"s_lshl_b32 s33, s30, 12\ns_add_u32 s48, s33, {YST}\ns_lshl_b32 s33, s30, 13\ns_lshr_b32 s38, s7, 1\ns_lshl_b32 s38, s38, 15\ns_add_u32 s33, s33, s38\ns_and_b32 s38, s7, 1\ns_lshl_b32 s38, s38, 4\ns_add_u32 s33, s33, s38\ns_add_u32 s33, s33, {WS_Y2}")
        s.bar("sync2")
        s.stamp(10, "sync2 released")
        for i in range(4): a(f"s_add_u32 m0, s48, {1024*i}\ns_add_u32 s38, s33, {2048*i}\nbuffer_load_dwordx4 v201, {W}, s38 offen sc1 lds")
        for ms in ((0, 1, 2), (3, 4)):
            for m in ms:
                for hf, base in enumerate((MODV, 208)): a(f"s_mov_b32 s38, {WS_MOD + 24576*hf + 4096*m}\nbuffer_load_dwordx4 {Q4(base+4*m)}, v200, {W}, s38 offen sc1")
        a("s_waitcnt vmcnt(10)")
        s.bar("y landed")
        s.stamp(11, "y landed")
        for e in range(4): a(f"ds_read_b128 {Q4(YR+4*e)}, v{116+e}")
        YF = T
        a("s_waitcnt vmcnt(4)")
        for n in range(0, 12, 2): a(f"v_pk_add_f32 {P2(MODV+n)}, {P2(MODV+n)}, {P2(208+n)}")
        for hf in (0, 2): a(f"v_pk_fma_f32 {P2(MODV+4+hf)}, {P2(MODV+4+hf)}, {P2(MODV+8+hf)}, {P2(MODV+8+hf)}")
        for hf in (0, 2): a(f"v_pk_mul_f32 {P2(MODV+hf)}, {P2(MODV+hf)}, {P2(MODV+8+hf)}")
        for r in range(8):
            for hf in (0, 2): a(f"v_pk_fma_f32 {P2(XN+4*r+hf)}, {P2(XN+4*r+hf)}, {P2(MODV+4+hf)}, {P2(MODV+hf)}")
        for q in range(4):
            if q == 0: a("s_waitcnt lgkmcnt(0)")
            for e in range(4): s.unpack(YF+e, YF+4+e, YR+4*e+q)
            for rr in range(2):
                for hf in (0, 2): a(f"v_pk_fma_f32 {P2(XF+4*(2*q+rr)+hf)}, {P2(XN+4*(2*q+rr)+hf)}, {P2(YF+4*rr+hf)}, {P2(XF+4*(2*q+rr)+hf)}")
        def x1_pack():
            for r in range(8):
                for hf in range(2): a(f"v_cvt_pk_bf16_f32 v{XR+2*r+hf}, v{XF+4*r+2*hf}, v{XF+4*r+2*hf+1}")
        if o.get("x1early", 1): x1_pack(); s.x1_store()
        partial(XF, 256)
        a(f"s_waitcnt vmcnt({8 if o.get('x1early', 1) else 0})")
        for n in range(12, 20, 2): a(f"v_pk_add_f32 {P2(MODV+n)}, {P2(MODV+n)}, {P2(208+n)}")
        for hf in (0, 2): a(f"v_pk_add_f32 {P2(MODV+16+hf)}, {P2(MODV+16+hf)}, 1.0 op_sel_hi:[1,0]")
        a("s_lshl_b32 s33, s7, 15\nv_lshrrev_b32 v6, 7, v1\n" + slot_v("v6", "v6", "v7") + "\nv_and_b32 v205, 127, v1\nv_lshl_add_u32 v205, v6, 7, v205")
        s.bar("stats2")
        final(256, True)
        for r in range(8):
            a(f"v_mov_b32 v{T+8+2*(r&1)}, s{64+2*r}")
            for hf in (0, 2): a(f"v_pk_fma_f32 {P2(XN+4*r+hf)}, {P2(XF+4*r+hf)}, s[{64+2*r}:{65+2*r}], {P2(T+8+2*(r&1))} op_sel:[0,1,0] op_sel_hi:[1,1,0]")
            for hf in (0, 2): a(f"v_pk_fma_f32 {P2(XN+4*r+hf)}, {P2(XN+4*r+hf)}, {P2(MODV+16+hf)}, {P2(MODV+12+hf)}")
            for hf in range(2): a(f"v_cvt_pk_bf16_f32 v{YR+2*r+hf}, v{XN+4*r+2*hf}, v{XN+4*r+2*hf+1}")
            a(f"s_add_u32 s38, s33, {WS_H2 + AP_*r}\nbuffer_store_dwordx2 {P2(YR+2*r)}, v205, {W}, s38 offen sc1")
        s.stamp(12, "h2 issued")
        a("s_waitcnt vmcnt(0)")
        s.stamp(13, "h2 stored")
        s.bar("h2 stored")
        l = s.only_wave(7); s.set_flag(2, "s7"); a(f"{l}:")
        if o.get("xpre", 0) == 1: preload()
        if not o.get("x1early", 1):
            x1_pack()
            if not o.get("x1late", 0): s.x1_store()
    def x1_store(s):
        for r in range(8):
            if r % 2 == 0: s.a(f"s_add_u32 s31, s32, {WS_X1 + 2048*r}")
            s.a(f"buffer_store_dwordx2 {P2(164+2*r)}, v1, {W}, s31 offen offset:{2048*(r&1)} {s.opt.get('x1fl', 'sc1')}")
        return 8

    RING = {1: dict(MY=128, U=4, LX=3, LY=3, X=lambda k: (k % 4)*32768, Y=lambda k: (k % 4)*32768 + 16384),
            3: dict(MY=64, U=8, LX=7, LY=3, X=lambda k: (k % 8)*16384, Y=lambda k: 131072 + (k % 4)*8192)}
    OPS = {"w_in2": ("X", 1, "s[12:15]", "", 120, lambda g: g*64*F*2 + FH*2, 64*F*2), "w_in1": ("X", 1, "s[24:27]", "sc1", 120, lambda g: (g-16)*64*F*2, 64*F*2),
           "h2": ("Y", 1, W, "sc1", 128, lambda g: SLOT(g % 16)*128, None), "z2": ("X", 1, W, "sc1", 136, lambda g: (g-32)*64*AP_, 64*AP_),
           "w_sp": ("Y", 1, "s[16:19]", "", 144, lambda g: (g-32)*128, 128), "w_spc": ("Y", 1, "s[64:67]", "sc1", 144, lambda g: (g-32)*128, 128),
           "w_out": ("X", 3, "s[20:23]", "sc1", 152, lambda g: g*64*D*2, 64*D*2), "p": ("Y", 3, W, "sc1", 160, lambda g: SLOT(g)*128, None)}
    G_, N_, K_ = 20, 24, 27
    def consumer(s, ring, FR):
        a = s.a; c = s.RING[ring]; MY, NS = c["MY"], c["U"]; NYT = MY//32; perm = ring == 3 and s.opt.get("pperm", 1)
        a(f"""s_and_b32 s35, s3, 1
        s_lshr_b32 s36, s3, 1
        v_bfe_u32 v5, v2, 2, 2
        v_and_b32 v6, 3, v2
        v_lshl_add_u32 v7, v4, {2 if perm else 3}, v5
        v_lshlrev_b32 v7, 8, v7
        v_lshl_add_u32 v7, v6, 3, v7
        v_and_b32 v6, 1, v4
        v_xor_b32 v6, s35, v6
        v_lshl_add_u32 v7, v6, 7, v7""")
        for i in range(4): a(f"v_xor_b32 v6, {i}, v5\nv_lshl_add_u32 v{8+i}, v6, 5, v7")
        a(f"""s_mul_i32 s37, s36, {MY//2*128}
        v_lshrrev_b32 v5, 1, v3
        v_xor_b32 v5, v5, v4
        v_lshlrev_b32 v5, 4, v5
        v_lshl_add_u32 v5, v3, 7, v5
        v_add_u32 v12, s37, v5
        v_add_u32 v12, {c["Y"](0) & ~0xffff}, v12
        v_xor_b32 v13, 64, v12""")
        def reads(k, ks, f):
            o = []; xo, yo = c["X"](k) & 0xffff, c["Y"](k) & 0xffff
            for n in range(4):
                if n < NYT: o.append(f"ds_read_b128 {Q4(f+16+4*n)}, v{12+ks} offset:{yo+2048*n}")
                o.append(f"ds_read_b64_tr_b16 {P2(f+4*n)}, v{8+n} offset:{xo+ks*8192}")
                o.append(f"ds_read_b64_tr_b16 {P2(f+4*n+2)}, v{8+n} offset:{xo+ks*8192+(4096 if perm else 1024)}")
            return o
        def mfmas(f, base, first=False):
            return [f"v_mfma_f32_16x16x32_bf16 {Q4(base+4*(x*NYT+ts))}, {Q4(f+4*x)}, {Q4(f+16+4*ts)}, " + ("0" if first else Q4(base+4*(x*NYT+ts)))
                    for x in range(4) for ts in range(NYT)]
        def inter(ms, rs, extra=(), tail=()):
            rs = list(rs); ex = list(extra); n = len(ms); tail = list(tail)
            nr = s.opt.get("nr", 2) if not ex else 1
            for i, m in enumerate(ms):
                a(m); k = 0
                while rs and k < nr: a(rs.pop(0)); k += 1
                if not rs: ex = tail + ex; tail = []
                left = n - i; want = max(2 - k, -(-len(ex)//left) if not rs else 0)
                while ex and want > 0:
                    e = ex.pop(0); a(e); want -= 2 if e.startswith(("v_exp", "v_rcp", "v_permlane")) else 1
            for r in rs + ex: a(r)
        def adv(k):
            o = []
            if (c["X"](k) ^ c["X"](k+1)) >> 16: o += [f"v_xor_b32 v{8+i}, s40, v{8+i}" for i in range(4)]
            if (c["Y"](k) ^ c["Y"](k+1)) >> 16: o += [f"v_xor_b32 v{12+i}, s40, v{12+i}" for i in range(2)]
            return o
        a("s_mov_b32 s40, 0x10000")
        def step(name, accq, accp, first=False, exq=(), exp=(), mid=None, end=None, pre=()):
            k = int(name[1:])
            s.bar(name)
            for r in pre: a(r)
            if len(FR) == 4:
                cur, prv = FR[2*(k & 1):2*(k & 1)+2], FR[2-2*(k & 1):4-2*(k & 1)]
                rs = reads(k, 0, cur[0]) + reads(k, 1, cur[1])
                if accq is None:
                    for r in rs + adv(k): a(r)
                else: inter(mfmas(prv[0], accq, first) + mfmas(prv[1], accq), rs, (), adv(k))
                return
            if accq is None:
                for r in reads(k, 0, FR[0]): a(r)
            else: inter(mfmas(FR[1], accq), reads(k, 0, FR[0]), exq)
            a("s_waitcnt lgkmcnt(0)")
            if mid: mid()
            inter(mfmas(FR[0], accp, first), reads(k, 1, FR[1]), list(exp), adv(k))
            if end: end()
        def loop(label, names, acc):
            u = NS; names = list(names)
            while len(names) % u or (names and s.opt.get("trace")): step(names.pop(0), acc, acc); a("s_waitcnt lgkmcnt(0)")
            if not names: return
            a(f"s_mov_b32 s39, {len(names)//u}\n{label}:")
            nb = len(s.bars)
            for i in range(u):
                step(names[i], acc, acc)
                if i < u-1: a("s_waitcnt lgkmcnt(0)")
            del s.bars[nb:]; s.bars.extend((x, 1) for x in names)
            a(f"s_sub_u32 s39, s39, 1\ns_cmp_lg_u32 s39, 0\ns_waitcnt lgkmcnt(0)\ns_cbranch_scc1 {label}")
        return mfmas, step, loop
    def swap4(s, t):
        s.a(f"""v_permlane32_swap_b32 v{t}, v{t+2}
        v_permlane32_swap_b32 v{t+1}, v{t+3}
        v_permlane16_swap_b32 v{t}, v{t+2}
        v_permlane16_swap_b32 v{t+1}, v{t+3}""")
    def store_rows(s, t0, t1, tmp, voff, srd, soff, pitch, fl):
        a = s.a
        if s.opt.get("halfline"):
            a(f"buffer_store_dwordx4 {Q4(t0)}, v{voff}, {srd}, {soff} offen {fl}\nbuffer_store_dwordx4 {Q4(t1)}, v{voff}, {srd}, {soff} offen offset:64 {fl}")
            a(f"s_add_u32 {soff}, {soff}, {16*pitch}"); return
        for j in range(4): a(f"v_mov_b32_dpp v{tmp+j}, v{t0+j} row_ror:8 row_mask:0xf bank_mask:0xf")
        for j in range(4): a(f"v_mov_b32_dpp v{t0+j}, v{t1+j} row_ror:8 row_mask:0xf bank_mask:0xc")
        a(f"buffer_store_dwordx4 {Q4(t0)}, v{voff}, {srd}, {soff} offen {fl}\ns_add_u32 {soff}, {soff}, {8*pitch}")
        for j in range(4): a(f"v_mov_b32_dpp v{t1+j}, v{tmp+j} quad_perm:[0,1,2,3] row_mask:0xf bank_mask:0x3")
        a(f"buffer_store_dwordx4 {Q4(t1)}, v{voff}, {srd}, {soff} offen {fl}\ns_add_u32 {soff}, {soff}, {8*pitch}")
    def row_voff(s, dst, row0, pitch):
        a = s.a
        if s.opt.get("halfline"): a(f"v_add_u32 v{dst}, {row0}, v3\nv_mul_u32_u24 v{dst}, {pitch}, v{dst}\nv_lshl_add_u32 v{dst}, v4, 4, v{dst}")
        else: a(f"v_and_b32 v{dst}, 7, v2\nv_add_u32 v{dst}, {row0}, v{dst}\nv_mul_u32_u24 v{dst}, {pitch}, v{dst}\nv_lshl_add_u32 v{dst}, v4, 4, v{dst}\nv_bfe_u32 v6, v2, 3, 1\nv_lshl_add_u32 v{dst}, v6, 6, v{dst}")
    def gemm12_A(s):
        a = s.a; AP, AQ, FR, T, SU, ST, BI = 16, 80, [144, 176], 208, 216, 232, 248; RED = MISC + 1024
        mfmas, step, loop = s.consumer(1, FR)
        acc = lambda base, x, ts: base + 4*(4*x + ts)
        w = lambda: a("s_waitcnt lgkmcnt(0)")
        s.srd(44, "bsp", S*2)
        a(f"""s_lshl_b32 s41, s58, 7
        s_lshl_b32 s42, s36, 6
        s_add_u32 s41, s41, s42
        v_add_u32 v6, s41, v3
        v_lshlrev_b32 v7, 1, v6""")
        s.row_voff(1, "s41", AP_)
        a("s_lshl_b32 s34, s59, 1\ns_add_u32 s34, s34, s35\n" + slot_s("s34", "s34", "s41"))
        a(f"""s_lshl_b32 s34, s34, 7
        v_mov_b32 v14, {fbits(-1.5957691216057308*LOG2E)}
        v_mov_b32 v15, v14
        s_mov_b32 s42, {fbits(-0.07135481282636784*LOG2E)}
        s_mov_b32 s43, s42""")
        for ts in range(4): a(f"buffer_load_ushort v{BI+ts}, v7, s[44:47], 0 offen offset:{32*ts}")
        def gelu_pk(cs):
            tt = [(cc+hf, T+4*n+hf) for n, cc in enumerate(cs) for hf in (0, 2)]
            for cc, t in tt: a(f"v_pk_mul_f32 {P2(t)}, {P2(cc)}, {P2(cc)}")
            for cc, t in tt: a(f"v_pk_fma_f32 {P2(t)}, {P2(t)}, s[42:43], v[14:15]")
            for cc, t in tt: a(f"v_pk_mul_f32 {P2(t)}, {P2(t)}, {P2(cc)}")
            for cc, t in tt: a(f"v_exp_f32 v{t}, v{t}\nv_exp_f32 v{t+1}, v{t+1}")
            for cc, t in tt: a(f"v_pk_add_f32 {P2(t)}, {P2(t)}, 1.0 op_sel_hi:[1,0]")
            for cc, t in tt: a(f"v_rcp_f32 v{t}, v{t}\nv_rcp_f32 v{t+1}, v{t+1}")
            for cc, t in tt: a(f"v_pk_mul_f32 {P2(cc)}, {P2(cc)}, {P2(t)}")
        def gelu_sc(cc, t):
            o = []
            for f in (lambda j: f"v_mul_f32 v{t+j}, v{cc+j}, v{cc+j}", lambda j: f"v_fma_f32 v{t+j}, v{t+j}, s42, v14", lambda j: f"v_mul_f32 v{t+j}, v{t+j}, v{cc+j}",
                      lambda j: f"v_exp_f32 v{t+j}, v{t+j}", lambda j: f"v_add_f32 v{t+j}, 1.0, v{t+j}", lambda j: f"v_rcp_f32 v{t+j}, v{t+j}", lambda j: f"v_mul_f32 v{cc+j}, v{cc+j}, v{t+j}"):
                o += [f(j) for j in range(4)]
            return o
        def stats_pk(cc, ts, init):
            if init: a(f"v_pk_add_f32 {P2(SU+2*ts)}, {P2(cc)}, {P2(cc+2)}\nv_pk_mul_f32 {P2(SU+8+2*ts)}, {P2(cc)}, {P2(cc)}")
            else: a(f"v_pk_add_f32 {P2(SU+2*ts)}, {P2(SU+2*ts)}, {P2(cc)}\nv_pk_fma_f32 {P2(SU+8+2*ts)}, {P2(cc)}, {P2(cc)}, {P2(SU+8+2*ts)}\nv_pk_add_f32 {P2(SU+2*ts)}, {P2(SU+2*ts)}, {P2(cc+2)}")
            a(f"v_pk_fma_f32 {P2(SU+8+2*ts)}, {P2(cc+2)}, {P2(cc+2)}, {P2(SU+8+2*ts)}")
        def stats_sc(cc, ts, init):
            o = []
            for j in range(4):
                u = SU+2*ts+(j & 1); q = u + 8
                if init and j < 2: o += [f"v_add_f32 v{u}, v{cc+j}, v{cc+j+2}", f"v_mul_f32 v{q}, v{cc+j}, v{cc+j}"]
                elif init: o += [f"v_fmac_f32 v{q}, v{cc+j}, v{cc+j}"]
                else: o += [f"v_add_f32 v{u}, v{u}, v{cc+j}", f"v_fmac_f32 v{q}, v{cc+j}, v{cc+j}"]
            return o
        if s.G_ != 20:
            for n in range(16): a(f"v_mov_b32 v{SU+n}, 0")
        s.bar("R1"); s.stamp(14, "g1 released")
        step("B0", None, AP, True); s.stamp(15, "g1 first stage done"); w()
        loop("L_p1loop", [f"B{j}" for j in range(1, 16)], AP)
        s.stamp(16, "pass z2 done")
        def reduce_stats():
            for n in range(8): a(f"v_add_f32 v{SU+2*n}, v{SU+2*n}, v{SU+2*n+1}")
            for st in range(2): a(f"v_permlane32_swap_b32 v{SU+8*st}, v{SU+8*st+2}\nv_permlane32_swap_b32 v{SU+8*st+4}, v{SU+8*st+6}")
            for st in range(2): a(f"v_add_f32 v{SU+8*st}, v{SU+8*st}, v{SU+8*st+2}\nv_add_f32 v{SU+8*st+4}, v{SU+8*st+4}, v{SU+8*st+6}")
            for st in range(2): a(f"v_permlane16_swap_b32 v{SU+8*st}, v{SU+8*st+4}")
            a(f"""v_add_f32 v{T}, v{SU}, v{SU+4}
            v_add_f32 v{T+1}, v{SU+8}, v{SU+12}
            v_and_b32 v5, 1, v4
            v_lshrrev_b32 v6, 1, v4
            v_lshl_or_b32 v5, v5, 1, v6
            v_lshl_add_u32 v5, v5, 4, v3
            s_lshl_b32 s37, s36, 6
            v_add_u32 v5, s37, v5
            v_lshlrev_b32 v5, 4, v5
            s_lshl_b32 s41, s35, 3
            s_add_u32 s41, s41, {RED}
            v_add_u32 v5, s41, v5
            ds_write_b64 v5, {P2(T)}
            v_add_u32 v5, s37, v3
            v_lshlrev_b32 v5, 3, v5
            v_add_u32 v5, {RED+2048}, v5
            s_add_u32 s37, s34, {WS_Z2}""")
        def normalise(tss):
            for ts in tss:
                for ip in range(2):
                    t = ST + 4*((2*ts+ip) & 3)
                    for ii in range(2):
                        cc = acc(AP, 2*ip+ii, ts)
                        for hf in (0, 2): a(f"v_pk_fma_f32 {P2(cc+hf)}, {P2(cc+hf)}, {P2(SU+2*ts)}, {P2(SU+2*ts)} op_sel:[0,0,1] op_sel_hi:[1,0,1]")
                        a(f"v_cvt_pk_bf16_f32 v{t+2*ii}, v{cc}, v{cc+1}\nv_cvt_pk_bf16_f32 v{t+2*ii+1}, v{cc+2}, v{cc+3}")
                    s.swap4(t)
                s.store_rows(ST + 8*(ts & 1), ST + 8*(ts & 1) + 4, T, 1, W, "s37", AP_, "sc1")
        binit = [f"v_lshlrev_b32 v{BI+ts}, 16, v{BI+ts}" for ts in range(4)] + [f"v_mov_b32 v{acc(AP, x, ts)+j}, v{BI+ts}" for x in range(4) for ts in range(4) for j in range(4)]
        ng = s.G_ - 16; ns = s.opt.get('nsplit', 2); assert s.N_ + ns + 1 < 32 and s.K_ > s.N_ + ns
        for g in range(16, 32):
            kw = {}
            if g < s.G_:
                tiles = [(n // 4, n % 4) for n in range(16*(g-16)//ng, 16*(g-15)//ng)]
                (x0, t0), rest = tiles[0], tiles[1:]
                sc = gelu_sc(acc(AP, x0, t0), ST) + stats_sc(acc(AP, x0, t0), t0, x0 == 0 and ng == 4)
                h = 0 if g == 16 else len(sc)//2
                def mid(rest=rest):
                    for n in range(0, len(rest), 2): gelu_pk([acc(AP, x, t) for x, t in rest[n:n+2]])
                    for x, t in rest: stats_pk(acc(AP, x, t), t, x == 0 and ng == 4)
                kw = dict(exq=sc[:h], exp=sc[h:], mid=mid)
                if g == s.G_-1: kw["end"] = reduce_stats
            elif s.N_ <= g < s.N_ + ns:
                i = g - s.N_; per = 4//ns; tss = list(range(i*per, (i+1)*per))
                kw = dict(mid=lambda tss=tss: normalise(tss[:max(1, per//2)]))
                if per > 1: kw["end"] = lambda tss=tss: normalise(tss[per//2:])
                if i == 0: kw["pre"] = [f"ds_read_b64 {P2(SU+2*ts)}, v5 offset:{128*ts}" for ts in range(4)]
            elif g == s.N_+ns: kw = dict(exq=binit[4:20], exp=binit[20:36], pre=["s_waitcnt vmcnt(8)"] + binit[:4])
            elif g == s.N_+ns+1: kw = dict(exq=binit[36:52], exp=binit[52:])
            step(f"B{g}", AP if g == 16 else AQ, AQ, g == 16, **kw)
            if g == s.K_-1: a("s_waitcnt vmcnt(0)")
            w()
            if g in (s.G_-1, s.N_-1, s.N_, s.K_-1): s.stamp({s.G_-1: 17, s.N_-1: 18, s.N_: 19, s.K_-1: 20}[g], f"before B{g+1}")
        s.stamp(21, "pass z1 done")
        s.bar("R2"); s.stamp(22, "g2 released")
        for m in mfmas(FR[1], AQ): a(m)
        gelu_pk([acc(AQ, 0, 0), acc(AQ, 0, 1)]); gelu_pk([acc(AQ, 0, 2), acc(AQ, 0, 3)])
        for g in range(32, 44):
            n = g - 28; sc = gelu_sc(acc(AQ, n // 4, n % 4), T); h = 0 if g == 32 else 14
            step(f"B{g}", None if g == 32 else AP, AP, exq=sc[:h], exp=sc[h:])
            if g == 32: s.stamp(23, "g2 first stage done")
            w()
        loop("L_g2loop", [f"B{j}" for j in range(44, 64)], AP)
        s.stamp(24, "g2 loop done")
        a(f"s_add_u32 s37, s34, {WS_P}")
        ms = mfmas(FR[1], AP); ms = [ms[4*x+ts] for ts in range(4) for x in range(4)]
        early = [f"v_mul_f32 v{acc(AP, x, ts)+j}, v{acc(AP, x, ts)+j}, v{acc(AQ, x, ts)+j}" for ts in range(1) for x in range(4) for j in range(4)]
        for i, m in enumerate(ms):
            a(m)
            if i >= 8:
                for _ in range(2): a(early.pop(0))
        for ts in range(4):
            for ip in range(2):
                t = ST + 4*((2*ts+ip) & 3)
                for ii in range(2):
                    cc = acc(AP, 2*ip+ii, ts); z = acc(AQ, 2*ip+ii, ts)
                    if ts:
                        for hf in (0, 2): a(f"v_pk_mul_f32 {P2(cc+hf)}, {P2(cc+hf)}, {P2(z+hf)}")
                    a(f"v_cvt_pk_bf16_f32 v{t+2*ii}, v{cc}, v{cc+1}\nv_cvt_pk_bf16_f32 v{t+2*ii+1}, v{cc+2}, v{cc+3}")
                if not s.opt.get("pperm", 1): s.swap4(t)
            s.store_rows(ST + 8*(ts & 1), ST + 8*(ts & 1) + 4, T, 1, W, "s37", AP_, "sc1")
        s.stamp(28, "p issued")
        a("s_waitcnt vmcnt(0)")
        s.stamp(29, "p stored")
        s.bar("p stored")
    def gemm3_A(s):
        a = s.a; AC, FR, Z, GB, T, GB2 = 16, [48, 72, 96, 120], 144, 160, 176, 208
        mfmas, step, loop = s.consumer(3, FR)
        acc = lambda x, ts: AC + 4*(2*x + ts)
        s.srd(20, "out", S*D*2)
        a(f"""s_lshl_b32 s41, s56, 6
        s_lshl_b32 s42, s36, 5
        s_add_u32 s41, s41, s42
        v_add_u32 v6, s41, v3
        v_lshlrev_b32 v1, 11, v6
        v_lshl_add_u32 v1, v4, 4, v1""")
        s.row_voff(15, "s41", D*2)
        a(f"""s_lshl_b32 s37, s57, 8
        s_lshl_b32 s41, s35, 7
        s_add_u32 s37, s37, s41
        v_lshlrev_b32 v14, 5, v4
        s_lshl_b32 s41, s37, 1
        s_add_u32 s41, s41, {WS_MOD + 5*4096}""")
        s.bar("R3"); s.stamp(30, "g3 released")
        step("C0", None, AC); a("s_waitcnt lgkmcnt(0)"); s.stamp(31, "g3 first stage done")
        step("C1", AC, AC, True); a("s_waitcnt lgkmcnt(0)")
        e = s.opt.get("ldat", 26)
        loop("L_g3loop", [f"C{j}" for j in range(2, e)], AC)
        ld = [f"buffer_load_dwordx4 {Q4(GB+4*n)}, v14, {W}, s41 offen offset:{128*(n>>1)+16*(n&1)} sc1" for n in range(4)]
        ld.append("s_add_u32 s41, s41, 24576")
        ld += [f"buffer_load_dwordx4 {Q4(GB2+4*n)}, v14, {W}, s41 offen offset:{128*(n>>1)+16*(n&1)} sc1" for n in range(4)]
        for ts in range(2):
            ld.append(f"s_add_u32 s41, s37, {WS_X1 + ts*16*2048}")
            ld += [f"buffer_load_dwordx4 {Q4(Z+8*ts+4*ip)}, v1, {W}, s41 offen offset:{64*ip} sc1" for ip in range(2)]
        for j in range(e, 28): step(f"C{j}", AC, AC, pre=ld if j == e else ()); a("s_waitcnt lgkmcnt(0)")
        s.stamp(32, "g3 loop done")
        for m in mfmas(FR[2], AC) + mfmas(FR[3], AC): a(m)
        a("s_waitcnt vmcnt(4)")
        for n in range(16): a(f"v_add_f32 v{GB+n}, v{GB+n}, v{GB2+n}")
        for ts in range(2):
            for ip in range(2):
                c0 = acc(2*ip, ts); c1 = acc(2*ip+1, ts); n = 2*ts+ip; t = T + 8 + 4*n
                for j in range(4): a(f"v_permlane32_swap_b32 v{c0+j}, v{c1+j}")
                for j in range(4): a(f"v_permlane16_swap_b32 v{c0+j}, v{c1+j}")
                a(f"s_waitcnt vmcnt({[3, 2, 3, 2][n]})")
                for ii, cc in enumerate((c0, c1)):
                    for hf in (0, 2): s.unpack(T+hf, T+hf+1, Z+4*n+2*ii+hf//2)
                    for hf in (0, 2): a(f"v_pk_fma_f32 {P2(cc+hf)}, {P2(cc+hf)}, {P2(GB+8*ip+4*ii+hf)}, {P2(T+hf)}")
                    a(f"v_cvt_pk_bf16_f32 v{t+2*ii}, v{cc}, v{cc+1}\nv_cvt_pk_bf16_f32 v{t+2*ii+1}, v{cc+2}, v{cc+3}")
            s.store_rows(T + 8 + 8*ts, T + 12 + 8*ts, T + 4, 15, "s[20:23]", "s37", D*2, s.opt.get('outfl', 'sc1'))

    def ld_setup(s):
        a = s.a
        a("s_sub_u32 s30, s3, 4\ns_and_b32 s49, s3, 1\nv_lshlrev_b32 v6, 1, v4\nv_xor_b32 v6, v6, v3\ns_lshl_b32 s35, s49, 5\nv_add_u32 v16, s35, v4")
        for reg, ld, sn, base in ((120, F*2, "s59", 0), (152, D*2, "s57", 0)):
            a(f"s_mov_b32 s36, {ld}\nv_mul_lo_u32 v5, v16, s36\ns_lshl_b32 s36, {sn}, 8\ns_add_u32 s36, s36, {base}\nv_add_u32 v5, s36, v5")
            sh = 0 if reg == 152 and s.opt.get("pperm", 1) else 1
            for i in range(8): a(f"v_xor_b32 v7, {8*((i>>sh)&1)}, v6\nv_lshl_add_u32 v7, v7, 4, v5\nv_add_u32 v{reg+i}, {i*4*ld}, v7")
        a(f"v_lshlrev_b32 v5, 12, v16\nv_add_u32 v5, {WS_Z2}, v5\ns_lshl_b32 s36, s59, 1")
        for p in range(2):
            a(f"v_xor_b32 v7, {8*p}, v6\nv_lshrrev_b32 v17, 3, v7\nv_add_u32 v17, s36, v17\n" + slot_v("v17", "v17", "v18") + f"\nv_and_b32 v7, 7, v7\nv_lshl_add_u32 v7, v7, 4, v5\nv_lshl_add_u32 v7, v17, 7, v7")
            for i in range(8):
                if (i >> 1) & 1 == p: a(f"v_add_u32 v{136+i}, {i*4*AP_}, v7")
        a("v_and_b32 v6, 7, v2\nv_xor_b32 v6, v6, v4\nv_lshrrev_b32 v16, 3, v2")
        for reg, ld, sm, MY, base in ((128, AP_, "s58", 128, WS_H2), (144, S*2, "s58", 128, 0), (160, AP_, "s56", 64, WS_P)):
            a(f"s_mul_i32 s35, {sm}, {MY}\ns_mul_i32 s36, s49, {MY//2}\ns_add_u32 s35, s35, s36\nv_add_u32 v5, s35, v16\ns_mov_b32 s36, {ld}\nv_mul_lo_u32 v5, v5, s36\nv_add_u32 v5, {base}, v5")
            for i in range(MY//16): a(f"v_xor_b32 v7, {4*(i&1)}, v6\nv_lshl_add_u32 v7, v7, 4, v5\nv_add_u32 v{reg+i}, {i*8*ld}, v7")
    def ld_ops(s, name, g=None):
        a = s.a; kind, ring, srd, fl, reg, soff, _ = s.OPS[name]; c = s.RING[ring]
        n = 8 if kind == "X" else c["MY"]//16; part = 0
        a(f"s_mul_i32 s50, s30, {1024*n}")
        if g is None: a(f"s_add_u32 s50, s50, {'s54' if kind == 'X' else 's55'}"); so = "s52" if kind == "X" else "s53"
        else: a(f"s_mov_b32 s51, {soff(g)}"); part = c[kind](g); so = "s51"
        for i in range(n): a(f"s_add_u32 m0, s50, {part+1024*i}\nbuffer_load_dwordx4 v{reg+i}, {srd}, {so} offen {fl} lds")
        return n
    def ld_run(s, ring, plan, tag):
        a = s.a; c = s.RING[ring]
        cnt = lambda nm: 8 if s.OPS[nm][0] == "X" else c["MY"]//16
        issued = []; rows = []
        for name, ops, wt in plan:
            if name == "B17" and s.opt.get("x1late", 0): issued += [-1]*8
            for nm, g in ops: issued += [g]*cnt(nm)
            wc = None
            if wt is not None: wc = len(issued) - 1 - max(i for i, x in enumerate(issued) if x == wt); assert wc < 64
            rows.append((name, ops, wc))
        i = 0
        while i < len(rows):
            name, ops, wc = rows[i]; j = i + 1
            key = lambda r, d: ([(nm, g-d) for nm, g in r[1]], r[2])
            if len(ops) == 2 and name != "B17":
                while j < len(rows) and rows[j][0] != "B17" and key(rows[j], j-i) == key(rows[i], 0): j += 1
            if j - i >= 3 and not s.opt.get('trace'):
                lab = a.label(f"L_ld{tag}")
                for nm, g in ops:
                    kind = s.OPS[nm][0]
                    a(f"s_mov_b32 {'s52' if kind == 'X' else 's53'}, {s.OPS[nm][5](g)}\ns_mov_b32 {'s54' if kind == 'X' else 's55'}, {c[kind](g)}")
                    if not s.OPS[nm][6]: a(f"s_mov_b32 s47, {g % 16 if ring == 1 else g}")
                a(f"s_mov_b32 s44, {j-i}\n{lab}:")
                s.bar(name); s.bars.pop(); s.bars.extend((r[0], 1) for r in rows[i:j])
                for nm, _ in ops: s.ld_ops(nm)
                for nm, _ in ops:
                    kind = s.OPS[nm][0]; r, q = ('s52', 's54') if kind == 'X' else ('s53', 's55')
                    if s.OPS[nm][6]: a(f"s_add_u32 {r}, {r}, {s.OPS[nm][6]}")
                    else: a("s_add_u32 s47, s47, 1\n" + slot_s(r, "s47", "s51") + f"\ns_lshl_b32 {r}, {r}, 7")
                    lo, st = c[kind](0), c[kind](1) - c[kind](0); hi = max(c[kind](k) for k in range(8)) + st
                    a(f"s_add_u32 {q}, {q}, {st}\ns_cmp_eq_u32 {q}, {hi}\ns_cselect_b32 {q}, {lo}, {q}")
                a(f"s_sub_u32 s44, s44, 1\ns_cmp_lg_u32 s44, 0\ns_waitcnt vmcnt({wc})\ns_cbranch_scc1 {lab}")
                i = j
            else:
                s.bar(name)
                if name == "B17" and s.opt.get("x1late", 0): s.x1_store()
                for nm, g in ops: s.ld_ops(nm, g)
                if wc is not None: a(f"s_waitcnt vmcnt({wc})")
                i += 1
    def copies_srd(s, which):
        a = s.a
        if {"w_in1": "i", "w_out": "o"}[which] not in s.fix: return
        d, sn, off = {"w_in1": (24, "s59", WS_WIC), "w_out": (20, "s57", WS_WOC)}[which]
        l = a.label("L_nofix")
        a(f"s_and_b32 s35, {sn}, 3\ns_cmp_lg_u32 s35, 1\ns_cbranch_scc1 {l}\ns_add_u32 s{d}, s94, {off-256}\ns_addc_u32 s{d+1}, s95, 0\ns_and_b32 s{d+1}, s{d+1}, 0xffff\n{l}:")
    def gemm12_L(s):
        s.copies_srd("w_in1"); s.copies_srd("w_out"); s.a.srd(64, PTR["ws"], S*S*2, WS_WSC - 128)
        ops = lambda g: [] if g > 63 else ([("h2", g)] if g < 4 else [("h2", g), ("w_in2" if g < 16 else "w_in1", g)] if g < 32 else [("w_sp", g)] if g < 35 else [("z2", g), ("w_spc" if g % 8 == 3 and "s" in s.fix else "w_sp", g)])
        plan = [("R1", [("h2", 0), ("h2", 1), ("h2", 2)], 0)]
        for j in range(64):
            o = ops(j+3)
            if s.opt.get("rev"): o = o[::-1]
            if s.opt.get("pause"):
                if j == s.N_: o = []
                if j == s.N_+1: o = ops(j+2) + o
            plan.append((f"B{j}", o, j+1 if j not in (31, 63) else None))
            if j == 31: plan.append(("R2", [("z2", 32), ("z2", 33), ("z2", 34)], 32))
        s.ld_run(1, plan, "a")
        n = s.opt.get("wpre", 2)
        for g in range(n): s.ld_ops("w_out", g)
        s.bar("p stored")
        for g in range(n, 8):
            if g == max(n, 6): s.a("s_waitcnt vmcnt(32)")
            s.ld_ops("w_out", g)
    def gemm3_L(s):
        s.a("s_waitcnt vmcnt(40)")
        ops = lambda j: ([("p", j+3)] if j+3 < 28 else []) + ([("w_out", j+7)] if 8 <= j+7 < 28 else [])
        plan = [("R3", [("p", g) for g in range(3)], 0)] + [(f"C{j}", ops(j), j+1 if j < 27 else None) for j in range(28)]
        s.ld_run(3, plan, "c")
    def gemm12_X(s):
        a = s.a; RED = MISC + 1024
        a(f"""s_sub_u32 s35, s3, 6
        s_lshl_b32 s35, s35, 6
        v_add_u32 v5, s35, v2
        v_lshlrev_b32 v6, 4, v5
        v_add_u32 v6, {RED}, v6
        v_lshlrev_b32 v5, 3, v5
        v_add_u32 v7, {RED+2048}, v5
        s_mul_i32 s36, s58, {14*1024}
        s_add_u32 s36, s36, {WS_GRAN}
        s_lshl_b32 s38, s59, 10
        s_add_u32 s38, s38, s36
        s_mov_b32 s55, 0""")
        l = s.only_wave(7); a("s_lshl_b32 s37, s58, 4"); s.poll(2, "s37", 16, sleep=s.opt.get("sl1", 0)); a(f"{l}:\ns_waitcnt vmcnt(0)")
        s.bar("R1")
        def gather():
            for n in range(14):
                if n % 4 == 0: a(f"s_add_u32 s37, s36, {1024*n}")
                a(f"buffer_load_dwordx2 {P2(12+2*n)}, v5, {W}, s37 offen offset:{1024*(n&3)} sc1")
        def check(blocking):
            top, fin, out = a.label("L_lnc"), a.label("L_lnf"), a.label("L_lno")
            a(f"s_cmp_lg_u32 s55, 0\ns_cbranch_scc1 {out}\ns_mov_b32 s39, 0\n{top}:\ns_waitcnt vmcnt(0)\nv_max_u32 v8, v13, v15")
            for n in range(2, 14, 2): a(f"v_max3_u32 v8, v8, v{13+2*n}, v{15+2*n}")
            a(f"v_cmp_eq_u32 vcc, -1, v8\ns_add_u32 s39, s39, 1\ns_cmp_gt_u32 s39, 20000\ns_cbranch_scc1 {fin}\ns_cbranch_vccz {fin}")
            gather()
            a(f"s_branch {top if blocking else out}\n{fin}:")
            for n in range(1, 14): a(f"v_add_f32 v12, v12, v{12+2*n}\nv_add_f32 v13, v13, v{13+2*n}")
            a(f"""v_mul_f32 v12, {fbits(1/FH)}, v12
            v_mul_f32 v13, {fbits(1/FH)}, v13
            v_fma_f32 v13, -v12, v12, v13
            v_max_f32 v13, 0, v13
            v_add_f32 v13, {fbits(1e-5)}, v13
            v_rsq_f32 v8, v13
            v_mul_f32 v9, -v12, v8
            ds_write_b64 v7, v[8:9]
            s_mov_b32 s55, 1
            s_waitcnt lgkmcnt(0)
            {out}:""")
        for j in range(64):
            s.bar(f"B{j}")
            if s.opt.get("probe"):
                l = s.only_wave(6)
                a(f"s_lshl_b32 s86, s7, 14\ns_add_u32 s86, s86, {WS_KV + 128*j}\ns_memrealtime s[88:89]\ns_waitcnt lgkmcnt(0)\ns_buffer_load_dword s87, {W}, s86 glc\ns_waitcnt lgkmcnt(0)\ns_memrealtime s[90:91]\ns_waitcnt lgkmcnt(0)\ns_sub_u32 s90, s90, s88\nv_writelane_b32 v247, s90, {j}\nv_writelane_b32 v246, s88, {j}\n{l}:")
            if j in s.opt.get("recode", ()): s.code_prefetch(6, 28, 68)
            late = s.opt.get("x1late", 0)
            if late and j == 17: s.x1_store()
            if late and j == 19: a("s_waitcnt vmcnt(0)")
            if j == (21 if late else 0) and not s.opt.get("x1early", 1):
                l = s.only_wave(7); s.set_flag(5, "s7"); a(f"{l}:")
            if j == s.opt.get("deferat", 11) and s.opt.get("defer", 1):
                l = s.only_wave(7); a(f"s_cmp_lg_u32 s5, 0\ns_cbranch_scc1 {l}"); s.set_flag(6, "s7"); a(f"{l}:")
            if True:
                for sync, j0 in [(sy, j0) for sy, j0, c in ((7, 9, "i"), (8, 24, "s"), (9, 56, "o")) if c in s.fix]:
                    if j == j0: l = s.only_wave(7); s.poll_early(sync); a(f"{l}:")
                    if j == j0+3: l = s.only_wave(7); s.poll_late(sync); a(f"{l}:")
            if j == s.G_:
                a(f"""ds_read_b128 v[8:11], v6
                s_waitcnt lgkmcnt(0)
                v_add_f32 v8, v8, v10
                v_add_f32 v9, v9, v11
                v_cmp_o_f32 vcc, v9, v9
                v_mov_b32 v10, 0x7fc00000
                v_cndmask_b32 v9, v10, v9, vcc
                buffer_store_dwordx2 v[8:9], v5, {W}, s38 offen sc1""")
            elif j == s.N_-1-s.opt.get("lag", 1): gather()
            elif j == s.N_-1:
                check(True)
                if s.diag: a("v_writelane_b32 v255, s39, 40")
                s.stamp(18, None)
            elif j == s.K_:
                l = s.only_wave(7); a("s_lshl_b32 s37, s59, 4\ns_add_u32 s37, s37, s58"); s.set_flag(3, "s37"); a(f"{l}:")
            elif j == 31:
                l = s.only_wave(7); a("s_lshl_b32 s37, s59, 4"); s.stamp(21, None); s.poll(3, "s37", 16); s.stamp(22, None); a(f"{l}:")
                s.bar("R2")
        s.bar("p stored")
        l = s.only_wave(7); a("s_lshl_b32 s37, s58, 4\ns_add_u32 s37, s37, s59"); s.set_flag(4, "s37"); a(f"{l}:")
    def gemm3_X(s):
        a = s.a
        early = s.opt.get("p2", 1)
        l = s.only_wave(7); a("s_lshr_b32 s37, s56, 1\ns_lshl_b32 s37, s37, 4"); s.poll(4, "s37", 2 if early else 14); a(f"{l}:\ns_waitcnt vmcnt(0)")
        s.bar("R3")
        for j in range(28):
            if j == 0 and early: l = s.only_wave(7); s.poll(4, "s37", 14); a(f"{l}:")
            s.bar(f"C{j}")
            if j in (8, 14) and not s.opt.get("x1early", 1):
                l = s.only_wave(7); a("s_lshl_b32 s37, s56, 3"); (s.poll_early if j == 8 else s.poll_late)(5, "s37", 8); a(f"{l}:")

    def code_prefetch(s, wave, n=32, d=24):
        a = s.a; l = s.only_wave(wave); here = a.label("L_pc")
        a(f"""s_getpc_b64 s[{d}:{d+1}]
        {here}:
        s_sub_u32 s{d}, s{d}, {here}-{NAME}
        s_subb_u32 s{d+1}, s{d+1}, 0
        s_and_b32 s{d+1}, s{d+1}, 0xffff
        s_mov_b32 s{d+2}, L_done-{NAME}
        s_mov_b32 s{d+3}, 0x00020000
        v_mul_u32_u24 v248, {128*n}, v2
        s_lshl_b32 s35, s5, 7
        buffer_load_dword v249, v248, s[{d}:{d+3}], s35 offen
        {l}:""")
    def hop(s, lo, hi):
        a = s.a
        if not s.opt.get("pads", 1): return
        out = a.label("L_hopped")
        a("s_mov_b32 s99, 1")
        ks = [k for k in range(lo, hi) if k not in s.jit_pads]; per = -(-len(ks)//4)
        for w in range(4):
            l = s.only_wave(4+w)
            for k in ks[w*per:(w+1)*per]: a(f"s_branch L_pad_{k}\nL_padret_{k}:")
            a(f"s_branch {out}\n{l}:")
        a(f"{out}:\ns_mov_b32 s99, 0")
    def build(s):
        a = s.a
        a.launch(NAME, 256, 512, LDS_BYTES); a.begin(NAME)
        a("s_cmp_ge_u32 s2, 256\ns_cbranch_scc1 L_done")
        if s.diag: a("v_mov_b32 v255, 0\nv_mov_b32 v247, 0\nv_mov_b32 v246, 0")
        if s.opt.get("fixed"): a("s_memrealtime s[100:101]\ns_waitcnt lgkmcnt(0)")
        s.stamp(0, "start")
        if s.opt.get("burn"):
            a(f"s_mov_b32 s20, {s.opt['burn']}\nL_burn:")
            for i in range(64): a(f"v_add_u32 v{1+(i&7)}, v{9+(i&7)}, v0")
            a("s_sub_u32 s20, s20, 1\ns_cmp_lg_u32 s20, 0\ns_cbranch_scc1 L_burn")
        a("""s_load_dwordx16 s[64:79], s[0:1], 0
        s_load_dwordx16 s[80:95], s[0:1], 64
        v_lshrrev_b32 v1, 6, v0
        v_and_b32 v2, 63, v0
        v_readfirstlane_b32 s3, v1
        s_and_b32 s4, s2, 7
        s_lshr_b32 s5, s2, 3
        s_lshl_b32 s7, s4, 5
        s_add_u32 s7, s7, s5
        v_and_b32 v3, 15, v2
        v_lshrrev_b32 v4, 4, v2
        s_mov_b32 s99, 0
""")
        if s.opt.get("rowmap", 0):
            a("""s_cmp_ge_u32 s5, 14
            s_cselect_b32 s35, 1, 0
            s_cselect_b32 s36, 14, 0
            s_sub_u32 s59, s5, s36
            s_lshl_b32 s58, s4, 1
            s_add_u32 s58, s58, s35
            s_lshr_b32 s35, s5, 3
            s_and_b32 s57, s5, 7
            s_lshl_b32 s56, s4, 2
            s_add_u32 s56, s56, s35""")
        else:
            a("""s_lshr_b32 s33, s4, 1
        s_and_b32 s34, s4, 1
        s_mul_i32 s35, s5, 37
        s_lshr_b32 s35, s35, 8
        s_mul_i32 s36, s35, 7
        s_sub_u32 s36, s5, s36
        s_lshl_b32 s58, s33, 2
        s_add_u32 s58, s58, s35
        s_mul_i32 s59, s34, 7
        s_add_u32 s59, s59, s36
        s_lshr_b32 s35, s5, 2
        s_and_b32 s36, s5, 3
        s_lshl_b32 s56, s33, 3
        s_add_u32 s56, s56, s35
        s_lshl_b32 s57, s34, 2
        s_add_u32 s57, s57, s36""")
        s.front()
        def flat(b): return [n for n, k in b for _ in range(k)]
        s.bars = []
        s.conv_A(); front = flat(s.bars); s.bars = []
        o = s.opt; nsb = (0 if o.get("x1early", 1) else 1) + bool(o.get("l2pf", 0)) + bool(o.get("defer", 1)) + len(s.fix) + ("o" in s.fix)
        a("s_cmp_lt_u32 s5, 28\ns_cbranch_scc1 L_A1\n" + "s_barrier\n"*nsb + "s_branch L_A3\nL_A1:")
        s.gemm12_A(); mid = flat(s.bars); s.bars = []
        a("L_A3:"); s.gemm3_A(); last = flat(s.bars); s.bars = []
        a("s_branch L_end\nL_B:")
        if s.opt.get("prio"): a(f"s_setprio {s.opt['prio']}")
        s.row_B(); assert flat(s.bars) == front, (flat(s.bars), front); s.bars = []
        a("s_cmp_ge_u32 s5, 28\ns_cbranch_scc1 L_Bspare\ns_cmp_ge_u32 s3, 6\ns_cbranch_scc1 L_X")
        s.gemm12_L(); assert flat(s.bars) == mid, (flat(s.bars), mid); s.bars = []
        a("L_L3:"); s.gemm3_L(); assert flat(s.bars) == last; s.bars = []
        a("s_branch L_end\nL_X:")
        s.jit_on = True
        s.gemm12_X(); assert flat(s.bars) == mid; s.bars = []
        a("L_X3:"); s.gemm3_X(); assert flat(s.bars) == last; s.bars = []
        s.jit_on = False; assert not s.jit; s.order = mid + last
        a("s_branch L_end\nL_Bspare:")
        if s.opt.get("x1late", 0): s.x1_store()
        if not s.opt.get("x1early", 1):
            a("s_waitcnt vmcnt(0)\ns_barrier")
            l = s.only_wave(7); s.set_flag(5, "s7"); a(f"{l}:")
        a("s_sub_u32 s32, s5, 28\ns_lshl_b32 s32, s32, 3\ns_add_u32 s32, s32, s4\nv_and_b32 v5, 255, v0\nv_lshlrev_b32 v5, 7, v5\ns_mov_b32 s62, 0\ns_mov_b32 s63, -1")
        fix = s.fix; s.nspare_bar = 0
        def sbar(): a("s_barrier"); s.nspare_bar += 1
        def copy(srd, dst, voff, row0, pitch, n, sync):
            a(f"s_mul_i32 s34, s33, {row0}")
            for i in range(n): a(f"buffer_load_dwordx4 {Q4(32+4*i)}, {voff}, {srd}, s34 offen\ns_add_u32 s34, s34, {pitch}")
            a(f"s_mul_i32 s34, s33, {row0}\ns_add_u32 s34, s34, {dst}")
            for i in range(n): a(f"s_waitcnt vmcnt({n-1})\nbuffer_store_dwordx4 {Q4(32+4*i)}, {voff}, {W}, s34 offen sc1\ns_add_u32 s34, s34, {pitch}")
            a("s_waitcnt vmcnt(0)"); sbar()
            l = s.only_wave(7); s.set_flag(sync, "s32"); a(f"{l}:")
        a("s_lshl_b32 s33, s32, 2\ns_add_u32 s33, s33, s30")
        if "i" in fix:
            a("v_lshlrev_b32 v8, 10, v4\nv_lshl_add_u32 v8, v3, 4, v8\nv_add_u32 v8, 256, v8")
            copy("s[12:15]", WS_WIC - 256, "v8", 8*F*2, F*2, 8, 7)
        a("s_mul_i32 s34, s33, 57344\nv_and_b32 v6, 31, v2\nv_min_u32 v6, 27, v6\nv_lshlrev_b32 v6, 7, v6\nv_lshrrev_b32 v7, 5, v2\nv_mul_u32_u24 v7, 7168, v7\nv_add_u32 v6, v6, v7")
        for i in range(4 if s.opt.get("thalf", 1) else 0):
            if s.opt.get("gentle", 0) > 1: a("s_waitcnt vmcnt(0)\ns_mov_b64 exec, 0xffffffff\nbuffer_load_dword v100, v6, s[12:15], s34 offen\ns_waitcnt vmcnt(0)\ns_not_b64 exec, exec\nbuffer_load_dword v100, v6, s[12:15], s34 offen\ns_mov_b64 exec, -1\ns_add_u32 s34, s34, 14336")
            else: a("buffer_load_dword v100, v6, s[12:15], s34 offen\ns_add_u32 s34, s34, 14336")
        if s.opt.get("defer", 1):
            l = s.only_wave(7); a("s_lshl_b32 s37, s4, 5"); s.poll(6, "s37", 1, sleep=8); a(f"{l}:"); sbar()
        if "s" in fix:
            a("v_bfe_u32 v8, v2, 3, 2\nv_lshlrev_b32 v8, 10, v8\nv_and_b32 v7, 7, v2\nv_lshl_add_u32 v8, v7, 4, v8\nv_lshrrev_b32 v7, 5, v2\nv_lshl_add_u32 v8, v7, 12, v8\nv_add_u32 v8, 384, v8")
            copy("s[16:19]", WS_WSC - 128, "v8", 16*S*2, 2*S*2, 8, 8)
        order = [k for k in range(32) if not ("s" in fix and k % 8 == 3)]
        a("v_and_b32 v6, 63, v0\nv_lshlrev_b32 v6, 12, v6\ns_lshl_b32 s35, s32, 18")
        for i in range(len(order)//4):
            for w in range(4): a(f"s_cmp_eq_u32 s30, {w}\ns_cselect_b32 s34, {order[4*i+w]*128}, s34")
            if s.opt.get("gentle") and i >= s.opt.get("gfrom", 0): a("s_waitcnt vmcnt(0)"); a("s_mov_b64 exec, 0xffffffff\ns_add_u32 s34, s34, s35\nbuffer_load_dword v100, v6, s[16:19], s34 offen\ns_waitcnt vmcnt(0)\ns_not_b64 exec, exec\nbuffer_load_dword v100, v6, s[16:19], s34 offen\ns_mov_b64 exec, -1")
            else: a("s_add_u32 s34, s34, s35\nbuffer_load_dword v100, v6, s[16:19], s34 offen")
        if s.NG == 20:
            s.gemv_task(True); s.gemv_issue(); a("s_waitcnt vmcnt(16)"); s.silu(); a("s_waitcnt vmcnt(0)"); s.gemv_store(64, a.label("L_gb"))
            s.srd(16, "wsp", S*S*2); s.srd(20, "wout", FH*D*2)
            a("s_lshl_b32 s33, s32, 2\ns_add_u32 s33, s33, s30")
        if "o" in fix:
            a("v_and_b32 v8, 1, v4\nv_lshlrev_b32 v8, 10, v8\nv_lshl_add_u32 v8, v3, 4, v8\nv_lshrrev_b32 v7, 5, v2\nv_lshl_add_u32 v8, v7, 11, v8\nv_add_u32 v8, 256, v8")
            copy("s[20:23]", WS_WOC - 256, "v8", 14*D*2, 2*D*2, 7, 9)
        a(f"s_mul_i32 s34, s32, {FH*D*2//32}")
        for i in range(4):
            if s.opt.get("gentle"): a("s_waitcnt vmcnt(0)\ns_mov_b64 exec, 0xffffffff\nbuffer_load_dword v100, v5, s[20:23], s34 offen\ns_waitcnt vmcnt(0)\ns_not_b64 exec, exec\nbuffer_load_dword v100, v5, s[20:23], s34 offen\ns_mov_b64 exec, -1\ns_add_u32 s34, s34, 32768")
            else: a("buffer_load_dword v100, v5, s[20:23], s34 offen\ns_add_u32 s34, s34, 32768")
        a.srd(64, PTR["ws"], S*S*2, WS_WSC - 128)
        f0 = s.opt.get("l2pf", 0)
        if f0:
            a(f"""s_sub_u32 s33, s5, 28
            s_lshr_b32 s34, s4, 1
            s_lshl_b32 s34, s34, 2
            s_add_u32 s34, s34, s33
            s_lshl_b32 s34, s34, 7
            v_and_b32 v5, 127, v0
            v_add_u32 v5, s34, v5
            v_lshlrev_b32 v8, 12, v5
            v_and_b32 v5, 255, v0
            v_min_u32 v5, 223, v5
            v_mul_u32_u24 v6, 4682, v5
            v_lshrrev_b32 v6, 16, v6
            v_mul_u32_u24 v7, 14, v6
            v_sub_u32 v7, v5, v7
            s_lshl_b32 s34, s33, 4
            v_add_u32 v6, s34, v6
            v_lshlrev_b32 v6, 12, v6
            s_and_b32 s34, s4, 1
            s_mul_i32 s35, s34, 14
            v_add_u32 v7, s35, v7
            {slot_v("v7", "v7", "v5")}
            v_lshl_add_u32 v9, v7, 7, v6
            s_mul_i32 s37, s34, 112""")
            l = s.only_wave(7); s.poll(3, "s37", 112, sleep=8)
            if "s" in fix: s.poll(8, None, 32)
            a(f"{l}:"); sbar()
            a(f"""s_mov_b32 s33, {f0*128}
            s_mov_b32 s34, {WS_Z2 + f0*64*AP_}
            L_l2:
            buffer_load_dword v100, v9, {W}, s34 offen sc1
            s_cmp_ge_u32 s3, 6
            s_cbranch_scc1 L_l2y
            s_bfe_u32 s35, s33, 0x30007
            s_cmp_eq_u32 s35, {3 if 's' in fix else 8}
            s_cbranch_scc1 L_l2c
            buffer_load_dword v100, v8, s[16:19], s33 offen
            s_branch L_l2y
            L_l2c:
            buffer_load_dword v100, v8, s[64:67], s33 offen
            L_l2y:
            s_add_u32 s33, s33, 128
            s_add_u32 s34, s34, {64*AP_}
            s_cmp_lt_u32 s33, 4096
            s_waitcnt vmcnt(40)
            s_cbranch_scc1 L_l2""")
        if "o" in fix:
            l = s.only_wave(7); s.poll(9, None, 32, sleep=8); a(f"{l}:"); sbar()
        s.copies_srd("w_out")
        a("s_cmp_ge_u32 s3, 6\ns_cbranch_scc1 L_X3\ns_waitcnt vmcnt(0)")
        for k in range(8):
            if k == 6: a("s_waitcnt vmcnt(32)")
            s.ld_ops("w_out", k)
        assert s.nspare_bar + (0 if o.get("x1early", 1) else 1) == nsb
        a("s_branch L_L3")
        a("L_end:")
        if s.opt.get("fixed"):
            a(f"s_add_u32 s100, s100, {s.opt['fixed']*100}\nL_fix:\ns_memrealtime s[96:97]\ns_waitcnt lgkmcnt(0)\ns_sub_u32 s96, s96, s100\ns_cmp_lt_i32 s96, 0\ns_cbranch_scc1 L_fix")
        if s.diag:
            a("s_waitcnt vmcnt(0)"); s.stamp(63, "end")
            if s.opt.get("dbg"):
                sel = s.opt["dbg"]
                a.srd(12, 92, 256)
                a("s_cmp_lg_u32 s2, 37\ns_cbranch_scc1 L_nodbg\ns_cmp_lg_u32 s3, 0\ns_cbranch_scc1 L_nodbg\nv_readlane_b32 s20, v255, 0\nv_mov_b32 v5, 0")
                for j, i in enumerate(sel): a(f"v_readlane_b32 s21, v255, {i}\ns_sub_u32 s21, s21, s20\nv_writelane_b32 v5, s21, {j}")
                a("v_lshlrev_b32 v1, 2, v2\nbuffer_store_dword v5, v1, s[12:15], 0 offen\nL_nodbg:")
            if s.opt.get("probe"): a(f"s_lshl_b32 s92, s2, 11\ns_add_u32 s92, s92, {WS_TS + MB}\nv_lshlrev_b32 v1, 2, v0\nbuffer_store_dword v247, v1, {W}, s92 offen\ns_add_u32 s92, s92, {MB}\nbuffer_store_dword v246, v1, {W}, s92 offen")
            a(f"s_lshl_b32 s92, s2, 11\ns_add_u32 s92, s92, {WS_TS}\nv_lshlrev_b32 v1, 2, v0\nbuffer_store_dword v255, v1, {W}, s92 offen")
        a("L_done:\ns_endpgm")
        info = a.end(NAME, 256, sgpr=102, align=s.opt.get("align"), pads=(s.NPAD, "s99", s.opt.get("padbase", 0xe00)) if s.opt.get("pads", 1) else None)
        if "-v" in sys.argv: print(info, file=sys.stderr)
        return a.text(HEADER)
HEADER = """; adaLN-conditioned H3 long-conv block + gMLP block, one persistent launch of 256 workgroups x 8 waves (text emitted by the author's generator).
; kernarg: q k v shift_k ssm_k ssm_D B_x w_in w_sp b_sp w_out c w_mod out debug ws
;
;  1 kv = shortconv(k)*v per 64-channel x 128-row tile, stored per channel       -> flag, 16 producers per consumer
;  2 long causal conv of 4 channels per workgroup as Toeplitz MFMA products      -> flag, all to all
;  3 x1 = x + gate*LN(x)mod*y, h2 = LN(x1)mod for 8 rows per workgroup           -> flag, 16 producers
;  4 z2 = gelu(h2 w_in[:,1792:]), then z1 likewise while z2's LayerNorm sums are exchanged and z2 is stored -> flag, 16 producers
;  5 p = z1 * (w_sp LN(z2) + b_sp)                                               -> flag, 14 producers
;  6 out = x1 + gate * (p w_out)
; Hand-offs: payload and flag are written through (sc1) and the payload is acknowledged before the flag; a flag holds this launch's tag, which is
; The L_pad_* pairs are landing pads: idle helper waves branch there and back so that a code page is resident before the compute waves reach it.
"""
def build(diag=False, **opt):
    g = G(diag, **opt); t = g.build()
    if opt.get("pads", 1) and opt.get("jithop", 1):
        jit = {}; last = None; inA = False
        for l in t.splitlines():
            if l.startswith("L_A1:"): inA = True
            if l.startswith("L_B:"): break
            if inA and "s_barrier ;" in l: last = l.split(";")[1].strip()
            if inA and l.startswith("L_pad_") and last:
                jit.setdefault(g.order[max(0, g.order.index(last) - opt.get("lead", 3))], []).append(int(l[6:-1]))
        used = t.count('s_cbranch_scc1 L_padret_')
        g = G(diag, **dict(opt, jit=jit, npad=used+1)); t = g.build()
    import padcheck; assert not padcheck.check(t)
    build.names = g.names; return t
if __name__ == "__main__":
    t = build(diag="--diag" in sys.argv)
    if "--plain" in sys.argv: t = t.replace(f"; @launch kernel={NAME} grid", "; @launch grid")
    open(sys.argv[1], "w").write(t)
```

```python
import sys, struct
from asmgen import Asm
S, D, F, FH = 2048, 1024, 3584, 1792
MB = 1 << 20
WS_MOD, WS_EPOCH, WS_GRAN, WS_FLAG = 0, 0xc000, 0x10000, 0x50000
WS_KV, WS_Y2, WS_X1, WS_H2, WS_Z2, WS_P, WS_WOC, WS_WIC, WS_WSC, WS_TS = 1*MB, 9*MB, 13*MB, 17*MB, 25*MB, 33*MB, 41*MB, 45*MB, 53*MB, 64*MB
AP_ = 4096
SLOT = lambda j: j + (j + 4)//7
def slot_s(d, j, t): return f"s_add_u32 {t}, {j}, 4\ns_mul_i32 {t}, {t}, 37\ns_lshr_b32 {t}, {t}, 8\ns_add_u32 {d}, {j}, {t}"
def slot_v(d, j, t): return f"v_add_u32 {t}, 4, {j}\nv_mul_u32_u24 {t}, 37, {t}\nv_lshrrev_b32 {t}, 8, {t}\nv_add_u32 {d}, {j}, {t}"

PTR = dict(q=64, k=66, v=68, shift=70, ssmk=72, ssmd=74, win=78, wsp=80, bsp=82, wout=84, c=86, wmod=88, out=90, ws=94)
def fbits(x): return "0x%08x" % struct.unpack("<I", struct.pack("<f", x))[0]
LOG2E = 1.4426950408889634
CH_STRIDE, KVE_OFF, KA_OFF, KB_OFF = 17664, 4576, 9216, 13440
HB = 4*CH_STRIDE
YST, MODST = 16384, 131072
MISC = 155648
LDS_BYTES = 163840
W = "s[8:11]"
P2 = lambda b: f"v[{b}:{b+1}]"
Q4 = lambda b: f"v[{b}:{b+3}]"
NAME = "adaLN_cond__ssm_conv_h3__mixer_gmlp__prompt_kernel"

class G:
    def __init__(s, diag=False, **opt):
        s.G_, s.N_, s.K_ = opt.get('G', 20), opt.get('N', 25), opt.get('K', 29); s.a = Asm(); s.diag = diag; s.opt = opt; s.NPAD = opt.get('npad', 32); s.fix = opt.get('fix', 'o'); s.NG = 20 if opt.get('gblate', 1) else 24; assert s.NG == 24 or 'o' in s.fix; s.bars = []; s.names = {}; s.jit = {k: list(v) for k, v in opt.get('jit', {}).items()}; s.jit_on = False; s.jit_pads = {k for v in s.jit.values() for k in v}
    def bar(s, name, n=1):
        tr = s.opt.get("trace")
        if tr and name[0] == tr[0] and name[1:].isdigit() and 0 <= int(name[1:]) - tr[1] < 22: s.stamp(41 + int(name[1:]) - tr[1], "arrive " + name)
        s.a(f"s_barrier ; {name}"); s.bars.append((name, n))
        if s.jit_on:
            for k in s.jit.pop(name, []):
                l = s.only_wave(6); s.a(f"s_mov_b32 s99, 1\ns_branch L_pad_{k}\nL_padret_{k}:\ns_mov_b32 s99, 0\n{l}:")
    def stamp(s, i, name=None):
        if name: s.names[i] = name
        if name and s.opt.get("fixat") == i: s.a("s_memrealtime s[100:101]\ns_waitcnt lgkmcnt(0)")
        if s.diag: s.a(f"s_memrealtime s[96:97]\ns_waitcnt lgkmcnt(0)\nv_writelane_b32 v255, s96, {i}")
        cyc = {5: 33, 6: 34, 15: 35, 16: 36, 23: 37, 24: 38, 31: 39, 32: 25, 21: 26}
        if s.diag and name and i in cyc: s.a(f"s_memtime s[96:97]\ns_waitcnt lgkmcnt(0)\nv_writelane_b32 v255, s96, {cyc[i]}")
    def unpack(s, lo, hi, src):
        s.a(f"v_lshlrev_b32 v{lo}, 16, v{src}\nv_and_b32 v{hi}, 0xffff0000, v{src}")
    def srd(s, d, name, nbytes): s.a.srd(d, PTR[name], nbytes)
    def set_flag(s, sync, idx_sgpr, local=False):
        a = s.a
        a(f"""s_lshl_b32 s60, {idx_sgpr}, 7
        s_add_u32 s60, s60, {WS_FLAG + sync*32768}
        v_mov_b32 v250, s6
        v_mov_b32 v251, 0
        s_mov_b64 exec, 1""")
        if local:
            l, l2 = a.label("L_far"), a.label("L_set")
            a(f"s_cmp_eq_u32 s28, 0\ns_cbranch_scc1 {l}\nbuffer_store_dword v250, v251, {W}, s60 offen\ns_branch {l2}\n{l}:\nbuffer_wbl2 sc1\ns_waitcnt vmcnt(0)")
        a(f"buffer_store_dword v250, v251, {W}, s60 offen sc1")
        if local: a(f"{l2}:")
        a("s_mov_b64 exec, -1")
    def acquire_if_far(s):
        l = s.a.label("L_near"); s.a(f"s_cmp_lg_u32 s28, 0\ns_cbranch_scc1 {l}\nbuffer_inv sc1\ns_waitcnt vmcnt(0)\n{l}:")
    def hello_send(s):
        s.a(f"""s_getreg_b32 s29, hwreg(HW_REG_XCC_ID, 0, 4)
        s_lshl_b32 s60, s7, 7
        s_add_u32 s60, s60, {WS_FLAG + 6*32768}
        v_mov_b32 v250, s6
        v_mov_b32 v251, s29
        v_mov_b32 v252, 0
        s_mov_b64 exec, 1
        buffer_store_dwordx2 v[250:251], v252, {W}, s60 offen sc1
        s_mov_b64 exec, -1""")
    def hello_check(s):
        a = s.a; l = a.label("L_hello"); go = a.label("L_hgo")
        a(f"""s_andn2_b32 s60, s7, 31
        s_lshl_b32 s60, s60, 7
        s_add_u32 s60, s60, {WS_FLAG + 6*32768}
        v_and_b32 v250, 31, v2
        v_lshlrev_b32 v250, 7, v250
        s_mov_b32 s61, 0
        s_mov_b32 s28, 0
        {l}:
        buffer_load_dwordx2 v[252:253], v250, {W}, s60 offen sc1
        s_add_u32 s61, s61, 1
        s_cmp_gt_u32 s61, 30000
        s_cbranch_scc1 {go}
        s_waitcnt vmcnt(0)
        v_cmp_ne_u32 vcc, s6, v252
        s_cbranch_vccnz {l}
        v_cmp_ne_u32 vcc, s29, v253
        s_cbranch_vccnz {go}
        s_mov_b32 s28, {0 if s.opt.get("forcefar") else 1}
        {go}:
        s_waitcnt vmcnt(0)""")
    def poll_early(s, sync, first=None, cnt=32):
        s.a(f"v_min_u32 v248, {cnt-1}, v2\nv_lshlrev_b32 v248, 7, v248")
        s.a(f"s_lshl_b32 s60, {first}, 7\ns_add_u32 s60, s60, {WS_FLAG + sync*32768}" if first else f"s_mov_b32 s60, {WS_FLAG + sync*32768}")
        s.a(f"buffer_load_dword v249, v248, {W}, s60 offen sc1")
    def poll_late(s, sync, first=None, cnt=32):
        l = s.a.label("L_seen")
        s.a(f"s_waitcnt vmcnt(0)\nv_cmp_ne_u32 vcc, s6, v249\ns_cbranch_vccz {l}"); s.poll(sync, first, cnt); s.a(f"{l}:")
    def poll(s, sync, first_sgpr, cnt, sleep=0, fl='sc1'):
        a = s.a; l = a.label("L_poll"); go = a.label("L_go")
        if sync in s.opt.get("nopoll", ()): return
        if first_sgpr is None: a(f"s_mov_b32 s60, {WS_FLAG + sync*32768}")
        else: a(f"s_lshl_b32 s60, {first_sgpr}, 7\ns_add_u32 s60, s60, {WS_FLAG + sync*32768}")
        a(f"v_min_u32 v250, {min(cnt, 64)-1}, v2\nv_lshlrev_b32 v250, 7, v250\ns_mov_b32 s61, 0\n{l}:")
        nl = -(-cnt//64)
        if sleep: a(f"s_sleep {sleep}")
        for q in range(nl):
            if q: a(f"s_add_u32 s62, s60, {min(q*64, cnt-64)*128}")
            a(f"buffer_load_dword v{251+q}, v250, {W}, {'s62' if q else 's60'} offen {fl}")
        a(f"s_add_u32 s61, s61, 1\ns_cmp_gt_u32 s61, 30000\ns_cbranch_scc1 {go}\ns_waitcnt vmcnt(0)")
        for q in range(nl): a(f"v_xor_b32 v{251+q}, s6, v{251+q}")
        if nl == 4: a("v_or3_b32 v251, v251, v252, v253\nv_or_b32 v251, v251, v254")
        if nl == 2: a("v_or_b32 v251, v251, v252")
        a(f"v_cmp_ne_u32 vcc, 0, v251\ns_cbranch_vccnz {l}\n{go}:\ns_waitcnt vmcnt(0)")
    def only_wave(s, w):
        l = s.a.label("L_skip"); s.a(f"s_cmp_lg_u32 s3, {w}\ns_cbranch_scc1 {l}"); return l

    XR = 184
    KST, VST = HB, HB + 17408
    def kv_stage(s):
        s.a("; ---- all waves: k and v tile (64 channels x 128 rows, halo 8) into LDS")
        a = s.a
        a(f"""s_lshr_b32 s32, s7, 4
        s_and_b32 s33, s7, 15
        s_lshl_b32 s34, s33, 18
        s_lshl_b32 s35, s32, 7
        s_add_u32 s34, s34, s35
        v_lshrrev_b32 v5, 3, v2
        v_and_b32 v6, 7, v2
        v_lshlrev_b32 v6, 4, v6
        v_lshl_add_u32 v7, v5, 11, v6
        v_xor_b32 v8, 2048, v7
        s_lshl_b32 s36, s3, 15
        s_add_u32 s36, s36, s34
        s_add_u32 s37, s36, 16384
        s_lshl_b32 s38, s3, 11
        s_add_u32 m0, s38, {s.KST + 1024}
        s_mov_b32 s14, {S*D*2}
        s_mov_b32 s15, 0x00020000
        s_mov_b32 s18, {S*D*2}
        s_mov_b32 s19, 0x00020000
        s_waitcnt lgkmcnt(0)
        s_mov_b32 s12, s{PTR["k"]}
        s_and_b32 s13, s{PTR["k"]+1}, 0xffff
        buffer_load_dwordx4 v8, s[12:15], s36 offen nt lds
        s_mov_b32 s16, s{PTR["v"]}
        s_and_b32 s17, s{PTR["v"]+1}, 0xffff
        s_add_u32 m0, s38, {s.VST}
        s_nop 0
        buffer_load_dwordx4 v7, s[16:19], s36 offen nt lds
        s_add_u32 m0, s38, {s.KST + 2048}
        s_nop 0
        buffer_load_dwordx4 v7, s[12:15], s37 offen nt lds
        s_add_u32 m0, s38, {s.VST + 1024}
        s_nop 0
        buffer_load_dwordx4 v8, s[16:19], s37 offen nt lds""")
        l = s.only_wave(3)
        a(f"s_sub_u32 s36, s34, 16384\nv_add_u32 v8, s36, v7\ns_mov_b32 m0, {s.KST}\nbuffer_load_dwordx4 v8, s[12:15], 0 offen nt lds\n{l}:")
    def kv_build(s):
        s.a("; ---- compute waves: kv = shortconv(k) * v, written per channel in reverse time order")
        a = s.a
        KR, VR, SH, SF, KF, VF = 20, 44, 64, 72, 88, 136
        s.srd(20, "shift", D*8)
        a(f"""s_lshl_b32 s35, s32, 6
        v_lshl_add_u32 v6, v3, 2, s35 ; ch
        v_lshlrev_b32 v1, 3, v6
        buffer_load_dwordx4 {Q4(SH)}, v1, s[20:23], 0 offen
        buffer_load_dwordx4 {Q4(SH+4)}, v1, s[20:23], 0 offen offset:16""")
        s.load_d()
        a(f"""v_lshrrev_b32 v5, 4, v0
        v_lshlrev_b32 v7, 10, v5
        v_lshl_add_u32 v7, v3, 3, v7
        v_add_u32 v7, {s.KST}, v7
        v_and_b32 v8, 1, v5
        v_lshlrev_b32 v8, 7, v8
        v_add_u32 v12, v7, v8
        v_sub_u32 v13, v7, v8
        v_xor_b32 v8, 128, v8
        v_add_u32 v14, v7, v8
        v_sub_u32 v15, v7, v8
        v_lshlrev_b32 v5, 3, v5
        s_lshl_b32 s36, s33, 7
        v_add_u32 v5, s36, v5         ; s0
        v_sub_u32 v1, 2040, v5
        v_lshlrev_b32 v1, 1, v1
        v_lshl_add_u32 v1, v6, 12, v1
        s_waitcnt vmcnt(0)""")
        s.stamp(1, "kv landed")
        s.bar("kv in")
        for r in range(11):
            rho = r + 5; base = (12 if rho < 8 else 14) + (rho & 1)
            a(f"ds_read_b64 {P2(KR+2*r)}, v{base} offset:{128*rho}")
            if r >= 3: a(f"ds_read_b64 {P2(VR+2*(r-3))}, v{12+((r-3)&1)} offset:{s.VST-s.KST+128*(r-3)}")
            if r == 5:
                for e in range(4):
                    for hf in range(2): s.unpack(SF + (2*hf)*4 + e, SF + (2*hf+1)*4 + e, SH + 2*e + hf)
        cnt = 19
        for r in range(11):
            cnt -= 1 if r < 3 else 2
            a(f"s_waitcnt lgkmcnt({min(cnt, 15)})")
            for hf in range(2): s.unpack(KF + 4*r + 2*hf, KF + 4*r + 2*hf + 1, KR + 2*r + hf)
            if r >= 3:
                o = r - 3
                for hf in range(2): s.unpack(VF + 4*o + 2*hf, VF + 4*o + 2*hf + 1, VR + 2*o + hf)
                for hf in range(2): a(f"v_pk_mul_f32 {P2(8+2*hf)}, {P2(KF+4*(r-3)+2*hf)}, {P2(SF+12+2*hf)}")
                for j in (2, 1, 0):
                    for hf in range(2): a(f"v_pk_fma_f32 {P2(8+2*hf)}, {P2(KF+4*(r-j)+2*hf)}, {P2(SF+4*j+2*hf)}, {P2(8+2*hf)}")
                for hf in range(2): a(f"v_pk_mul_f32 {P2(VF+4*o+2*hf)}, {P2(8+2*hf)}, {P2(VF+4*o+2*hf)}")
        s.stamp(2, "kv computed")
        for e in range(4):
            t = 20 + 4*e
            for d in range(4): a(f"v_cvt_pk_bf16_f32 v{t+d}, v{VF+4*(7-2*d)+e}, v{VF+4*(6-2*d)+e}")
            a(f"s_mov_b32 s30, {WS_KV + e*4096}\nbuffer_store_dwordx4 {Q4(t)}, v1, {W}, s30 offen {'' if s.opt.get('kvlocal', 0) else 'sc1'}")
    def load_d(s):
        s.srd(24, "ssmd", D*2)
        s.a("s_lshl_b32 s37, s7, 2\ns_add_u32 s37, s37, s3\ns_lshl_b32 s37, s37, 1\nv_mov_b32 v1, s37\nbuffer_load_ushort v190, v1, s[24:27], 0 offen")
    def poison(s):
        a = s.a; l = s.only_wave(5)
        a(f"s_cmp_ge_u32 s5, 28\ns_cbranch_scc1 {l}\ns_mul_i32 s37, s58, 14\ns_add_u32 s37, s37, s59\ns_lshl_b32 s37, s37, 10\ns_add_u32 s37, s37, {WS_GRAN}\nv_lshlrev_b32 v1, 4, v2")
        for j in range(4): a(f"v_mov_b32 v{16+j}, -1")
        a(f"buffer_store_dwordx4 v[16:19], v1, {W}, s37 offen sc1\n{l}:")
    def k_load(s):
        s.a("; ---- helper wave w: two shifted copies of the long kernel of channel w into LDS, zero pads")
        a = s.a
        s.srd(12, "ssmk", D*S*2)
        a(f"""s_sub_u32 s30, s3, 4
        s_lshl_b32 s33, s7, 2
        s_add_u32 s33, s33, s30
        s_mul_i32 s34, s30, {CH_STRIDE}
        s_lshl_b32 s36, s33, 12
        v_lshlrev_b32 v5, 4, v2
        v_mov_b32 v6, s36
        buffer_load_dword v8, v6, s[12:15], 0 offen""")
        for i in range(4):
            a(f"s_add_u32 m0, s34, {KA_OFF+64+1024*i}\ns_add_u32 s37, s36, {1024*i}\nbuffer_load_dwordx4 v5, s[12:15], s37 offen nt lds")
            a(f"s_add_u32 m0, s34, {KB_OFF+64+1024*i}\ns_add_u32 s37, s36, {4+1024*i}\nbuffer_load_dwordx4 v5, s[12:15], s37 offen nt lds")
        a(f"""v_and_b32 v10, 31, v2
        v_min_u32 v10, 27, v10
        v_lshlrev_b32 v10, 4, v10
        v_lshrrev_b32 v11, 5, v2
        v_mul_u32_u24 v11, {KVE_OFF}, v11
        v_add3_u32 v10, v10, v11, s34
        v_mov_b32 v12, 0
        v_mov_b32 v13, 0
        v_mov_b32 v14, 0
        v_mov_b32 v15, 0
        ds_write_b128 v10, v[12:15] offset:4096
        v_mov_b32 v10, {MISC+768}
        ds_write_b64 v10, v[12:13]
        v_and_b32 v10, 1, v4
        v_mul_u32_u24 v10, {KB_OFF - KA_OFF}, v10
        v_lshl_add_u32 v10, v3, 2, v10
        v_add_u32 v10, s34, v10
        v_and_b32 v11, 31, v2""")
    def k_patch(s):
        s.a(f"v_cmp_eq_u32 vcc, 31, v11\ns_waitcnt vmcnt(0)\nv_cndmask_b32 v8, 0, v8, vcc\nds_write_b32 v10, v8 offset:{KA_OFF}\ns_waitcnt lgkmcnt(0)")
    def gemv_setup(s):
        s.a("; ---- modulation GEMV: addresses of this wave's 128 x 64 slice of w_mod")
        a = s.a
        s.srd(16, "wmod", D*6*D*2); s.srd(20, "c", D*2)
        a(f"""s_lshl_b32 s36, s34, 8
        v_lshl_add_u32 v29, v2, 2, s36
        buffer_load_dword v28, v29, s[20:23], 0 offen
        s_mul_i32 s36, s34, {128*12288}
        s_lshl_b32 s37, s35, 7
        s_add_u32 s46, s36, s37
        v_lshrrev_b32 v20, 3, v2
        v_mul_u32_u24 v20, 12288, v20
        v_and_b32 v21, 7, v2
        v_and_b32 v22, 1, v4
        v_lshlrev_b32 v22, 1, v22
        v_xor_b32 v21, v21, v22
        v_lshl_add_u32 v20, v21, 4, v20
        v_xor_b32 v21, 64, v20
        s_lshl_b32 s41, s40, 8
        s_add_u32 s41, s41, {MISC - 1024}
        s_lshl_b32 s40, s40, 14
        s_add_u32 s40, s40, {HB}
        s_mov_b32 s45, s35""")
    def gemv_issue(s):
        for i in range(16):
            s.a(f"s_add_u32 m0, s40, {1024*i}\nbuffer_load_dwordx4 v{20+(i&1)}, s[16:19], s46 offen nt lds\ns_add_u32 s46, s46, {8*12288}")
    GR = 208
    def silu(s):
        s.a("; ---- silu(c) of the slice as MFMA fragments")
        a = s.a; CF, AD = s.GR, s.GR+16
        a(f"""v_lshlrev_b32 v22, 16, v28
        v_and_b32 v23, 0xffff0000, v28
        v_mul_f32 v24, {fbits(-LOG2E)}, v22
        v_mul_f32 v25, {fbits(-LOG2E)}, v23
        v_exp_f32 v24, v24
        v_exp_f32 v25, v25
        v_add_f32 v24, 1.0, v24
        v_add_f32 v25, 1.0, v25
        v_rcp_f32 v24, v24
        v_rcp_f32 v25, v25
        v_mul_f32 v22, v22, v24
        v_mul_f32 v23, v23, v25
        v_cvt_pk_bf16_f32 v22, v22, v23
        v_lshl_add_u32 v23, v2, 2, s41
        ds_write_b32 v23, v22
        v_lshl_add_u32 v23, v4, 4, s41
        s_waitcnt lgkmcnt(0)""")
        for kk in range(4): a(f"ds_read_b128 {Q4(CF+4*kk)}, v23 offset:{64*kk}")
        a(f"""v_bfe_u32 v24, v2, 2, 2
        v_and_b32 v25, 3, v2
        v_lshl_add_u32 v26, v4, 3, v24
        v_lshlrev_b32 v26, 7, v26
        v_lshl_add_u32 v26, v25, 3, v26
        v_add_u32 v26, s40, v26
        v_lshrrev_b32 v24, 1, v24
        v_and_b32 v25, 1, v4
        v_lshl_or_b32 v24, v25, 1, v24""")
        for u in range(4): a(f"v_xor_b32 v25, {u}, v24\nv_lshl_add_u32 v{AD+u}, v25, 5, v26")
        a("s_waitcnt lgkmcnt(0)")
    def gemv_finish(s, WF):
        a = s.a; CF, AD, AC = s.GR, s.GR+16, s.GR+20
        for kp in range(2):
            for kk in (2*kp, 2*kp+1):
                for u in range(4):
                    b = WF + 16*(kk & 1) + 4*u
                    a(f"ds_read_b64_tr_b16 {P2(b)}, v{AD+u} offset:{4096*kk}\nds_read_b64_tr_b16 {P2(b+2)}, v{AD+u} offset:{4096*kk+512}")
                if kk & 1 == 0: a("s_waitcnt lgkmcnt(4)")
            a("s_waitcnt lgkmcnt(0)")
            for kk in (2*kp, 2*kp+1):
                for u in range(4): a(f"v_mfma_f32_16x16x32_bf16 {Q4(AC+4*u)}, {Q4(CF+4*kk)}, {Q4(WF+16*(kk&1)+4*u)}, " + (Q4(AC+4*u) if kk else "0"))
        for u in range(1, 4): a(f"v_cmp_eq_u32 vcc, {u}, v4\nv_cndmask_b32 v{AC}, v{AC}, v{AC+4*u}, vcc")
        a(f"v_lshl_add_u32 v23, v2, 2, s41\nds_write_b32 v23, v{AC}\ns_waitcnt lgkmcnt(0)")
    def gemv_store(s, XN, lg):
        s.a("; ---- slice product, sum over the four helper waves, store of one K half")
        a = s.a
        s.gemv_finish(XN)
        s.spin(MISC+772)
        a(f"s_cmp_lg_u32 s3, 4\ns_cbranch_scc1 {lg}\nv_lshl_add_u32 v23, v2, 2, s41")
        for w in range(4): a(f"ds_read_b32 v{24+w}, v23 offset:{256*w}")
        a(f"""s_mul_i32 s37, s47, 24576
        s_lshl_b32 s38, s45, 8
        s_add_u32 s37, s37, s38
        v_lshlrev_b32 v23, 2, v2
        s_waitcnt lgkmcnt(0)
        v_add_f32 v24, v24, v25
        v_add_f32 v26, v26, v27
        v_add_f32 v24, v24, v26
        buffer_store_dword v24, v23, {W}, s37 offen sc1
        {lg}:""")
    def spin(s, off):
        a = s.a; sp, so = a.label("L_spin"), a.label("L_spun")
        a(f"""v_mov_b32 v7, {off}
        v_mov_b32 v6, 1
        s_mov_b64 exec, 1
        ds_add_u32 v7, v6
        s_mov_b64 exec, -1
        s_mov_b32 s39, 0
        {sp}:
        ds_read_b32 v6, v7
        s_add_u32 s39, s39, 1
        s_cmp_gt_u32 s39, 200000
        s_cbranch_scc1 {so}
        s_waitcnt lgkmcnt(0)
        v_cmp_ne_u32 vcc, 4, v6
        s_cbranch_vccnz {sp}
        {so}:""")
    def front(s):
        a = s.a
        s.kv_stage()
        if s.opt.get("st0"): s.stamp(27, "kv issued")
        a.srd(8, PTR["ws"], 128*MB)
        a("s_cmp_ge_u32 s3, 4\ns_cbranch_scc1 L_B\nL_padstart:")
    def gemv_task(s, late=False):
        s.a("s_add_u32 s33, s32, 160" if late else f"s_mul_i32 s33, s4, {s.NG}\ns_add_u32 s33, s33, s5")
        s.a("""s_sub_u32 s40, s3, 4
        s_lshr_b32 s35, s33, 1
        s_and_b32 s47, s33, 1
        s_lshl_b32 s34, s47, 2
        s_add_u32 s34, s34, s40""")
        s.gemv_setup()
    def gemv_part(s, lo, hi, wait=None):
        a = s.a; l, l2 = a.label("L_gp"), a.label("L_gp")
        if hi > lo:
            a(f"s_cmp_ge_u32 s5, {s.NG}\ns_cbranch_scc1 {l}\ns_cmp_lt_u32 s3, {4+lo}\ns_cbranch_scc1 {l}\ns_cmp_ge_u32 s3, {4+hi}\ns_cbranch_scc1 {l}")
            s.gemv_issue()
            if wait is not None: wait(); a(f"s_waitcnt vmcnt(16)\ns_branch {l2}")
        a(f"{l}:")
        if wait is not None: wait(); a(f"s_waitcnt vmcnt(0)\n{l2}:")
    def touch(s, srd="s[12:15]"):
        s.a(f"s_sub_u32 s30, s3, 4\ns_mul_i32 s33, s2, 28672\ns_mul_i32 s39, s30, 7168\ns_add_u32 s33, s33, s39\ns_add_u32 s33, s33, {3584 if s.opt.get('thalf', 1) else 0}\nv_min_u32 v7, {27 if s.opt.get('thalf', 1) else 55}, v2\nv_lshlrev_b32 v7, 7, v7\nbuffer_load_dword v204, v7, {srd}, s33 offen")
    def z1_touch(s, lo, hi):
        s.a(f"s_mul_i32 s34, s33, 57344\ns_add_u32 s34, s34, {14336*lo}\nv_and_b32 v6, 31, v2\nv_min_u32 v6, 27, v6\nv_lshlrev_b32 v6, 7, v6\nv_lshrrev_b32 v7, 5, v2\nv_mul_u32_u24 v7, 7168, v7\nv_add_u32 v6, v6, v7")
        for i in range(lo, hi): s.a("buffer_load_dword v204, v6, s[12:15], s34 offen\ns_add_u32 s34, s34, 14336")
    def front_B(s):
        a = s.a; kl = s.opt.get("klate", 1); loc = s.opt.get("kvlocal", 0)
        a(f"s_load_dword s6, s[94:95], {WS_EPOCH}")
        if not s.opt.get("nocodepf"): s.code_prefetch(6)
        s.poison()
        s.gemv_task()
        s.hop(0, 4)
        a("s_waitcnt lgkmcnt(0)\ns_add_u32 s6, s6, 1")
        if loc: l = s.only_wave(7); s.hello_send(); a(f"{l}:")
        a("s_waitcnt vmcnt(1)")
        s.bar("kv in")
        if loc: l = s.only_wave(7); s.hello_check(); a(f"{l}:")
        if kl == 2: s.k_load()
        t3 = s.opt.get("touch", 0) == 3
        if t3: s.srd(24, "win", D*F*2); s.touch("s[24:27]")
        s.ld_setup()
        a(f"s_waitcnt vmcnt({(9 if kl == 2 else 0) + t3})")
        s.silu()
        s.stamp(3, None)
        s.bar("kv stored")
        l = s.only_wave(7); s.set_flag(0, "s7", loc); a(f"{l}:")
        if kl == 1: s.k_load()
        if s.opt.get("touch", 0) == 4: s.srd(24, "win", D*F*2); s.touch("s[24:27]")
        l = s.only_wave(7); a("s_andn2_b32 s37, s7, 15"); s.poll(0, "s37", 16, sleep=s.opt.get("sl1", 0), fl=s.opt.get("pollfl", "sc1"))
        if loc: s.acquire_if_far()
        a(f"{l}:")
        s.k_patch()

    def conv_A(s):
        a = s.a
        s.kv_build()
        a(f"""s_mul_i32 s34, s3, {CH_STRIDE}
        v_and_b32 v10, 1, v3
        v_xor_b32 v11, 1, v10
        v_mul_u32_u24 v11, {KVE_OFF}, v11
        v_lshrrev_b32 v16, 1, v3
        v_sub_u32 v16, 7, v16
        v_lshlrev_b32 v16, 6, v16
        v_lshl_add_u32 v16, v4, 4, v16
        v_add3_u32 v16, v16, v11, s34
        v_mul_u32_u24 v11, {KB_OFF - KA_OFF - 4}, v10
        v_sub_u32 v11, {KB_OFF}, v11
        v_lshl_add_u32 v11, v3, 2, v11
        v_lshl_add_u32 v11, v4, 4, v11
        v_add_u32 v17, s34, v11
        v_lshlrev_b32 v10, 2, v4
        v_add_u32 v10, v10, v3
        v_sub_u32 v10, 15, v10
        v_lshlrev_b32 v5, 4, v2
        s_lshl_b32 s35, s7, 2
        s_add_u32 s35, s35, s3
        s_lshl_b32 s35, s35, 12
        s_add_u32 s35, s35, {WS_KV}
        v_mov_b32 v18, s34
        v_mov_b32 v19, 0""")
        for w in range(4): a(f"v_cmp_eq_u32 vcc, {w}, v10\nv_cndmask_b32 v{12+w}, 0, v190, vcc")
        a("s_waitcnt vmcnt(0)")
        s.stamp(3, "kv stored")
        s.bar("kv stored")
        s.bar("sync1")
        s.stamp(4, "sync1 released")
        for i in range(4):
            a(f"s_add_u32 m0, s34, {1024*i}\ns_add_u32 s37, s35, {1024*i}\nbuffer_load_dwordx4 v5, {W}, s37 offen {s.opt.get('kvld', '') if s.opt.get('kvlocal', 0) else 'sc1'} lds")
            if s.opt.get("kvemis"): a(f"s_add_u32 m0, s34, {KVE_OFF+1024*i}\ns_add_u32 s37, s35, {2+1024*i}\nbuffer_load_dwordx4 v5, {W}, s37 offen sc1 lds")
        ACC, SET = 24, [56, 120]
        def reads(st, mu):
            out = []
            for n in range(8):
                b = SET[st] + 32 + 4*n
                out.append(f"ds_read_b128 {Q4(SET[st]+4*n)}, v16 offset:{512*(7-n)+64*mu}")
                out.append(f"ds_read_b64 {P2(b)}, v17 offset:{512*n+64*mu}")
                out.append(f"ds_read_b64 {P2(b+2)}, v17 offset:{512*n+64*mu+8}")
            return out
        if s.opt.get("kvemis"): a(f"s_waitcnt vmcnt(0)\nds_write_b16 v18, v19 offset:{KVE_OFF+4094}")
        else:
            a("v_add_u32 v18, s34, v5")
            for i in range(4): a(f"s_waitcnt vmcnt({3-i})\nds_read_b128 {Q4(24+8*i)}, v18 offset:{1024*i}")
            for i in range(4): a(f"ds_read_b32 v{28+8*i}, v18 offset:{1024*i+16}")
            for i in range(4):
                a(f"s_waitcnt lgkmcnt(3)")
                for j in range(4): a(f"v_alignbit_b32 v{24+8*i+j}, v{25+8*i+j}, v{24+8*i+j}, 16")
                a(f"ds_write_b128 v18, {Q4(24+8*i)} offset:{KVE_OFF+1024*i}")
        s.stamp(5, "kv in lds")
        a("; ---- long conv: y[256 t + a(r) + 2 c] += kv fragment (block i) x kernel fragment (block j), t = i + j, 8 lag steps of 32")
        a(f"s_mul_i32 s37, s3, {CH_STRIDE + 128}\nv_lshlrev_b32 v10, 2, v3\nv_lshl_add_u32 v10, v4, 7, v10\nv_add_u32 v10, s37, v10")
        a(f"""v_bfe_u32 v11, v2, 1, 2
        v_lshrrev_b32 v18, 3, v2
        v_and_b32 v20, 1, v2
        v_mul_u32_u24 v19, {CH_STRIDE + 128}, v11
        v_lshl_add_u32 v19, v18, 5, v19
        v_lshl_add_u32 v19, v20, 4, v19
        s_lshl_b32 s38, s3, 10
        v_add_u32 v19, s38, v19
        s_lshl_b32 s38, s7, 7
        v_and_b32 v11, 7, v2
        v_lshl_add_u32 v11, v11, 4, s38
        v_lshl_add_u32 v11, v18, 15, v11
        s_lshl_b32 s38, s3, 20
        s_add_u32 s38, s38, {WS_Y2}
        """)
        def ystage(t):
            for jp in range(2): a(f"v_cvt_pk_bf16_f32 v{152+2*t+jp}, v{ACC+4*t+2*jp}, v{ACC+4*t+2*jp+1}\nds_write_b32 v10, v{152+2*t+jp} offset:{512*t+64*jp}")
        ystaged = 0
        cm = s.opt.get("cmode", 2)
        if cm:
            KVF, KF = 56, [88, 120]
            kreads = lambda mu: [f"ds_read_b64 {P2(KF[mu & 1]+4*n+2*h)}, v17 offset:{512*n+64*mu+8*h}" for n in range(8) for h in range(2)]
            nl = s.opt.get("klast", 16)
            for r in kreads(0)[:16-nl]: a(r)
            s.bar("kv landed")
            for mu in range(8):
                for n in range(8): a(f"ds_read_b128 {Q4(KVF+4*n)}, v16 offset:{512*(7-n)+64*mu}")
                for r in kreads(mu)[16-nl:]: a(r)
                nxt = kreads(mu+1)[:16-nl] if mu < 7 else []; k = 0
                for i in range(8):
                    a(f"s_waitcnt lgkmcnt({min(15, (0 if cm == 2 else 7 - i) + k)})")
                    js = list(range(8-i))
                    if s.opt.get("csnake", 1) and i & 1 == 0: js.reverse()
                    for jn, j in enumerate(js):
                        t = i+j
                        if mu == 0 and j == 0: a(f"v_mfma_f32_16x16x32_bf16 {Q4(ACC+4*t)}, {Q4(KVF+4*i)}, v[12:15], " + ("0" if i == 0 else Q4(ACC+4*t)))
                        a(f"v_mfma_f32_16x16x32_bf16 {Q4(ACC+4*t)}, {Q4(KVF+4*i)}, {Q4(KF[mu & 1]+4*j)}, " + ("0" if mu == 0 and i == 0 and j else Q4(ACC+4*t)))
                        if i and nxt: a(nxt.pop(0)); k += 1
                        if mu == 7 and cm == 2 and jn == min(3, 7-i) and 1 <= i <= 5 and (not s.opt.get('csnake', 1) or jn >= 2 or i & 1 == 0) and s.opt.get("yearly", 1): ystage(ystaged); ystaged += 1; k += 2
        else:
            for r in reads(0, 0): a(r)
            s.bar("kv landed")
            for mu in range(8):
                st = mu & 1
                nxt = reads(1-st, mu+1) if mu < 7 else []
                a("s_waitcnt lgkmcnt(0)")
                ms = []
                if mu == 0:
                    for t in range(8): ms.append(f"v_mfma_f32_16x16x32_bf16 {Q4(ACC+4*t)}, {Q4(SET[0]+4*t)}, v[12:15], 0")
                for j in range(8):
                    for i in range(8-j):
                        t = i+j
                        ms.append(f"v_mfma_f32_16x16x32_bf16 {Q4(ACC+4*t)}, {Q4(SET[st]+4*i)}, {Q4(SET[st]+32+4*j)}, {Q4(ACC+4*t)}")
                for n, m in enumerate(ms):
                    a(m)
                    if n < len(nxt): a(nxt[n])
                    cs = s.opt.get("cslow")
                    if cs and (mu < cs[0] if cs[0] > 0 else mu >= -cs[0]) and n % cs[1] == 0: a(f"s_nop {cs[2]}")
        if s.opt.get("wlate"): s.a("s_barrier")
        s.stamp(6, "conv mfma done")
        for t in range(ystaged, 8): ystage(t)
        a("s_waitcnt lgkmcnt(0)")
        if s.opt.get("aspin", 1): s.spin(MISC+768)
        else: s.bar("y staged")
        s.stamp(7, "y staged")
        for q in range(4): a(f"ds_read_b128 {Q4(72+4*q)}, v19 offset:{256*q}")
        for q in range(4):
            a(f"s_waitcnt lgkmcnt({3-q})\nbuffer_store_dwordx4 {Q4(72+4*q)}, v11, {W}, s38 offen sc1\ns_add_u32 s38, s38, {16*16384}")
        a("s_waitcnt vmcnt(0)")
        s.stamp(8, "y stored")
        apre = s.opt.get("xpre", 0) in (3, 4)
        if apre:
            s.srd(12, "win", D*F*2)
            a(f"""s_and_b32 s30, s3, 1
            v_lshlrev_b32 v6, 1, v4
            v_xor_b32 v6, v6, v3
            s_lshl_b32 s35, s30, 5
            v_add_u32 v16, s35, v4
            v_mul_u32_u24 v5, {F*2}, v16
            s_lshl_b32 s36, s59, 8
            v_add_u32 v5, s36, v5""")
            for i in range(8): a(f"v_xor_b32 v7, {8*((i>>1)&1)}, v6\nv_lshl_add_u32 v7, v7, 4, v5\nv_add_u32 v{120+i}, {i*4*F*2}, v7")
            a(f"s_mul_i32 s33, s2, 21504\ns_mul_i32 s39, s3, 7168\ns_add_u32 s33, s33, s39\ns_add_u32 s33, s33, {256*7168 + 3584}\nv_min_u32 v7, 27, v2\nv_lshlrev_b32 v7, 7, v7")
        seq = ["y stored", "stats1", "sync2", "y landed", "stats2", "h2 stored"]; cut = 1 if s.opt.get("xpre", 0) == 4 else 4
        for b in seq[:cut]: s.bar(b)
        if apre:
            l, l2 = a.label("L_apre"), a.label("L_apre")
            a(f"s_cmp_ge_u32 s5, 28\ns_cbranch_scc1 {l}\ns_cmp_ge_u32 s3, 2\ns_cbranch_scc1 {l}")
            for k in range(4): s.ld_ops("w_in2", k)
            a(f"{l}:\ns_cmp_eq_u32 s3, 3\ns_cbranch_scc1 {l2}\nbuffer_load_dword v8, v7, s[12:15], s33 offen\n{l2}:")
        for b in seq[cut:]: s.bar(b)
        if apre: a("s_waitcnt vmcnt(0)")

    def row_B(s):
        s.a("; ---- helper waves: front, then the row phase (LayerNorm 1, gate, residual, LayerNorm 2)")
        a = s.a; o = s.opt
        XR, YR, MODV, XF, XN, T = 164, 8, 180, 32, 64, 96
        s.front_B()
        s.stamp(4, None)
        s.bar("sync1")
        s.bar("kv landed")
        if o.get("wlate"): s.a("s_barrier")
        if not o.get("xfirst", 0): s.gemv_part(o.get("e1", 0) + o.get("e2", 0), 4)
        s.srd(24, "q", S*D*2)
        a("v_and_b32 v6, 255, v0\nv_lshlrev_b32 v1, 3, v6\ns_lshl_b32 s32, s7, 14")
        for r in range(8):
            if r % 2 == 0: a(f"s_add_u32 s38, s32, {2048*r}")
            a(f"buffer_load_dwordx2 {P2(XR+2*r)}, v1, s[24:27], s38 offen offset:{2048*(r&1)} nt")
        if o.get("xfirst", 0): s.gemv_part(o.get("e1", 0) + o.get("e2", 0), 4)
        s.srd(12, "win", D*F*2)
        touch = s.touch
        if o.get("touch", 0) == 0: touch()
        if o.get("touch", 0) == 5:
            l = a.label("L_not")
            a(f"""s_cmp_lt_u32 s5, {s.NG}
            s_cbranch_scc1 {l}
            s_mul_i32 s33, s4, {32-s.NG}
            s_add_u32 s33, s33, s5
            s_sub_u32 s33, s33, {s.NG}
            s_lshl_b32 s33, s33, 2
            s_add_u32 s33, s33, s30
            s_mul_i32 s33, s33, {3*F*2}
            s_add_u32 s33, s33, {FH*2}
            v_and_b32 v7, 31, v2
            v_min_u32 v7, 27, v7
            v_lshlrev_b32 v7, 7, v7
            v_lshrrev_b32 v5, 5, v2
            v_mul_u32_u24 v5, {F*2}, v5
            v_add_u32 v5, v5, v7
            buffer_load_dword v204, v5, s[12:15], s33 offen
            s_add_u32 s33, s33, {2*F*2}
            buffer_load_dword v204, v7, s[12:15], s33 offen
            {l}:""")
        a(f"""v_lshlrev_b32 v200, 4, v6
        v_bfe_u32 v201, v6, 2, 2
        v_lshlrev_b32 v6, 6, v6
        v_add_u32 v6, {YST}, v6""")
        for e in range(4): a(f"v_xor_b32 v7, {e}, v201\nv_lshl_add_u32 v{116+e}, v7, 4, v6")
        a(f"""s_lshl_b32 s37, s30, 2
        s_add_u32 s37, s37, {MISC}
        v_and_b32 v202, 1, v4
        v_lshrrev_b32 v203, 1, v4
        v_lshl_or_b32 v202, v202, 1, v203
        v_lshl_add_u32 v202, v202, 5, s37
        v_and_b32 v203, 7, v2
        v_lshlrev_b32 v203, 5, v203
        v_add_u32 v203, {MISC}, v203
        v_xor_b32 v201, v2, v4
        v_lshlrev_b32 v201, 5, v201""")
        def partial(src, off, pk=True):
            for r in range(8):
                x = src + 4*r
                if pk:
                    a(f"""v_pk_add_f32 {P2(T+16)}, {P2(x)}, {P2(x+2)}
                    v_pk_mul_f32 {P2(T+18)}, {P2(x)}, {P2(x)}
                    v_pk_fma_f32 {P2(T+18)}, {P2(x+2)}, {P2(x+2)}, {P2(T+18)}
                    v_add_f32 v{T+r}, v{T+16}, v{T+17}
                    v_add_f32 v{T+8+r}, v{T+18}, v{T+19}""")
                else:
                    a(f"v_add_f32 v{T+r}, v{x}, v{x+1}\nv_mul_f32 v{T+8+r}, v{x}, v{x}\nv_add_f32 v{T+16}, v{x+2}, v{x+3}")
                    for j in (1, 2, 3): a(f"v_fmac_f32 v{T+8+r}, v{x+j}, v{x+j}")
                    a(f"v_add_f32 v{T+r}, v{T+r}, v{T+16}")
            for p in range(8): a(f"v_permlane32_swap_b32 v{T+2*p}, v{T+2*p+1}")
            for p in range(8): a(f"v_add_f32 v{T+2*p}, v{T+2*p}, v{T+2*p+1}")
            for p in range(4): a(f"v_permlane16_swap_b32 v{T+4*p}, v{T+4*p+2}")
            for p in range(4): a(f"v_add_f32 v{T+4*p}, v{T+4*p}, v{T+4*p+2}")
            for sh in (8, 4, 2, 1):
                for p in range(4): a(f"v_add_f32_dpp v{T+4*p}, v{T+4*p}, v{T+4*p} row_ror:{sh} row_mask:0xf bank_mask:0xf")
            for p in range(4): a(f"ds_write_b32 v202, v{T+4*p} offset:{off + (p&1)*128 + (p>>1)*16}")
            a("s_waitcnt lgkmcnt(0)")
        def final(off, prod=False):
            a(f"""ds_read_b128 {Q4(T)}, v203 offset:{off}
            ds_read_b128 {Q4(T+4)}, v203 offset:{off+16}
            s_waitcnt lgkmcnt(0)
            v_add_f32 v{T}, v{T}, v{T+1}
            v_add_f32 v{T+2}, v{T+2}, v{T+3}
            v_add_f32 v{T+4}, v{T+4}, v{T+5}
            v_add_f32 v{T+6}, v{T+6}, v{T+7}
            v_add_f32 v{T}, v{T}, v{T+2}
            v_add_f32 v{T+4}, v{T+4}, v{T+6}
            v_mul_f32 v{T}, {fbits(-1/1024)}, v{T}
            v_mul_f32 v{T+4}, {fbits(1/1024)}, v{T+4}
            v_fma_f32 v{T+4}, -v{T}, v{T}, v{T+4}
            v_max_f32 v{T+4}, 0, v{T+4}
            v_add_f32 v{T+4}, {fbits(1e-5)}, v{T+4}
            v_rsq_f32 v{T+4}, v{T+4}""")
            if prod: a(f"v_mul_f32 v{T}, v{T}, v{T+4}")
            for r in range(8): a(f"v_readlane_b32 s{64+2*r}, v{T}, {r}\nv_readlane_b32 s{65+2*r}, v{T+4}, {r}")
        if o.get("touch", 0) == 1: touch()
        s.hop(4, s.NPAD)
        s.stamp(5, None)
        lg = a.label("L_nogemv"); a(f"s_cmp_ge_u32 s5, {s.NG}\ns_cbranch_scc1 {lg}\ns_waitcnt vmcnt({(1 if o.get('touch', 0) < 2 else 0) + (0 if o.get('xfirst', 0) else 8)})")
        s.gemv_store(XN, lg)
        s.srd(16, "wsp", S*S*2); s.srd(24, "win", D*F*2); s.srd(20, "wout", FH*D*2)
        s.stamp(6, None)
        if not s.opt.get("aspin", 1): s.bar("y staged")
        a("s_waitcnt vmcnt(0)")
        s.stamp(8, None)
        s.bar("y stored")
        l = s.only_wave(7); s.set_flag(1, "s2"); a(f"{l}:")
        if o.get("touch", 0) == 2 and o.get("xpre", 0) not in (3, 4): touch()
        def preload(lo=0, hi=4):
            l = a.label("L_nopre")
            a(f"s_cmp_ge_u32 s3, 6\ns_cbranch_scc1 {l}\ns_cmp_ge_u32 s5, 28\ns_cbranch_scc1 {l}")
            for g in range(lo, hi): s.ld_ops("w_in2", g)
            a(f"{l}:")
        if o.get("xpre", 0) == 0: preload(0, o.get("xsplit", 4))
        if o.get("zearly", 0):
            l = a.label("L_nz"); a(f"s_cmp_lt_u32 s5, 28\ns_cbranch_scc1 {l}\ns_sub_u32 s33, s5, 28\ns_lshl_b32 s33, s33, 3\ns_add_u32 s33, s33, s4\ns_lshl_b32 s33, s33, 2\ns_add_u32 s33, s33, s30")
            s.z1_touch(0, o["zearly"]); a(f"{l}:")
        for r in range(8):
            for hf in range(2): s.unpack(XF+4*r+2*hf, XF+4*r+2*hf+1, XR+2*r+hf)
        partial(XF, 0)
        s.bar("stats1")
        final(0)
        def normalise():
            for r in range(8):
                for hf in (0, 2): a(f"v_pk_add_f32 {P2(XN+4*r+hf)}, {P2(XF+4*r+hf)}, s[{64+2*r}:{65+2*r}] op_sel_hi:[1,0]")
                for hf in (0, 2): a(f"v_pk_mul_f32 {P2(XN+4*r+hf)}, {P2(XN+4*r+hf)}, s[{64+2*r}:{65+2*r}] op_sel:[0,1] op_sel_hi:[1,1]")
        normalise()
        s.stamp(9, "ln1 done")
        if o.get("xpre", 0) == 2: preload()
        l = s.only_wave(7); s.poll(1, None, 256, sleep=o.get("sl2", 0))
        a(f"s_cmp_lg_u32 s2, 0\ns_cbranch_scc1 {l}\nv_mov_b32 v250, s6\nv_mov_b32 v251, {WS_EPOCH}\ns_mov_b64 exec, 1\nbuffer_store_dword v250, v251, {W}, 0 offen sc1\ns_mov_b64 exec, -1\n{l}:")
        a(f"s_lshl_b32 s33, s30, 12\ns_add_u32 s48, s33, {YST}\ns_lshl_b32 s33, s30, 13\ns_lshr_b32 s38, s7, 1\ns_lshl_b32 s38, s38, 15\ns_add_u32 s33, s33, s38\ns_and_b32 s38, s7, 1\ns_lshl_b32 s38, s38, 4\ns_add_u32 s33, s33, s38\ns_add_u32 s33, s33, {WS_Y2}")
        s.bar("sync2")
        s.stamp(10, "sync2 released")
        for i in range(4): a(f"s_add_u32 m0, s48, {1024*i}\ns_add_u32 s38, s33, {2048*i}\nbuffer_load_dwordx4 v201, {W}, s38 offen sc1 lds")
        for ms in ((0, 1, 2), (3, 4)):
            for m in ms:
                for hf, base in enumerate((MODV, 208)): a(f"s_mov_b32 s38, {WS_MOD + 24576*hf + 4096*m}\nbuffer_load_dwordx4 {Q4(base+4*m)}, v200, {W}, s38 offen sc1")
        a("s_waitcnt vmcnt(10)")
        s.bar("y landed")
        s.stamp(11, "y landed")
        for e in range(4): a(f"ds_read_b128 {Q4(YR+4*e)}, v{116+e}")
        YF = T
        a("s_waitcnt vmcnt(4)")
        for n in range(0, 12, 2): a(f"v_pk_add_f32 {P2(MODV+n)}, {P2(MODV+n)}, {P2(208+n)}")
        for hf in (0, 2): a(f"v_pk_fma_f32 {P2(MODV+4+hf)}, {P2(MODV+4+hf)}, {P2(MODV+8+hf)}, {P2(MODV+8+hf)}")
        for hf in (0, 2): a(f"v_pk_mul_f32 {P2(MODV+hf)}, {P2(MODV+hf)}, {P2(MODV+8+hf)}")
        for r in range(8):
            for hf in (0, 2): a(f"v_pk_fma_f32 {P2(XN+4*r+hf)}, {P2(XN+4*r+hf)}, {P2(MODV+4+hf)}, {P2(MODV+hf)}")
        for q in range(4):
            if q == 0: a("s_waitcnt lgkmcnt(0)")
            for e in range(4): s.unpack(YF+e, YF+4+e, YR+4*e+q)
            for rr in range(2):
                for hf in (0, 2): a(f"v_pk_fma_f32 {P2(XF+4*(2*q+rr)+hf)}, {P2(XN+4*(2*q+rr)+hf)}, {P2(YF+4*rr+hf)}, {P2(XF+4*(2*q+rr)+hf)}")
        def x1_pack():
            for r in range(8):
                for hf in range(2): a(f"v_cvt_pk_bf16_f32 v{XR+2*r+hf}, v{XF+4*r+2*hf}, v{XF+4*r+2*hf+1}")
        if o.get("x1early", 1): x1_pack(); s.x1_store()
        partial(XF, 256)
        a(f"s_waitcnt vmcnt({8 if o.get('x1early', 1) else 0})")
        for n in range(12, 20, 2): a(f"v_pk_add_f32 {P2(MODV+n)}, {P2(MODV+n)}, {P2(208+n)}")
        for hf in (0, 2): a(f"v_pk_add_f32 {P2(MODV+16+hf)}, {P2(MODV+16+hf)}, 1.0 op_sel_hi:[1,0]")
        a("s_lshl_b32 s33, s7, 15\nv_lshrrev_b32 v6, 7, v1\n" + slot_v("v6", "v6", "v7") + "\nv_and_b32 v205, 127, v1\nv_lshl_add_u32 v205, v6, 7, v205")
        s.bar("stats2")
        final(256, True)
        for r in range(8):
            a(f"v_mov_b32 v{T+8+2*(r&1)}, s{64+2*r}")
            for hf in (0, 2): a(f"v_pk_fma_f32 {P2(XN+4*r+hf)}, {P2(XF+4*r+hf)}, s[{64+2*r}:{65+2*r}], {P2(T+8+2*(r&1))} op_sel:[0,1,0] op_sel_hi:[1,1,0]")
            for hf in (0, 2): a(f"v_pk_fma_f32 {P2(XN+4*r+hf)}, {P2(XN+4*r+hf)}, {P2(MODV+16+hf)}, {P2(MODV+12+hf)}")
            for hf in range(2): a(f"v_cvt_pk_bf16_f32 v{YR+2*r+hf}, v{XN+4*r+2*hf}, v{XN+4*r+2*hf+1}")
            a(f"s_add_u32 s38, s33, {WS_H2 + AP_*r}\nbuffer_store_dwordx2 {P2(YR+2*r)}, v205, {W}, s38 offen sc1")
        s.stamp(12, "h2 issued")
        a("s_waitcnt vmcnt(0)")
        s.stamp(13, "h2 stored")
        s.bar("h2 stored")
        l = s.only_wave(7); s.set_flag(2, "s7"); a(f"{l}:")
        if o.get("xpre", 0) == 1: preload()
        if o.get("xpre", 0) == 0 and o.get("xsplit", 4) < 4: preload(o["xsplit"], 4)
        if not o.get("x1early", 1):
            x1_pack()
            if not o.get("x1late", 0): s.x1_store()
    def x1_store(s):
        for r in range(8):
            if r % 2 == 0: s.a(f"s_add_u32 s31, s32, {WS_X1 + 2048*r}")
            s.a(f"buffer_store_dwordx2 {P2(164+2*r)}, v1, {W}, s31 offen offset:{2048*(r&1)} {s.opt.get('x1fl', 'sc1')}")
        return 8

    RING = {1: dict(MY=128, U=4, LX=3, LY=3, X=lambda k: (k % 4)*32768, Y=lambda k: (k % 4)*32768 + 16384),
            3: dict(MY=64, U=8, LX=7, LY=3, X=lambda k: (k % 8)*16384, Y=lambda k: 131072 + (k % 4)*8192)}
    OPS = {"w_in2": ("X", 1, "s[12:15]", "", 120, lambda g: g*64*F*2 + FH*2, 64*F*2), "w_in1": ("X", 1, "s[24:27]", "sc1", 120, lambda g: (g-16)*64*F*2, 64*F*2),
           "h2": ("Y", 1, W, "sc1", 128, lambda g: SLOT(g % 16)*128, None), "z2": ("X", 1, W, "sc1", 136, lambda g: (g-32)*64*AP_, 64*AP_),
           "w_sp": ("Y", 1, "s[16:19]", "", 144, lambda g: (g-32)*128, 128), "w_spc": ("Y", 1, "s[64:67]", "sc1", 144, lambda g: (g-32)*128, 128),
           "w_out": ("X", 3, "s[20:23]", "sc1", 152, lambda g: g*64*D*2, 64*D*2), "p": ("Y", 3, W, "sc1", 160, lambda g: SLOT(g)*128, None)}
    G_, N_, K_ = 20, 24, 27
    def consumer(s, ring, FR):
        a = s.a; c = s.RING[ring]; MY, NS = c["MY"], c["U"]; NYT = MY//32; perm = ring == 3 and s.opt.get("pperm", 1)
        a(f"""s_and_b32 s35, s3, 1
        s_lshr_b32 s36, s3, 1
        v_bfe_u32 v5, v2, 2, 2
        v_and_b32 v6, 3, v2
        v_lshl_add_u32 v7, v4, {2 if perm else 3}, v5
        v_lshlrev_b32 v7, 8, v7
        v_lshl_add_u32 v7, v6, 3, v7
        v_and_b32 v6, 1, v4
        v_xor_b32 v6, s35, v6
        v_lshl_add_u32 v7, v6, 7, v7""")
        for i in range(4): a(f"v_xor_b32 v6, {i}, v5\nv_lshl_add_u32 v{8+i}, v6, 5, v7")
        a(f"""s_mul_i32 s37, s36, {MY//2*128}
        v_lshrrev_b32 v5, 1, v3
        v_xor_b32 v5, v5, v4
        v_lshlrev_b32 v5, 4, v5
        v_lshl_add_u32 v5, v3, 7, v5
        v_add_u32 v12, s37, v5
        v_add_u32 v12, {c["Y"](0) & ~0xffff}, v12
        v_xor_b32 v13, 64, v12""")
        def reads(k, ks, f):
            o = []; xo, yo = c["X"](k) & 0xffff, c["Y"](k) & 0xffff
            for n in range(4):
                if n < NYT: o.append(f"ds_read_b128 {Q4(f+16+4*n)}, v{12+ks} offset:{yo+2048*n}")
                o.append(f"ds_read_b64_tr_b16 {P2(f+4*n)}, v{8+n} offset:{xo+ks*8192}")
                o.append(f"ds_read_b64_tr_b16 {P2(f+4*n+2)}, v{8+n} offset:{xo+ks*8192+(4096 if perm else 1024)}")
            return o
        sn = s.opt.get("snake", 3)
        order = [(x, ts if not (sn & 1 and x & 1) else NYT-1-ts) for x in range(4) for ts in range(NYT)]
        if sn & 2: order = [(x if not (sn & 1 and ts & 1) else 3-x, ts) for ts in range(NYT) for x in range(4)]
        def mfmas(f, base, first=False, order=order):
            return [f"v_mfma_f32_16x16x32_bf16 {Q4(base+4*(x*NYT+ts))}, {Q4(f+4*x)}, {Q4(f+16+4*ts)}, " + ("0" if first else Q4(base+4*(x*NYT+ts)))
                    for x, ts in order]
        def inter(ms, rs, extra=(), tail=()):
            rs = list(rs); ex = list(extra); n = len(ms); tail = list(tail)
            nr = s.opt.get("nr", 2) if not ex else 1
            for i, m in enumerate(ms):
                a(m); k = 0
                while rs and k < nr: a(rs.pop(0)); k += 1
                if not rs: ex = tail + ex; tail = []
                left = n - i; want = max(2 - k, -(-len(ex)//left) if not rs else 0)
                while ex and want > 0:
                    e = ex.pop(0); a(e); want -= 2 if e.startswith(("v_exp", "v_rcp", "v_permlane")) else 1
            for r in rs + ex: a(r)
        def adv(k):
            o = []
            if (c["X"](k) ^ c["X"](k+1)) >> 16: o += [f"v_xor_b32 v{8+i}, s40, v{8+i}" for i in range(4)]
            if (c["Y"](k) ^ c["Y"](k+1)) >> 16: o += [f"v_xor_b32 v{12+i}, s40, v{12+i}" for i in range(2)]
            return o
        a("s_mov_b32 s40, 0x10000")
        def step(name, accq, accp, first=False, exq=(), exp=(), mid=None, end=None, pre=()):
            k = int(name[1:])
            s.bar(name)
            for r in pre: a(r)
            if len(FR) == 4:
                cur, prv = FR[2*(k & 1):2*(k & 1)+2], FR[2-2*(k & 1):4-2*(k & 1)]
                rs = reads(k, 0, cur[0]) + reads(k, 1, cur[1])
                if accq is None:
                    for r in rs + adv(k): a(r)
                else: inter(mfmas(prv[0], accq, first) + mfmas(prv[1], accq), rs, (), adv(k))
                return
            if accq is None:
                for r in reads(k, 0, FR[0]): a(r)
            else: inter(mfmas(FR[1], accq), reads(k, 0, FR[0]), exq)
            a("s_waitcnt lgkmcnt(0)")
            if mid: mid()
            inter(mfmas(FR[0], accp, first), reads(k, 1, FR[1]), list(exp), adv(k))
            if end: end()
        def loop(label, names, acc):
            u = NS; names = list(names)
            while len(names) % u or (names and s.opt.get("trace")): step(names.pop(0), acc, acc); a("s_waitcnt lgkmcnt(0)")
            if not names: return
            a(f"s_mov_b32 s39, {len(names)//u}\n{label}:")
            nb = len(s.bars)
            for i in range(u):
                step(names[i], acc, acc)
                if i < u-1: a("s_waitcnt lgkmcnt(0)")
            del s.bars[nb:]; s.bars.extend((x, 1) for x in names)
            a(f"s_sub_u32 s39, s39, 1\ns_cmp_lg_u32 s39, 0\ns_waitcnt lgkmcnt(0)\ns_cbranch_scc1 {label}")
        return mfmas, step, loop
    def swap4(s, t):
        s.a(f"""v_permlane32_swap_b32 v{t}, v{t+2}
        v_permlane32_swap_b32 v{t+1}, v{t+3}
        v_permlane16_swap_b32 v{t}, v{t+2}
        v_permlane16_swap_b32 v{t+1}, v{t+3}""")
    def store_rows(s, t0, t1, tmp, voff, srd, soff, pitch, fl):
        a = s.a
        if s.opt.get("halfline"):
            a(f"buffer_store_dwordx4 {Q4(t0)}, v{voff}, {srd}, {soff} offen {fl}\nbuffer_store_dwordx4 {Q4(t1)}, v{voff}, {srd}, {soff} offen offset:64 {fl}")
            a(f"s_add_u32 {soff}, {soff}, {16*pitch}"); return
        for j in range(4): a(f"v_mov_b32_dpp v{tmp+j}, v{t0+j} row_ror:8 row_mask:0xf bank_mask:0xf")
        for j in range(4): a(f"v_mov_b32_dpp v{t0+j}, v{t1+j} row_ror:8 row_mask:0xf bank_mask:0xc")
        a(f"buffer_store_dwordx4 {Q4(t0)}, v{voff}, {srd}, {soff} offen {fl}\ns_add_u32 {soff}, {soff}, {8*pitch}")
        for j in range(4): a(f"v_mov_b32_dpp v{t1+j}, v{tmp+j} quad_perm:[0,1,2,3] row_mask:0xf bank_mask:0x3")
        a(f"buffer_store_dwordx4 {Q4(t1)}, v{voff}, {srd}, {soff} offen {fl}\ns_add_u32 {soff}, {soff}, {8*pitch}")
    def row_voff(s, dst, row0, pitch):
        a = s.a
        if s.opt.get("halfline"): a(f"v_add_u32 v{dst}, {row0}, v3\nv_mul_u32_u24 v{dst}, {pitch}, v{dst}\nv_lshl_add_u32 v{dst}, v4, 4, v{dst}")
        else: a(f"v_and_b32 v{dst}, 7, v2\nv_add_u32 v{dst}, {row0}, v{dst}\nv_mul_u32_u24 v{dst}, {pitch}, v{dst}\nv_lshl_add_u32 v{dst}, v4, 4, v{dst}\nv_bfe_u32 v6, v2, 3, 1\nv_lshl_add_u32 v{dst}, v6, 6, v{dst}")
    def gemm12_A(s):
        s.a("; ---- compute waves: z2 pass, z1 pass with gelu / LayerNorm of z2 interleaved, spatial GEMM")
        a = s.a; AP, AQ, FR, T, SU, ST, BI = 16, 80, [144, 176], 208, 216, 232, 248; RED = MISC + 1024
        mfmas, step, loop = s.consumer(1, FR)
        acc = lambda base, x, ts: base + 4*(4*x + ts)
        w = lambda: a("s_waitcnt lgkmcnt(0)")
        s.srd(44, "bsp", S*2)
        a(f"""s_lshl_b32 s41, s58, 7
        s_lshl_b32 s42, s36, 6
        s_add_u32 s41, s41, s42
        v_add_u32 v6, s41, v3
        v_lshlrev_b32 v7, 1, v6""")
        s.row_voff(1, "s41", AP_)
        a("s_lshl_b32 s34, s59, 1\ns_add_u32 s34, s34, s35\n" + slot_s("s34", "s34", "s41"))
        a(f"""s_lshl_b32 s34, s34, 7
        v_mov_b32 v14, {fbits(-1.5957691216057308*LOG2E)}
        v_mov_b32 v15, v14
        s_mov_b32 s42, {fbits(-0.07135481282636784*LOG2E)}
        s_mov_b32 s43, s42""")
        for ts in range(4): a(f"buffer_load_ushort v{BI+ts}, v7, s[44:47], 0 offen offset:{32*ts}")
        def gelu_pk(cs):
            tt = [(cc+hf, T+4*n+hf) for n, cc in enumerate(cs) for hf in (0, 2)]
            for cc, t in tt: a(f"v_pk_mul_f32 {P2(t)}, {P2(cc)}, {P2(cc)}")
            for cc, t in tt: a(f"v_pk_fma_f32 {P2(t)}, {P2(t)}, s[42:43], v[14:15]")
            for cc, t in tt: a(f"v_pk_mul_f32 {P2(t)}, {P2(t)}, {P2(cc)}")
            for cc, t in tt: a(f"v_exp_f32 v{t}, v{t}\nv_exp_f32 v{t+1}, v{t+1}")
            for cc, t in tt: a(f"v_pk_add_f32 {P2(t)}, {P2(t)}, 1.0 op_sel_hi:[1,0]")
            for cc, t in tt: a(f"v_rcp_f32 v{t}, v{t}\nv_rcp_f32 v{t+1}, v{t+1}")
            for cc, t in tt: a(f"v_pk_mul_f32 {P2(cc)}, {P2(cc)}, {P2(t)}")
        def gelu_sc(cc, t):
            o = []
            for f in (lambda j: f"v_mul_f32 v{t+j}, v{cc+j}, v{cc+j}", lambda j: f"v_fma_f32 v{t+j}, v{t+j}, s42, v14", lambda j: f"v_mul_f32 v{t+j}, v{t+j}, v{cc+j}",
                      lambda j: f"v_exp_f32 v{t+j}, v{t+j}", lambda j: f"v_add_f32 v{t+j}, 1.0, v{t+j}", lambda j: f"v_rcp_f32 v{t+j}, v{t+j}", lambda j: f"v_mul_f32 v{cc+j}, v{cc+j}, v{t+j}"):
                o += [f(j) for j in range(4)]
            return o
        def stats_pk(cc, ts, init):
            if init: a(f"v_pk_add_f32 {P2(SU+2*ts)}, {P2(cc)}, {P2(cc+2)}\nv_pk_mul_f32 {P2(SU+8+2*ts)}, {P2(cc)}, {P2(cc)}")
            else: a(f"v_pk_add_f32 {P2(SU+2*ts)}, {P2(SU+2*ts)}, {P2(cc)}\nv_pk_fma_f32 {P2(SU+8+2*ts)}, {P2(cc)}, {P2(cc)}, {P2(SU+8+2*ts)}\nv_pk_add_f32 {P2(SU+2*ts)}, {P2(SU+2*ts)}, {P2(cc+2)}")
            a(f"v_pk_fma_f32 {P2(SU+8+2*ts)}, {P2(cc+2)}, {P2(cc+2)}, {P2(SU+8+2*ts)}")
        def stats_sc(cc, ts, init):
            o = []
            for j in range(4):
                u = SU+2*ts+(j & 1); q = u + 8
                if init and j < 2: o += [f"v_add_f32 v{u}, v{cc+j}, v{cc+j+2}", f"v_mul_f32 v{q}, v{cc+j}, v{cc+j}"]
                elif init: o += [f"v_fmac_f32 v{q}, v{cc+j}, v{cc+j}"]
                else: o += [f"v_add_f32 v{u}, v{u}, v{cc+j}", f"v_fmac_f32 v{q}, v{cc+j}, v{cc+j}"]
            return o
        if s.G_ != 20:
            for n in range(16): a(f"v_mov_b32 v{SU+n}, 0")
        s.bar("R1"); s.stamp(14, "g1 released")
        step("B0", None, AP, True); s.stamp(15, "g1 first stage done"); w()
        loop("L_p1loop", [f"B{j}" for j in range(1, 16)], AP)
        s.stamp(16, "pass z2 done")
        def reduce_stats():
            for n in range(8): a(f"v_add_f32 v{SU+2*n}, v{SU+2*n}, v{SU+2*n+1}")
            for st in range(2): a(f"v_permlane32_swap_b32 v{SU+8*st}, v{SU+8*st+2}\nv_permlane32_swap_b32 v{SU+8*st+4}, v{SU+8*st+6}")
            for st in range(2): a(f"v_add_f32 v{SU+8*st}, v{SU+8*st}, v{SU+8*st+2}\nv_add_f32 v{SU+8*st+4}, v{SU+8*st+4}, v{SU+8*st+6}")
            for st in range(2): a(f"v_permlane16_swap_b32 v{SU+8*st}, v{SU+8*st+4}")
            a(f"""v_add_f32 v{T}, v{SU}, v{SU+4}
            v_add_f32 v{T+1}, v{SU+8}, v{SU+12}
            v_and_b32 v5, 1, v4
            v_lshrrev_b32 v6, 1, v4
            v_lshl_or_b32 v5, v5, 1, v6
            v_lshl_add_u32 v5, v5, 4, v3
            s_lshl_b32 s37, s36, 6
            v_add_u32 v5, s37, v5
            v_lshlrev_b32 v5, 4, v5
            s_lshl_b32 s41, s35, 3
            s_add_u32 s41, s41, {RED}
            v_add_u32 v5, s41, v5
            ds_write_b64 v5, {P2(T)}
            v_add_u32 v5, s37, v3
            v_lshlrev_b32 v5, 3, v5
            v_add_u32 v5, {RED+2048}, v5
            s_add_u32 s37, s34, {WS_Z2}""")
        def normalise(tss):
            for ts in tss:
                for ip in range(2):
                    t = ST + 4*((2*ts+ip) & 3)
                    for ii in range(2):
                        cc = acc(AP, 2*ip+ii, ts)
                        for hf in (0, 2): a(f"v_pk_fma_f32 {P2(cc+hf)}, {P2(cc+hf)}, {P2(SU+2*ts)}, {P2(SU+2*ts)} op_sel:[0,0,1] op_sel_hi:[1,0,1]")
                        a(f"v_cvt_pk_bf16_f32 v{t+2*ii}, v{cc}, v{cc+1}\nv_cvt_pk_bf16_f32 v{t+2*ii+1}, v{cc+2}, v{cc+3}")
                    s.swap4(t)
                s.store_rows(ST + 8*(ts & 1), ST + 8*(ts & 1) + 4, T, 1, W, "s37", AP_, "sc1")
        binit = [f"v_lshlrev_b32 v{BI+ts}, 16, v{BI+ts}" for ts in range(4)] + [f"v_mov_b32 v{acc(AP, x, ts)+j}, v{BI+ts}" for x in range(4) for ts in range(4) for j in range(4)]
        ng = s.G_ - 16; ns = s.opt.get('nsplit', 2); assert s.N_ + ns + 1 < 32 and s.K_ > s.N_ + ns
        for g in range(16, 32):
            kw = {}
            if g < s.G_:
                tiles = [(n // 4, n % 4) for n in range(16*(g-16)//ng, 16*(g-15)//ng)]
                (x0, t0), rest = tiles[0], tiles[1:]
                sc = gelu_sc(acc(AP, x0, t0), ST) + stats_sc(acc(AP, x0, t0), t0, x0 == 0 and ng == 4)
                h = 0 if g == 16 else len(sc)//2
                def mid(rest=rest):
                    for n in range(0, len(rest), 2): gelu_pk([acc(AP, x, t) for x, t in rest[n:n+2]])
                    for x, t in rest: stats_pk(acc(AP, x, t), t, x == 0 and ng == 4)
                kw = dict(exq=sc[:h], exp=sc[h:], mid=mid)
                if g == s.G_-1: kw["end"] = reduce_stats
            elif s.N_ <= g < s.N_ + ns:
                i = g - s.N_; per = 4//ns; tss = list(range(i*per, (i+1)*per))
                kw = dict(mid=lambda tss=tss: normalise(tss[:max(1, per//2)]))
                if per > 1: kw["end"] = lambda tss=tss: normalise(tss[per//2:])
                if i == 0: kw["pre"] = [f"ds_read_b64 {P2(SU+2*ts)}, v5 offset:{128*ts}" for ts in range(4)]
            elif g == s.N_+ns: kw = dict(exq=binit[4:20], exp=binit[20:36], pre=["s_waitcnt vmcnt(8)"] + binit[:4])
            elif g == s.N_+ns+1: kw = dict(exq=binit[36:52], exp=binit[52:])
            step(f"B{g}", AP if g == 16 else AQ, AQ, g == 16, **kw)
            if g == s.K_-1: a("s_waitcnt vmcnt(0)")
            w()
            if g in (s.G_-1, s.N_-1, s.N_, s.K_-1): s.stamp({s.G_-1: 17, s.N_-1: 18, s.N_: 19, s.K_-1: 20}[g], f"before B{g+1}")
        s.stamp(21, "pass z1 done")
        s.bar("R2"); s.stamp(22, "g2 released")
        for m in mfmas(FR[1], AQ): a(m)
        gelu_pk([acc(AQ, 0, 0), acc(AQ, 0, 1)]); gelu_pk([acc(AQ, 0, 2), acc(AQ, 0, 3)])
        for g in range(32, 44):
            n = g - 28; sc = gelu_sc(acc(AQ, n // 4, n % 4), T); h = 0 if g == 32 else 14
            step(f"B{g}", None if g == 32 else AP, AP, exq=sc[:h], exp=sc[h:])
            if g == 32: s.stamp(23, "g2 first stage done")
            w()
        loop("L_g2loop", [f"B{j}" for j in range(44, 64)], AP)
        s.stamp(24, "g2 loop done")
        a(f"s_add_u32 s37, s34, {WS_P}")
        ms = mfmas(FR[1], AP, order=[(x, ts) for ts in range(4) for x in range(4)])
        early = [f"v_mul_f32 v{acc(AP, x, ts)+j}, v{acc(AP, x, ts)+j}, v{acc(AQ, x, ts)+j}" for ts in range(1) for x in range(4) for j in range(4)]
        for i, m in enumerate(ms):
            a(m)
            if i >= 8:
                for _ in range(2): a(early.pop(0))
        for ts in range(4):
            for ip in range(2):
                t = ST + 4*((2*ts+ip) & 3)
                for ii in range(2):
                    cc = acc(AP, 2*ip+ii, ts); z = acc(AQ, 2*ip+ii, ts)
                    if ts:
                        for hf in (0, 2): a(f"v_pk_mul_f32 {P2(cc+hf)}, {P2(cc+hf)}, {P2(z+hf)}")
                    a(f"v_cvt_pk_bf16_f32 v{t+2*ii}, v{cc}, v{cc+1}\nv_cvt_pk_bf16_f32 v{t+2*ii+1}, v{cc+2}, v{cc+3}")
                if not s.opt.get("pperm", 1): s.swap4(t)
            s.store_rows(ST + 8*(ts & 1), ST + 8*(ts & 1) + 4, T, 1, W, "s37", AP_, "sc1")
        s.stamp(28, "p issued")
        a("s_waitcnt vmcnt(0)")
        s.stamp(29, "p stored")
        s.bar("p stored")
    def gemm3_A(s):
        s.a("; ---- compute waves: output GEMM and residual")
        a = s.a; AC, FR, Z, GB, T, GB2 = 16, [48, 72, 96, 120], 144, 160, 176, 208
        mfmas, step, loop = s.consumer(3, FR)
        acc = lambda x, ts: AC + 4*(2*x + ts)
        s.srd(20, "out", S*D*2)
        a(f"""s_lshl_b32 s41, s56, 6
        s_lshl_b32 s42, s36, 5
        s_add_u32 s41, s41, s42
        v_add_u32 v6, s41, v3
        v_lshlrev_b32 v1, 11, v6
        v_lshl_add_u32 v1, v4, 4, v1""")
        s.row_voff(15, "s41", D*2)
        a(f"""s_lshl_b32 s37, s57, 8
        s_lshl_b32 s41, s35, 7
        s_add_u32 s37, s37, s41
        v_lshlrev_b32 v14, 5, v4
        s_lshl_b32 s41, s37, 1
        s_add_u32 s41, s41, {WS_MOD + 5*4096}""")
        s.bar("R3"); s.stamp(30, "g3 released")
        step("C0", None, AC); a("s_waitcnt lgkmcnt(0)"); s.stamp(31, "g3 first stage done")
        step("C1", AC, AC, True); a("s_waitcnt lgkmcnt(0)")
        e = s.opt.get("ldat", 26)
        loop("L_g3loop", [f"C{j}" for j in range(2, e)], AC)
        ld = [f"buffer_load_dwordx4 {Q4(GB+4*n)}, v14, {W}, s41 offen offset:{128*(n>>1)+16*(n&1)} sc1" for n in range(4)]
        ld.append("s_add_u32 s41, s41, 24576")
        ld += [f"buffer_load_dwordx4 {Q4(GB2+4*n)}, v14, {W}, s41 offen offset:{128*(n>>1)+16*(n&1)} sc1" for n in range(4)]
        for ts in range(2):
            ld.append(f"s_add_u32 s41, s37, {WS_X1 + ts*16*2048}")
            ld += [f"buffer_load_dwordx4 {Q4(Z+8*ts+4*ip)}, v1, {W}, s41 offen offset:{64*ip} sc1" for ip in range(2)]
        for j in range(e, 28): step(f"C{j}", AC, AC, pre=ld if j == e else ()); a("s_waitcnt lgkmcnt(0)")
        s.stamp(32, "g3 loop done")
        for m in mfmas(FR[2], AC) + mfmas(FR[3], AC): a(m)
        a("s_waitcnt vmcnt(4)")
        for n in range(16): a(f"v_add_f32 v{GB+n}, v{GB+n}, v{GB2+n}")
        for ts in range(2):
            for ip in range(2):
                c0 = acc(2*ip, ts); c1 = acc(2*ip+1, ts); n = 2*ts+ip; t = T + 8 + 4*n
                for j in range(4): a(f"v_permlane32_swap_b32 v{c0+j}, v{c1+j}")
                for j in range(4): a(f"v_permlane16_swap_b32 v{c0+j}, v{c1+j}")
                a(f"s_waitcnt vmcnt({[3, 2, 3, 2][n]})")
                for ii, cc in enumerate((c0, c1)):
                    for hf in (0, 2): s.unpack(T+hf, T+hf+1, Z+4*n+2*ii+hf//2)
                    for hf in (0, 2): a(f"v_pk_fma_f32 {P2(cc+hf)}, {P2(cc+hf)}, {P2(GB+8*ip+4*ii+hf)}, {P2(T+hf)}")
                    a(f"v_cvt_pk_bf16_f32 v{t+2*ii}, v{cc}, v{cc+1}\nv_cvt_pk_bf16_f32 v{t+2*ii+1}, v{cc+2}, v{cc+3}")
            s.store_rows(T + 8 + 8*ts, T + 12 + 8*ts, T + 4, 15, "s[20:23]", "s37", D*2, s.opt.get('outfl', 'sc1'))

    def ld_setup(s):
        s.a("; ---- per-lane source offsets of the GEMM operands (bank swizzle applied on the source side)")
        a = s.a
        a("s_sub_u32 s30, s3, 4\ns_and_b32 s49, s3, 1\nv_lshlrev_b32 v6, 1, v4\nv_xor_b32 v6, v6, v3\ns_lshl_b32 s35, s49, 5\nv_add_u32 v16, s35, v4")
        for reg, ld, sn, base in ((120, F*2, "s59", 0), (152, D*2, "s57", 0)):
            a(f"s_mov_b32 s36, {ld}\nv_mul_lo_u32 v5, v16, s36\ns_lshl_b32 s36, {sn}, 8\ns_add_u32 s36, s36, {base}\nv_add_u32 v5, s36, v5")
            sh = 0 if reg == 152 and s.opt.get("pperm", 1) else 1
            for i in range(8): a(f"v_xor_b32 v7, {8*((i>>sh)&1)}, v6\nv_lshl_add_u32 v7, v7, 4, v5\nv_add_u32 v{reg+i}, {i*4*ld}, v7")
        a(f"v_lshlrev_b32 v5, 12, v16\nv_add_u32 v5, {WS_Z2}, v5\ns_lshl_b32 s36, s59, 1")
        for p in range(2):
            a(f"v_xor_b32 v7, {8*p}, v6\nv_lshrrev_b32 v17, 3, v7\nv_add_u32 v17, s36, v17\n" + slot_v("v17", "v17", "v18") + f"\nv_and_b32 v7, 7, v7\nv_lshl_add_u32 v7, v7, 4, v5\nv_lshl_add_u32 v7, v17, 7, v7")
            for i in range(8):
                if (i >> 1) & 1 == p: a(f"v_add_u32 v{136+i}, {i*4*AP_}, v7")
        a("v_and_b32 v6, 7, v2\nv_xor_b32 v6, v6, v4\nv_lshrrev_b32 v16, 3, v2")
        for reg, ld, sm, MY, base in ((128, AP_, "s58", 128, WS_H2), (144, S*2, "s58", 128, 0), (160, AP_, "s56", 64, WS_P)):
            a(f"s_mul_i32 s35, {sm}, {MY}\ns_mul_i32 s36, s49, {MY//2}\ns_add_u32 s35, s35, s36\nv_add_u32 v5, s35, v16\ns_mov_b32 s36, {ld}\nv_mul_lo_u32 v5, v5, s36\nv_add_u32 v5, {base}, v5")
            for i in range(MY//16): a(f"v_xor_b32 v7, {4*(i&1)}, v6\nv_lshl_add_u32 v7, v7, 4, v5\nv_add_u32 v{reg+i}, {i*8*ld}, v7")
    def ld_ops(s, name, g=None):
        a = s.a; kind, ring, srd, fl, reg, soff, _ = s.OPS[name]; c = s.RING[ring]
        n = 8 if kind == "X" else c["MY"]//16; part = 0
        a(f"s_mul_i32 s50, s30, {1024*n}")
        if g is None: a(f"s_add_u32 s50, s50, {'s54' if kind == 'X' else 's55'}"); so = "s52" if kind == "X" else "s53"
        else: a(f"s_mov_b32 s51, {soff(g)}"); part = c[kind](g); so = "s51"
        for i in range(n): a(f"s_add_u32 m0, s50, {part+1024*i}\nbuffer_load_dwordx4 v{reg+i}, {srd}, {so} offen {fl} lds")
        return n
    def ld_run(s, ring, plan, tag):
        a = s.a; c = s.RING[ring]
        cnt = lambda nm: 8 if s.OPS[nm][0] == "X" else c["MY"]//16
        issued = []; rows = []
        for name, ops, wt in plan:
            if name == "B17" and s.opt.get("x1late", 0): issued += [-1]*8
            for nm, g in ops: issued += [g]*cnt(nm)
            wc = None
            if wt is not None: wc = len(issued) - 1 - max(i for i, x in enumerate(issued) if x == wt); assert wc < 64
            rows.append((name, ops, wc))
        i = 0
        while i < len(rows):
            name, ops, wc = rows[i]; j = i + 1
            key = lambda r, d: ([(nm, g-d) for nm, g in r[1]], r[2])
            if len(ops) == 2 and name != "B17":
                while j < len(rows) and rows[j][0] != "B17" and key(rows[j], j-i) == key(rows[i], 0): j += 1
            if j - i >= 3 and not s.opt.get('trace'):
                lab = a.label(f"L_ld{tag}")
                for nm, g in ops:
                    kind = s.OPS[nm][0]
                    a(f"s_mov_b32 {'s52' if kind == 'X' else 's53'}, {s.OPS[nm][5](g)}\ns_mov_b32 {'s54' if kind == 'X' else 's55'}, {c[kind](g)}")
                    if not s.OPS[nm][6]: a(f"s_mov_b32 s47, {g % 16 if ring == 1 else g}")
                a(f"s_mov_b32 s44, {j-i}\n{lab}:")
                s.bar(name); s.bars.pop(); s.bars.extend((r[0], 1) for r in rows[i:j])
                for nm, _ in ops: s.ld_ops(nm)
                for nm, _ in ops:
                    kind = s.OPS[nm][0]; r, q = ('s52', 's54') if kind == 'X' else ('s53', 's55')
                    if s.OPS[nm][6]: a(f"s_add_u32 {r}, {r}, {s.OPS[nm][6]}")
                    else: a("s_add_u32 s47, s47, 1\n" + slot_s(r, "s47", "s51") + f"\ns_lshl_b32 {r}, {r}, 7")
                    lo, st = c[kind](0), c[kind](1) - c[kind](0); hi = max(c[kind](k) for k in range(8)) + st
                    a(f"s_add_u32 {q}, {q}, {st}\ns_cmp_eq_u32 {q}, {hi}\ns_cselect_b32 {q}, {lo}, {q}")
                a(f"s_sub_u32 s44, s44, 1\ns_cmp_lg_u32 s44, 0\ns_waitcnt vmcnt({wc})\ns_cbranch_scc1 {lab}")
                i = j
            else:
                s.bar(name)
                if name == "B17" and s.opt.get("x1late", 0): s.x1_store()
                for nm, g in ops: s.ld_ops(nm, g)
                if wc is not None: a(f"s_waitcnt vmcnt({wc})")
                i += 1
    def copies_srd(s, which):
        a = s.a
        if {"w_in1": "i", "w_out": "o"}[which] not in s.fix: return
        d, sn, off = {"w_in1": (24, "s59", WS_WIC), "w_out": (20, "s57", WS_WOC)}[which]
        l = a.label("L_nofix")
        a(f"s_and_b32 s35, {sn}, 3\ns_cmp_lg_u32 s35, 1\ns_cbranch_scc1 {l}\ns_add_u32 s{d}, s94, {off-256}\ns_addc_u32 s{d+1}, s95, 0\ns_and_b32 s{d+1}, s{d+1}, 0xffff\n{l}:")
    def gemm12_L(s):
        s.a("; ---- loader waves 4, 5: LDS-DMA ring of the fused GEMM stream")
        s.copies_srd("w_in1"); s.copies_srd("w_out"); s.a.srd(64, PTR["ws"], S*S*2, WS_WSC - 128)
        ops = lambda g: [] if g > 63 else ([("h2", g)] if g < 4 else [("h2", g), ("w_in2" if g < 16 else "w_in1", g)] if g < 32 else [("w_sp", g)] if g < 35 else [("z2", g), ("w_spc" if g % 8 == 3 and "s" in s.fix else "w_sp", g)])
        plan = [("R1", [("h2", 0), ("h2", 1), ("h2", 2)], 0)]
        for j in range(64):
            o = ops(j+3)
            if s.opt.get("rev"): o = o[::-1]
            if s.opt.get("pause"):
                if j == s.N_: o = []
                if j == s.N_+1: o = ops(j+2) + o
            plan.append((f"B{j}", o, j+1 if j not in (31, 63) else None))
            if j == 31: plan.append(("R2", [("z2", 32), ("z2", 33), ("z2", 34)], 32))
        s.ld_run(1, plan, "a")
        n = s.opt.get("wpre", 2)
        for g in range(n): s.ld_ops("w_out", g)
        s.bar("p stored")
        for g in range(n, 8):
            if g == max(n, 6): s.a("s_waitcnt vmcnt(32)")
            s.ld_ops("w_out", g)
    def gemm3_L(s):
        s.a("; ---- loader waves 4, 5: rings of the output GEMM")
        s.a("s_waitcnt vmcnt(40)")
        ops = lambda j: ([("p", j+3)] if j+3 < 28 else []) + ([("w_out", j+7)] if 8 <= j+7 < 28 else [])
        plan = [("R3", [("p", g) for g in range(3)], 0)] + [(f"C{j}", ops(j), j+1 if j < 27 else None) for j in range(28)]
        s.ld_run(3, plan, "c")
    def gemm12_X(s):
        s.a("; ---- waves 6, 7: hand-off flags, LayerNorm exchange between the 14 tiles of a row block")
        a = s.a; RED = MISC + 1024
        a(f"""s_sub_u32 s35, s3, 6
        s_lshl_b32 s35, s35, 6
        v_add_u32 v5, s35, v2
        v_lshlrev_b32 v6, 4, v5
        v_add_u32 v6, {RED}, v6
        v_lshlrev_b32 v5, 3, v5
        v_add_u32 v7, {RED+2048}, v5
        s_mul_i32 s36, s58, {14*1024}
        s_add_u32 s36, s36, {WS_GRAN}
        s_lshl_b32 s38, s59, 10
        s_add_u32 s38, s38, s36
        s_mov_b32 s55, 0""")
        l = s.only_wave(7); a("s_lshl_b32 s37, s58, 4"); s.poll(2, "s37", 16, sleep=s.opt.get("sl1", 0)); a(f"{l}:\ns_waitcnt vmcnt(0)")
        s.bar("R1")
        def gather():
            for n in range(14):
                if n % 4 == 0: a(f"s_add_u32 s37, s36, {1024*n}")
                a(f"buffer_load_dwordx2 {P2(12+2*n)}, v5, {W}, s37 offen offset:{1024*(n&3)} sc1")
        def check(blocking):
            top, fin, out = a.label("L_lnc"), a.label("L_lnf"), a.label("L_lno")
            a(f"s_cmp_lg_u32 s55, 0\ns_cbranch_scc1 {out}\ns_mov_b32 s39, 0\n{top}:\ns_waitcnt vmcnt(0)\nv_max_u32 v8, v13, v15")
            for n in range(2, 14, 2): a(f"v_max3_u32 v8, v8, v{13+2*n}, v{15+2*n}")
            a(f"v_cmp_eq_u32 vcc, -1, v8\ns_add_u32 s39, s39, 1\ns_cmp_gt_u32 s39, 20000\ns_cbranch_scc1 {fin}\ns_cbranch_vccz {fin}")
            gather()
            a(f"s_branch {top if blocking else out}\n{fin}:")
            for n in range(1, 14): a(f"v_add_f32 v12, v12, v{12+2*n}\nv_add_f32 v13, v13, v{13+2*n}")
            a(f"""v_mul_f32 v12, {fbits(1/FH)}, v12
            v_mul_f32 v13, {fbits(1/FH)}, v13
            v_fma_f32 v13, -v12, v12, v13
            v_max_f32 v13, 0, v13
            v_add_f32 v13, {fbits(1e-5)}, v13
            v_rsq_f32 v8, v13
            v_mul_f32 v9, -v12, v8
            ds_write_b64 v7, v[8:9]
            s_mov_b32 s55, 1
            s_waitcnt lgkmcnt(0)
            {out}:""")
        for j in range(64):
            s.bar(f"B{j}")
            if s.opt.get("probe"):
                l = s.only_wave(6)
                a(f"s_lshl_b32 s86, s7, 14\ns_add_u32 s86, s86, {WS_KV + 128*j}\ns_memrealtime s[88:89]\ns_waitcnt lgkmcnt(0)\ns_buffer_load_dword s87, {W}, s86 glc\ns_waitcnt lgkmcnt(0)\ns_memrealtime s[90:91]\ns_waitcnt lgkmcnt(0)\ns_sub_u32 s90, s90, s88\nv_writelane_b32 v247, s90, {j}\nv_writelane_b32 v246, s88, {j}\n{l}:")
            if j in s.opt.get("recode", ()): s.code_prefetch(6, 28, 68)
            late = s.opt.get("x1late", 0)
            if late and j == 17: s.x1_store()
            if late and j == 19: a("s_waitcnt vmcnt(0)")
            if j == (21 if late else 0) and not s.opt.get("x1early", 1):
                l = s.only_wave(7); s.set_flag(5, "s7"); a(f"{l}:")
            if j == s.opt.get("deferat", 11) and s.opt.get("defer", 1):
                l = s.only_wave(7); a(f"s_cmp_lg_u32 s5, 0\ns_cbranch_scc1 {l}"); s.set_flag(6, "s7"); a(f"{l}:")
            if True:
                for sync, j0 in [(sy, j0) for sy, j0, c in ((7, 9, "i"), (8, 24, "s"), (9, 56, "o")) if c in s.fix]:
                    if j == j0: l = s.only_wave(7); s.poll_early(sync); a(f"{l}:")
                    if j == j0+3: l = s.only_wave(7); s.poll_late(sync); a(f"{l}:")
            if j == s.G_:
                a(f"""ds_read_b128 v[8:11], v6
                s_waitcnt lgkmcnt(0)
                v_add_f32 v8, v8, v10
                v_add_f32 v9, v9, v11
                v_cmp_o_f32 vcc, v9, v9
                v_mov_b32 v10, 0x7fc00000
                v_cndmask_b32 v9, v10, v9, vcc
                buffer_store_dwordx2 v[8:9], v5, {W}, s38 offen sc1""")
            elif j == s.N_-1-s.opt.get("lag", 1): gather()
            elif j == s.N_-1:
                check(True)
                if s.diag: a("v_writelane_b32 v255, s39, 40")
                s.stamp(18, None)
            elif j == s.K_:
                l = s.only_wave(7); a("s_lshl_b32 s37, s59, 4\ns_add_u32 s37, s37, s58"); s.set_flag(3, "s37"); a(f"{l}:")
            elif j == 31:
                l = s.only_wave(7); a("s_lshl_b32 s37, s59, 4"); s.stamp(21, None); s.poll(3, "s37", 16); s.stamp(22, None); a(f"{l}:")
                s.bar("R2")
        s.bar("p stored")
        l = s.only_wave(7); a("s_lshl_b32 s37, s58, 4\ns_add_u32 s37, s37, s59"); s.set_flag(4, "s37"); a(f"{l}:")
    def gemm3_X(s):
        s.a("; ---- waves 6, 7: hand-off of p")
        a = s.a
        early = s.opt.get("p2", 1)
        l = s.only_wave(7); a("s_lshr_b32 s37, s56, 1\ns_lshl_b32 s37, s37, 4"); s.poll(4, "s37", 2 if early else 14, sleep=s.opt.get("sl5", 0)); a(f"{l}:\ns_waitcnt vmcnt(0)")
        s.bar("R3")
        for j in range(28):
            if j == 0 and early: l = s.only_wave(7); s.poll(4, "s37", 14); a(f"{l}:")
            s.bar(f"C{j}")
            if j in (8, 14) and not s.opt.get("x1early", 1):
                l = s.only_wave(7); a("s_lshl_b32 s37, s56, 3"); (s.poll_early if j == 8 else s.poll_late)(5, "s37", 8); a(f"{l}:")

    def code_prefetch(s, wave, n=32, d=24):
        a = s.a; l = s.only_wave(wave); here = a.label("L_pc")
        a(f"""s_getpc_b64 s[{d}:{d+1}]
        {here}:
        s_sub_u32 s{d}, s{d}, {here}-{NAME}
        s_subb_u32 s{d+1}, s{d+1}, 0
        s_and_b32 s{d+1}, s{d+1}, 0xffff
        s_mov_b32 s{d+2}, L_done-{NAME}
        s_mov_b32 s{d+3}, 0x00020000
        v_mul_u32_u24 v248, {128*n}, v2
        s_lshl_b32 s35, s5, 7
        buffer_load_dword v249, v248, s[{d}:{d+3}], s35 offen
        {l}:""")
    def hop(s, lo, hi):
        a = s.a
        if not s.opt.get("pads", 1): return
        out = a.label("L_hopped")
        a("s_mov_b32 s99, 1")
        ks = [k for k in range(lo, hi) if k not in s.jit_pads]; per = -(-len(ks)//4)
        for w in range(4):
            l = s.only_wave(4+w)
            for k in ks[w*per:(w+1)*per]: a(f"s_branch L_pad_{k}\nL_padret_{k}:")
            a(f"s_branch {out}\n{l}:")
        a(f"{out}:\ns_mov_b32 s99, 0")
    def build(s):
        a = s.a
        a.launch(NAME, 256, 512, LDS_BYTES); a.begin(NAME)
        a("s_cmp_ge_u32 s2, 256\ns_cbranch_scc1 L_done")
        if s.diag: a("v_mov_b32 v255, 0\nv_mov_b32 v247, 0\nv_mov_b32 v246, 0")
        if s.opt.get("fixed"): a("s_memrealtime s[100:101]\ns_waitcnt lgkmcnt(0)")
        s.stamp(0, "start")
        if s.opt.get("burn"):
            a(f"s_mov_b32 s20, {s.opt['burn']}\nL_burn:")
            for i in range(64): a(f"v_add_u32 v{1+(i&7)}, v{9+(i&7)}, v0")
            a("s_sub_u32 s20, s20, 1\ns_cmp_lg_u32 s20, 0\ns_cbranch_scc1 L_burn")
        a("""s_load_dwordx16 s[64:79], s[0:1], 0
        s_load_dwordx16 s[80:95], s[0:1], 64
        v_lshrrev_b32 v1, 6, v0
        v_and_b32 v2, 63, v0
        v_readfirstlane_b32 s3, v1
        s_and_b32 s4, s2, 7
        s_lshr_b32 s5, s2, 3
        s_lshl_b32 s7, s4, 5
        s_add_u32 s7, s7, s5
        v_and_b32 v3, 15, v2
        v_lshrrev_b32 v4, 4, v2
        s_mov_b32 s99, 0
""")
        if s.opt.get("rowmap", 0):
            a("""s_cmp_ge_u32 s5, 14
            s_cselect_b32 s35, 1, 0
            s_cselect_b32 s36, 14, 0
            s_sub_u32 s59, s5, s36
            s_lshl_b32 s58, s4, 1
            s_add_u32 s58, s58, s35
            s_lshr_b32 s35, s5, 3
            s_and_b32 s57, s5, 7
            s_lshl_b32 s56, s4, 2
            s_add_u32 s56, s56, s35""")
        else:
            a("""s_lshr_b32 s33, s4, 1
        s_and_b32 s34, s4, 1
        s_mul_i32 s35, s5, 37
        s_lshr_b32 s35, s35, 8
        s_mul_i32 s36, s35, 7
        s_sub_u32 s36, s5, s36
        s_lshl_b32 s58, s33, 2
        s_add_u32 s58, s58, s35
        s_mul_i32 s59, s34, 7
        s_add_u32 s59, s59, s36
        s_lshr_b32 s35, s5, 2
        s_and_b32 s36, s5, 3
        s_lshl_b32 s56, s33, 3
        s_add_u32 s56, s56, s35
        s_lshl_b32 s57, s34, 2
        s_add_u32 s57, s57, s36""")
        s.front()
        def flat(b): return [n for n, k in b for _ in range(k)]
        s.bars = []
        s.conv_A(); front = flat(s.bars); s.bars = []
        o = s.opt; nsb = (0 if o.get("x1early", 1) else 1) + bool(o.get("l2pf", 0)) + bool(o.get("defer", 1)) + len(s.fix) + ("o" in s.fix)
        a("s_cmp_lt_u32 s5, 28\ns_cbranch_scc1 L_A1\n" + "s_barrier\n"*nsb + "s_branch L_A3\nL_A1:")
        s.gemm12_A(); mid = flat(s.bars); s.bars = []
        a("L_A3:"); s.gemm3_A(); last = flat(s.bars); s.bars = []
        a("s_branch L_end\nL_B:")
        if s.opt.get("prio"): a(f"s_setprio {s.opt['prio']}")
        s.row_B(); assert flat(s.bars) == front, (flat(s.bars), front); s.bars = []
        a("s_cmp_ge_u32 s5, 28\ns_cbranch_scc1 L_Bspare\ns_cmp_ge_u32 s3, 6\ns_cbranch_scc1 L_X")
        s.gemm12_L(); assert flat(s.bars) == mid, (flat(s.bars), mid); s.bars = []
        a("L_L3:"); s.gemm3_L(); assert flat(s.bars) == last; s.bars = []
        a("s_branch L_end\nL_X:")
        s.jit_on = True
        s.gemm12_X(); assert flat(s.bars) == mid; s.bars = []
        a("L_X3:"); s.gemm3_X(); assert flat(s.bars) == last; s.bars = []
        s.jit_on = False; assert not s.jit; s.order = mid + last
        a("s_branch L_end\nL_Bspare:")
        if s.opt.get("x1late", 0): s.x1_store()
        if not s.opt.get("x1early", 1):
            a("s_waitcnt vmcnt(0)\ns_barrier")
            l = s.only_wave(7); s.set_flag(5, "s7"); a(f"{l}:")
        a("; ---- workgroups without a tile in the first two GEMMs: weight prefetch, last modulation vector, shifted copy of two w_out tiles")
        a("s_sub_u32 s32, s5, 28\ns_lshl_b32 s32, s32, 3\ns_add_u32 s32, s32, s4\nv_and_b32 v5, 255, v0\nv_lshlrev_b32 v5, 7, v5\ns_mov_b32 s62, 0\ns_mov_b32 s63, -1")
        fix = s.fix; s.nspare_bar = 0
        def sbar(): a("s_barrier"); s.nspare_bar += 1
        def copy(srd, dst, voff, row0, pitch, n, sync):
            a(f"s_mul_i32 s34, s33, {row0}")
            for i in range(n): a(f"buffer_load_dwordx4 {Q4(32+4*i)}, {voff}, {srd}, s34 offen\ns_add_u32 s34, s34, {pitch}")
            a(f"s_mul_i32 s34, s33, {row0}\ns_add_u32 s34, s34, {dst}")
            for i in range(n): a(f"s_waitcnt vmcnt({n-1})\nbuffer_store_dwordx4 {Q4(32+4*i)}, {voff}, {W}, s34 offen sc1\ns_add_u32 s34, s34, {pitch}")
            a("s_waitcnt vmcnt(0)"); sbar()
            l = s.only_wave(7); s.set_flag(sync, "s32"); a(f"{l}:")
        a("s_lshl_b32 s33, s32, 2\ns_add_u32 s33, s33, s30")
        if "i" in fix:
            a("v_lshlrev_b32 v8, 10, v4\nv_lshl_add_u32 v8, v3, 4, v8\nv_add_u32 v8, 256, v8")
            copy("s[12:15]", WS_WIC - 256, "v8", 8*F*2, F*2, 8, 7)
        if s.opt.get("thalf", 1): s.z1_touch(s.opt.get("zearly", 0), 4)
        if s.opt.get("defer", 1):
            l = s.only_wave(7); a("s_lshl_b32 s37, s4, 5"); s.poll(6, "s37", 1, sleep=8); a(f"{l}:"); sbar()
        if "s" in fix:
            a("v_bfe_u32 v8, v2, 3, 2\nv_lshlrev_b32 v8, 10, v8\nv_and_b32 v7, 7, v2\nv_lshl_add_u32 v8, v7, 4, v8\nv_lshrrev_b32 v7, 5, v2\nv_lshl_add_u32 v8, v7, 12, v8\nv_add_u32 v8, 384, v8")
            copy("s[16:19]", WS_WSC - 128, "v8", 16*S*2, 2*S*2, 8, 8)
        order = [k for k in range(32) if not ("s" in fix and k % 8 == 3)]
        a("v_and_b32 v6, 63, v0\nv_lshlrev_b32 v6, 12, v6\ns_lshl_b32 s35, s32, 18")
        for i in range(len(order)//4):
            for w in range(4): a(f"s_cmp_eq_u32 s30, {w}\ns_cselect_b32 s34, {order[4*i+w]*128}, s34")
            if s.opt.get("gentle") and i >= s.opt.get("gfrom", 0): a("s_waitcnt vmcnt(0)"); a("s_mov_b64 exec, 0xffffffff\ns_add_u32 s34, s34, s35\nbuffer_load_dword v100, v6, s[16:19], s34 offen\ns_waitcnt vmcnt(0)\ns_not_b64 exec, exec\nbuffer_load_dword v100, v6, s[16:19], s34 offen\ns_mov_b64 exec, -1")
            else: a("s_add_u32 s34, s34, s35\nbuffer_load_dword v100, v6, s[16:19], s34 offen")
        if s.NG == 20:
            s.gemv_task(True); s.gemv_issue(); a("s_waitcnt vmcnt(16)"); s.silu(); a("s_waitcnt vmcnt(0)"); s.gemv_store(64, a.label("L_gb"))
            s.srd(16, "wsp", S*S*2); s.srd(20, "wout", FH*D*2)
            a("s_lshl_b32 s33, s32, 2\ns_add_u32 s33, s33, s30")
        if "o" in fix:
            a("v_and_b32 v8, 1, v4\nv_lshlrev_b32 v8, 10, v8\nv_lshl_add_u32 v8, v3, 4, v8\nv_lshrrev_b32 v7, 5, v2\nv_lshl_add_u32 v8, v7, 11, v8\nv_add_u32 v8, 256, v8")
            copy("s[20:23]", WS_WOC - 256, "v8", 14*D*2, 2*D*2, 7, 9)
        a(f"s_mul_i32 s34, s32, {FH*D*2//32}")
        for i in range(4):
            if s.opt.get("gentle"): a("s_waitcnt vmcnt(0)\ns_mov_b64 exec, 0xffffffff\nbuffer_load_dword v100, v5, s[20:23], s34 offen\ns_waitcnt vmcnt(0)\ns_not_b64 exec, exec\nbuffer_load_dword v100, v5, s[20:23], s34 offen\ns_mov_b64 exec, -1\ns_add_u32 s34, s34, 32768")
            else: a("buffer_load_dword v100, v5, s[20:23], s34 offen\ns_add_u32 s34, s34, 32768")
        a.srd(64, PTR["ws"], S*S*2, WS_WSC - 128)
        f0 = s.opt.get("l2pf", 0)
        if f0:
            a(f"""s_sub_u32 s33, s5, 28
            s_lshr_b32 s34, s4, 1
            s_lshl_b32 s34, s34, 2
            s_add_u32 s34, s34, s33
            s_lshl_b32 s34, s34, 7
            v_and_b32 v5, 127, v0
            v_add_u32 v5, s34, v5
            v_lshlrev_b32 v8, 12, v5
            v_and_b32 v5, 255, v0
            v_min_u32 v5, 223, v5
            v_mul_u32_u24 v6, 4682, v5
            v_lshrrev_b32 v6, 16, v6
            v_mul_u32_u24 v7, 14, v6
            v_sub_u32 v7, v5, v7
            s_lshl_b32 s34, s33, 4
            v_add_u32 v6, s34, v6
            v_lshlrev_b32 v6, 12, v6
            s_and_b32 s34, s4, 1
            s_mul_i32 s35, s34, 14
            v_add_u32 v7, s35, v7
            {slot_v("v7", "v7", "v5")}
            v_lshl_add_u32 v9, v7, 7, v6
            s_mul_i32 s37, s34, 112""")
            l = s.only_wave(7); s.poll(3, "s37", 112, sleep=8)
            if "s" in fix: s.poll(8, None, 32)
            a(f"{l}:"); sbar()
            a(f"""s_mov_b32 s33, {f0*128}
            s_mov_b32 s34, {WS_Z2 + f0*64*AP_}
            L_l2:
            buffer_load_dword v100, v9, {W}, s34 offen sc1
            s_cmp_ge_u32 s3, 6
            s_cbranch_scc1 L_l2y
            s_bfe_u32 s35, s33, 0x30007
            s_cmp_eq_u32 s35, {3 if 's' in fix else 8}
            s_cbranch_scc1 L_l2c
            buffer_load_dword v100, v8, s[16:19], s33 offen
            s_branch L_l2y
            L_l2c:
            buffer_load_dword v100, v8, s[64:67], s33 offen
            L_l2y:
            s_add_u32 s33, s33, 128
            s_add_u32 s34, s34, {64*AP_}
            s_cmp_lt_u32 s33, 4096
            s_waitcnt vmcnt(40)
            s_cbranch_scc1 L_l2""")
        if "o" in fix:
            l = s.only_wave(7); s.poll(9, None, 32, sleep=8); a(f"{l}:"); sbar()
        s.copies_srd("w_out")
        a("s_cmp_ge_u32 s3, 6\ns_cbranch_scc1 L_X3\ns_waitcnt vmcnt(0)")
        for k in range(8):
            if k == 6: a("s_waitcnt vmcnt(32)")
            s.ld_ops("w_out", k)
        assert s.nspare_bar + (0 if o.get("x1early", 1) else 1) == nsb
        a("s_branch L_L3")
        a("L_end:")
        if s.opt.get("fixed"):
            a(f"s_add_u32 s100, s100, {s.opt['fixed']*100}\nL_fix:\ns_memrealtime s[96:97]\ns_waitcnt lgkmcnt(0)\ns_sub_u32 s96, s96, s100\ns_cmp_lt_i32 s96, 0\ns_cbranch_scc1 L_fix")
        if s.diag:
            a("s_waitcnt vmcnt(0)"); s.stamp(63, "end")
            if s.opt.get("dbg"):
                sel = s.opt["dbg"]
                a.srd(12, 92, 256)
                a("s_cmp_lg_u32 s2, 37\ns_cbranch_scc1 L_nodbg\ns_cmp_lg_u32 s3, 0\ns_cbranch_scc1 L_nodbg\nv_readlane_b32 s20, v255, 0\nv_mov_b32 v5, 0")
                for j, i in enumerate(sel): a(f"v_readlane_b32 s21, v255, {i}\ns_sub_u32 s21, s21, s20\nv_writelane_b32 v5, s21, {j}")
                a("v_lshlrev_b32 v1, 2, v2\nbuffer_store_dword v5, v1, s[12:15], 0 offen\nL_nodbg:")
            if s.opt.get("probe"): a(f"s_lshl_b32 s92, s2, 11\ns_add_u32 s92, s92, {WS_TS + MB}\nv_lshlrev_b32 v1, 2, v0\nbuffer_store_dword v247, v1, {W}, s92 offen\ns_add_u32 s92, s92, {MB}\nbuffer_store_dword v246, v1, {W}, s92 offen")
            a(f"s_lshl_b32 s92, s2, 11\ns_add_u32 s92, s92, {WS_TS}\nv_lshlrev_b32 v1, 2, v0\nbuffer_store_dword v255, v1, {W}, s92 offen")
        a("L_done:\ns_endpgm")
        info = a.end(NAME, 256, sgpr=102, align=s.opt.get("align"), pads=(s.NPAD, "s99", s.opt.get("padbase", 0xe00)) if s.opt.get("pads", 1) else None)
        if "-v" in sys.argv: print(info, file=sys.stderr)
        return a.text(HEADER)
HEADER = """; adaLN-conditioned H3 long-conv block + gMLP block, one persistent launch of 256 workgroups x 8 waves (text emitted by the author's generator).
; kernarg: q k v shift_k ssm_k ssm_D B_x w_in w_sp b_sp w_out c w_mod out debug ws
;
;  1 kv = shortconv(k)*v per 64-channel x 128-row tile, stored per channel       -> flag, 16 producers per consumer
;  2 long causal conv of 4 channels per workgroup as Toeplitz MFMA products      -> flag, all to all
;  3 x1 = x + gate*LN(x)mod*y, h2 = LN(x1)mod for 8 rows per workgroup           -> flag, 16 producers
;  4 z2 = gelu(h2 w_in[:,1792:]), then z1 likewise while z2's LayerNorm sums are exchanged and z2 is stored -> flag, 16 producers
;  5 p = z1 * (w_sp LN(z2) + b_sp)                                               -> flag, 14 producers
;  6 out = x1 + gate * (p w_out)
; Hand-offs: payload and flag are written through (sc1) and the payload is acknowledged before the flag; a flag holds this launch's tag, which is
; The L_pad_* pairs are landing pads: idle helper waves branch there and back so that a code page is resident before the compute waves reach it.
"""
def build(diag=False, **opt):
    g = G(diag, **opt); t = g.build()
    if opt.get("pads", 1) and opt.get("jithop", 1):
        jit = {}; last = None; inA = False
        for l in t.splitlines():
            if l.startswith("L_A1:"): inA = True
            if l.startswith("L_B:"): break
            if inA and "s_barrier ;" in l: last = l.split(";")[1].strip()
            if inA and l.startswith("L_pad_") and last:
                jit.setdefault(g.order[max(0, g.order.index(last) - opt.get("lead", 3))], []).append(int(l[6:-1]))
        used = t.count('s_cbranch_scc1 L_padret_')
        g = G(diag, **dict(opt, jit=jit, npad=used+1)); t = g.build()
    import padcheck; assert not padcheck.check(t)
    build.names = g.names; return t
if __name__ == "__main__":
    t = build(diag="--diag" in sys.argv)
    if "--plain" in sys.argv: t = t.replace(f"; @launch kernel={NAME} grid", "; @launch grid")
    open(sys.argv[1], "w").write(t)
```
